```python
import torch

def _softmax(x, axis=-1):
    return torch.softmax(x, dim=axis)
def _gelu(x):
    return torch.nn.functional.gelu(x, approximate="tanh")
def _silu(x):
    return torch.nn.functional.silu(x)
def _sigmoid(x):
    return torch.sigmoid(x)
def _layernorm(x, axis=-1, eps=1e-5):
    m = x.mean(dim=axis, keepdim=True)
    v = x.var(dim=axis, keepdim=True, unbiased=False)
    return (x - m) / torch.sqrt(v + eps)
def _scatter_add(tgt, idx, src, axis=0):
    return tgt.clone().index_add_(axis, idx, src)
def _segment_sum(src, seg, n):
    out = torch.zeros((n,) + src.shape[1:], dtype=src.dtype)
    return out.index_add_(0, seg, src)
def _pad(x, pw):
    flat = tuple(v for pair in reversed(pw) for v in pair)
    return torch.nn.functional.pad(x, flat)

kernel_name = 'gated_mix__sliding_block_cached__mixer_channel_mlp__decode'

def setup_inputs():

    _w = (lambda a: (lambda t: t.to(torch.bfloat16) if t.is_floating_point() else t)(torch.as_tensor(a)))
    def _A_setup():
        B, Sq, D = 8, 1, 448
        Hq, Hkv, Sk, Dh = 16, 8, 4096, 256
        assert Hq % Hkv == 0, (Hq, Hkv)
        return {
            "x": _w((lambda *s: torch.randn(*s, dtype=torch.bfloat16) * 0.05)(B, Sq, D)),
            "k_cache": _w((lambda *s: torch.randn(*s, dtype=torch.bfloat16) * 6.4)(B, Hkv, Sk, Dh)),
            "v_cache": _w((lambda *s: torch.randn(*s, dtype=torch.bfloat16) * 0.4)(B, Hkv, Sk, Dh)),
            "wq": _w((lambda *s: torch.randn(*s, dtype=torch.bfloat16) * 6.4)(D, Hq * Dh) * (D ** -0.5)),
            "wo": _w((lambda *s: torch.randn(*s, dtype=torch.bfloat16) * 0.4)(Hq * Dh, D) * ((Hq * Dh) ** -0.5)),
        }
    _A_in = _A_setup()

    def _B_setup():
        B, S, D, F = 8, 1, 448, 1792
        return {
            "x": _w((lambda *s: torch.randn(*s, dtype=torch.bfloat16) * 0.05)(B, S, D)),
            "w1": _w((lambda *s: torch.randn(*s, dtype=torch.bfloat16) * 0.8)(D, F) * (D ** -0.5)),
            "b1": _w((lambda *s: torch.randn(*s, dtype=torch.bfloat16) * 0.8)(F)),
            "w2": _w((lambda *s: torch.randn(*s, dtype=torch.bfloat16) * 0.05)(F, D) * (F ** -0.5)),
            "b2": _w((lambda *s: torch.randn(*s, dtype=torch.bfloat16) * 0.05)(D)),
        }
    _B_in = _B_setup()

    return {
        "A_x": _A_in["x"],
        "A_k_cache": _A_in["k_cache"],
        "A_v_cache": _A_in["v_cache"],
        "A_wq": _A_in["wq"],
        "A_wo": _A_in["wo"],
        "B_x": _B_in["x"],
        "B_w1": _B_in["w1"],
        "B_b1": _B_in["b1"],
        "B_w2": _B_in["w2"],
        "B_b2": _B_in["b2"],
        "gate_w": _w((lambda *s: torch.randn(*s, dtype=torch.bfloat16) * 0.05)(448) * 16.0),
    }

def reference(A_x, A_k_cache, A_v_cache, A_wq, A_wo, B_x, B_w1, B_b1, B_w2, B_b2, gate_w):
    def _A_ref(x, k_cache, v_cache, wq, wo):
        B, Sq, D = x.shape
        Hq, Dh = 16, 256
        Hkv, Sk = k_cache.shape[1], k_cache.shape[2]
        W = min(4096, max(256, Sk // 4))
        rep = Hq // Hkv
        q = (lambda x, *d: x.permute(*d))((x @ wq).reshape(B, Sq, Hq, Dh), 0, 2, 1, 3)
        k = (lambda x, n, axis: torch.repeat_interleave(x, n, dim=axis))(k_cache[:, :, Sk - W:, :], rep, axis=1)
        v = (lambda x, n, axis: torch.repeat_interleave(x, n, dim=axis))(v_cache[:, :, Sk - W:, :], rep, axis=1)
        scores = torch.einsum("bhqd,bhkd->bhqk", q, k) * (Dh ** -0.5)
        p = _softmax(scores, axis=-1)
        o = torch.einsum("bhqk,bhkd->bhqd", p, v)
        return (lambda x, *d: x.permute(*d))(o, 0, 2, 1, 3).reshape(B, Sq, Hq * Dh) @ wo

    def _B_ref(x, w1, b1, w2, b2):
        y = _layernorm(x, axis=-1)
        h = _gelu(torch.einsum("bsd,df->bsf", y, w1) + b1)
        return torch.einsum("bsf,fd->bsd", h, w2) + b2

    x = A_x
    g = _sigmoid((x * gate_w).sum(-1, keepdims=True))
    a = _A_ref(x, A_k_cache, A_v_cache, A_wq, A_wo)
    b = _B_ref(x, B_w1, B_b1, B_w2, B_b2)
    return g * a + (1 - g) * b
```

```python
import re

TRANS = ("v_exp_f32", "v_log_f32", "v_rcp_f32", "v_rsq_f32", "v_sqrt_f32", "v_sin_f32", "v_cos_f32")

def regs_of(tok):
    tok = tok.strip()
    neg = tok.lstrip('-')
    if neg.startswith('abs('):
        neg = neg[4:-1]
    if neg.startswith('|'):
        neg = neg.strip('|')
    m = re.fullmatch(r'([vs])\[(\d+):(\d+)\]', neg)
    if m:
        return [(m.group(1), i) for i in range(int(m.group(2)), int(m.group(3)) + 1)]
    m = re.fullmatch(r'([vs])(\d+)', neg)
    if m:
        return [(m.group(1), int(m.group(2)))]
    if neg == 'vcc':
        return [('s', 'vcc')]
    if neg == 'm0':
        return [('s', 'm0')]
    if neg in ('exec', 'exec_lo', 'exec_hi'):
        return [('s', 'exec')]
    return []

class Inst:
    def __init__(self, text):
        self.text = text
        t = text.split(';')[0].strip()
        self.is_label = t.endswith(':')
        self.op = ''
        self.ops = []
        if self.is_label or not t or t.startswith('.'):
            self.kind = 'meta'
            return
        parts = t.split(None, 1)
        self.op = parts[0]
        rest = parts[1] if len(parts) > 1 else ''
        toks = [x.strip() for x in rest.split(',')] if rest else []
        self.ops = []
        self.mods = ''
        for i, x in enumerate(toks):
            if x.startswith('quad_perm') or re.match(r'^\d+\]', x) or (self.mods and 'quad_perm' in self.mods and not self.mods.count(']') ):
                self.mods += ',' + x
                continue
            sp = x.split(None, 1)
            if not sp:
                continue
            self.ops.append(sp[0])
            if len(sp) > 1:
                self.mods += ' ' + sp[1]
        op = self.op
        self.dpp = ('_dpp' in op) or ('quad_perm' in t) or ('row_' in t and 'row_mask' in t)
        if op.startswith('v_mfma'):
            self.kind = 'mfma'
        elif op.startswith('v_'):
            self.kind = 'valu'
        elif op.startswith('ds_'):
            self.kind = 'ds'
        elif op.startswith('buffer_') or op.startswith('global_'):
            self.kind = 'vmem'
        elif op.startswith('s_'):
            self.kind = 'salu'
        else:
            self.kind = 'meta'
        self.analyze()

    def analyze(self):
        op, o = self.op, self.ops
        self.wr = []
        self.rd = []
        self.srcC = []
        k = self.kind
        R = lambda i: regs_of(o[i]) if i < len(o) else []
        if k == 'mfma':
            self.wr = R(0); self.rdA = R(1); self.rdB = R(2); self.srcC = R(3)
            self.rd = self.rdA + self.rdB + self.srcC
        elif k == 'valu':
            base = op.replace('_e32', '').replace('_e64', '').replace('_dpp', '')
            self.base = base
            if base.startswith('v_cmp'):
                self.wr = R(0); self.rd = R(1) + R(2)
            elif base in ('v_readfirstlane_b32', 'v_readlane_b32'):
                self.wr = R(0); self.rd = R(1) + R(2)
            elif base in ('v_permlane32_swap_b32', 'v_permlane16_swap_b32'):
                self.wr = R(0) + R(1); self.rd = R(0) + R(1)
            elif base in ('v_add_co_u32', 'v_addc_co_u32', 'v_sub_co_u32'):
                self.wr = R(0) + R(1); self.rd = sum((R(i) for i in range(2, len(o))), [])
            else:
                self.wr = R(0); self.rd = sum((R(i) for i in range(1, len(o))), [])
                if base in ('v_fmac_f32', 'v_writelane_b32', 'v_dot2c_f32_bf16', 'v_pk_fmac_f16') or self.dpp:
                    self.rd += R(0)
                if base == 'v_cndmask_b32' and len(o) == 3:
                    self.rd += [('s', 'vcc')]
        elif k == 'ds':
            if op.startswith('ds_read') or op.startswith('ds_bpermute') or op.startswith('ds_swizzle') or op.startswith('ds_permute'):
                self.wr = R(0); self.rd = sum((R(i) for i in range(1, len(o))), [])
            else:
                self.rd = sum((R(i) for i in range(0, len(o))), [])
        elif k == 'vmem':
            lds = ' lds' in (' ' + self.mods + ' ')
            self.lds_dma = lds
            if 'store' in op:
                self.rd = sum((R(i) for i in range(0, len(o))), [])
                self.store_data = R(0) if op.startswith('buffer_') else R(1)
                self.wide = ('x3' in op or 'x4' in op)
            elif 'atomic' in op:
                self.rd = sum((R(i) for i in range(0, len(o))), [])
            elif lds:
                self.rd = sum((R(i) for i in range(0, len(o))), []) + [('s', 'm0')]
            else:
                self.wr = R(0); self.rd = sum((R(i) for i in range(1, len(o))), [])
        elif k == 'salu':
            if op.startswith('s_cmp') or op.startswith('s_cbranch') or op in ('s_branch', 's_barrier', 's_waitcnt', 's_nop', 's_sleep', 's_setprio', 's_endpgm', 's_bitcmp1_b32', 's_bitcmp0_b32'):
                self.rd = sum((R(i) for i in range(0, len(o))), [])
            else:
                self.wr = R(0); self.rd = sum((R(i) for i in range(1, len(o))), [])

    def slots(self):
        if self.kind == 'meta':
            return 0
        if self.op == 's_nop':
            return int(self.ops[0], 0) + 1
        return 1


def insert_nops(lines):
    insts = [Inst(x) for x in lines]
    out = []
    hist = []
    pos = 0
    nins = 0
    for ins in insts:
        if ins.kind == 'meta':
            out.append(ins.text)
            continue
        need = 0
        for (p, at) in reversed(hist):
            d = pos - at - 1
            if d >= 20:
                break
            req = hazard(p, ins)
            if req > d:
                need = max(need, req - d)
        while need > 0:
            n = min(need, 16)
            out.append(f"    s_nop {n-1}")
            pos += n
            need -= n
            nins += 1
        out.append(ins.text)
        hist.append((ins, pos))
        pos += ins.slots()
        if len(hist) > 40:
            hist.pop(0)
    return out, nins


def inter(a, b):
    return bool(set(a) & set(b))

def vonly(x):
    return [r for r in x if r[0] == 'v']
def sonly(x):
    return [r for r in x if r[0] == 's']

def hazard(p, c):
    req = 0
    if p.kind == 'valu':
        pw_v = vonly(p.wr); pw_s = sonly(p.wr)
        if c.kind == 'mfma' and inter(pw_v, c.rd):
            req = max(req, 2)
        if c.kind == 'valu':
            if c.dpp and c.ops and inter(pw_v, regs_of(c.ops[1]) if len(c.ops) > 1 else []):
                req = max(req, 2)
            if c.base in ('v_permlane32_swap_b32', 'v_permlane16_swap_b32') and inter(pw_v, c.rd):
                req = max(req, 2)
            if c.base in ('v_readfirstlane_b32', 'v_readlane_b32') and inter(pw_v, c.rd):
                req = max(req, 1)
            if p.base in TRANS and c.base not in TRANS and inter(pw_v, c.rd):
                req = max(req, 1)
            if p.base in TRANS and c.base in TRANS and inter(pw_v, c.rd):
                req = max(req, 1)
            if pw_s and inter(pw_s, c.rd):
                req = max(req, 4 if c.base in ('v_readlane_b32', 'v_writelane_b32') else 2)
        if c.kind == 'mfma' and p.base in TRANS and inter(pw_v, c.rd):
            req = max(req, 2)
        if c.kind in ('vmem',) and pw_s and inter(pw_s, c.rd):
            req = max(req, 5)
        if c.kind in ('ds', 'vmem') and p.base in TRANS and inter(pw_v, c.rd):
            req = max(req, 1)
        if c.kind == 'salu' and pw_s and inter(pw_s, c.rd):
            req = max(req, 1)
    if p.kind == 'mfma':
        D = p.wr
        if c.kind == 'mfma':
            if inter(D, c.rdA + c.rdB):
                req = max(req, 8)
            if inter(D, c.srcC):
                if set(D) != set(c.srcC):
                    req = max(req, 6)
            if inter(D, c.wr) and set(D) != set(c.srcC):
                req = max(req, 6)
        elif c.kind == 'valu':
            if inter(D, c.rd) or inter(D, c.wr):
                req = max(req, 8)
            if inter(p.srcC, c.wr):
                req = max(req, 3)
        elif c.kind in ('ds', 'vmem'):
            if inter(D, c.rd) or inter(D, c.wr):
                req = max(req, 8)
    if p.kind == 'vmem' and 'store' in p.op and getattr(p, 'wide', False):
        if c.kind == 'valu' and inter(p.store_data, c.wr):
            req = max(req, 2)
        elif c.kind in ('ds', 'vmem', 'mfma') and inter(p.store_data, c.wr):
            req = max(req, 1)
    if p.kind == 'ds' and p.op in ('ds_write_b128', 'ds_write_b96'):
        pass
    if p.kind == 'salu' and ('s', 'm0') in p.wr:
        if c.kind == 'vmem' and getattr(c, 'lds_dma', False):
            req = max(req, 1)
    if p.kind == 'salu' and ('s', 'exec') in p.wr:
        if c.kind == 'valu' and (c.dpp or c.base.startswith('v_permlane')):
            req = max(req, 1)
    return req


class Asm:
    def __init__(self):
        self.lines = []
        self.uid = 0
    def __call__(self, s):
        for x in s.split('\n'):
            x = x.strip()
            if not x:
                continue
            if x.endswith(':'):
                self.lines.append(x)
            else:
                self.lines.append('    ' + x)
    def label(self, base):
        self.uid += 1
        return f"L_{base}_{self.uid}"
    def c(self, s):
        self.lines.append(f"    ; {s}")
    def text(self):
        out, n = insert_nops(self.lines)
        return "\n".join(out) + "\n"
```

```python
import sys, argparse
from emit import Asm

NAME = "gated_mix__sliding_block_cached__mixer_channel_mlp__decode"
KNAME = NAME + "_kernel"

WS_QP = 0x100000
WS_HP = 0x180000
WS_OP = 0x200000
WS_ST = 0x300000
WS_BP = 0x400000
WS_MP = 0x500000
WS_XI = 0x5c0000
WS_DBG = 0x600000
WS_SIZE = 0x800000

L_TILE = 0
XP = 928
L_X = 57344
L_Y = 64768
L_WO = 72192
L_Q = 88576
L_P = 89600
L_OP = 90624
L_ST = 107008
L_A = 107136
L_FIN = 109312
L_CNT = 109440
LDS_BYTES = 109568
C_A0, C_A1, C_WO, C_Q = 0, 4, 8, 12

SPIN_LIMIT = 20000

sX, sK, sV, sWQ, sWO, sW1, sB1, sW2, sB2, sGW, sOUT, sDBG, sWS = 4, 6, 8, 10, 12, 16, 18, 20, 22, 24, 26, 28, 30
sT, sT8, sT88 = 32, 33, 34
sKVH, sJ, sB, sS, sJJ = 35, 36, 37, 38, 39
SRD_WS = "s[48:51]"
sFF00 = 72
sPSEL = 73
sW = 74
STAMP0 = 84
DPP = "row_mask:0xf bank_mask:0xf"

def srd(a, base, ptr, nbytes):
    a(f"s_mov_b32 s{base}, s{ptr}")
    a(f"s_and_b32 s{base+1}, s{ptr+1}, 0xffff")
    a(f"s_mov_b32 s{base+2}, {nbytes}")
    a(f"s_mov_b32 s{base+3}, 0x20000")

def pack8(vals):
    v = 0
    for i, x in enumerate(vals):
        assert 0 <= x < 256
        v |= x << (8 * i)
    return v & 0xffffffff, v >> 32

class Gen:
    def __init__(self, opt):
        self.o = opt
        self.a = Asm()

    def stamp(self, idx):
        if self.o.stamps:
            self.a("s_memrealtime s[100:101]")
            self.a("s_waitcnt lgkmcnt(0)")
            self.a(f"s_mov_b32 s{STAMP0+idx}, s100")

    def dump_stamps(self):
        if not self.o.stamps:
            return
        a = self.a
        a("s_mov_b64 exec, -1")
        a("s_lshl_b32 s80, s2, 4\ns_add_u32 s80, s80, s3\ns_lshl_b32 s80, s80, 6")
        a(f"s_add_u32 s80, s80, {WS_DBG}")
        a("v_mov_b32 v1, 0")
        for i in range(16):
            a(f"v_writelane_b32 v1, s{STAMP0+i}, {i}")
        a("v_mbcnt_lo_u32_b32 v2, -1, 0\nv_mbcnt_hi_u32_b32 v2, -1, v2\nv_lshlrev_b32 v2, 2, v2")
        a("s_mov_b32 exec_lo, 0xffff\ns_mov_b32 exec_hi, 0")
        a(f"buffer_store_dword v1, v2, {SRD_WS}, s80 offen")
        a("s_waitcnt vmcnt(0)")

    def setexec(self, lo, hi):
        self.a(f"s_mov_b32 exec_lo, {hex(lo)}\ns_mov_b32 exec_hi, {hex(hi)}")

    def lds_signal(self, cnt_off, v0, v1):
        a = self.a
        a(f"v_mov_b32 v{v0}, {L_CNT + cnt_off}")
        a(f"v_mov_b32 v{v1}, 1")
        self.setexec(1, 0)
        a(f"ds_add_u32 v{v0}, v{v1}")
        a("s_mov_b64 exec, -1")

    def lds_wait(self, cnt_off, target, v0, v1, sleep=1):
        a = self.a
        L = a.label("lw"); Ld = a.label("lwd")
        a(f"v_mov_b32 v{v0}, {L_CNT + cnt_off}")
        a(f"s_mov_b32 s81, 0")
        a(f"{L}:")
        a(f"ds_read_b32 v{v1}, v{v0}")
        a("s_waitcnt lgkmcnt(0)")
        a(f"v_readfirstlane_b32 s80, v{v1}")
        a(f"s_cmp_ge_u32 s80, {target}")
        a(f"s_cbranch_scc1 {Ld}")
        a(f"s_add_u32 s81, s81, 1")
        a(f"s_cmp_ge_u32 s81, {SPIN_LIMIT*8}")
        a(f"s_cbranch_scc1 {Ld}")
        a(f"s_sleep {sleep}")
        a(f"s_branch {L}")
        a(f"{Ld}:")

    def check(self, r, width, t8, vbad, vt, vu, first):
        a = self.a
        if width == 2:
            if first:
                a(f"v_xor_b32 v{vbad}, s{sT}, v{r+1}")
            else:
                a(f"v_xor_b32 v{vt}, s{sT}, v{r+1}\nv_or_b32 v{vbad}, v{vbad}, v{vt}")
            assert not t8
            return
        a(f"v_xor_b32 v{vt}, s{sT}, v{r+1}")
        a(f"v_xor_b32 v{vu}, s{sT}, v{r+3}")
        if first:
            a(f"v_or_b32 v{vbad}, v{vt}, v{vu}")
        else:
            a(f"v_or3_b32 v{vbad}, v{vbad}, v{vt}, v{vu}")
        if t8:
            a(f"v_perm_b32 v{vt}, v{r}, v{r+2}, s{sPSEL}")
            a(f"v_xor_b32 v{vt}, s{sT88}, v{vt}")
            a(f"v_or_b32 v{vbad}, v{vbad}, v{vt}")

    def poll(self, loads, regs, vbad, vt, vu, sleep=2, pre=None, name="", width=4, t8=True):
        a = self.a
        if name and ('no_' + name) in self.o.skip:
            return
        if name and ('once_' + name) in self.o.skip:
            loads()
            a("s_waitcnt vmcnt(0)")
            return
        if name and ('nopre_' + name) in self.o.skip:
            pre = None
        if pre is not None:
            emit, pregs, (lo, hi), psleep = pre
            P = a.label("pre"); Pd = a.label("pred")
            a("s_mov_b32 s81, 0")
            a(f"{P}:")
            self.setexec(lo, hi)
            emit()
            a("s_waitcnt vmcnt(0)")
            for i, r in enumerate(pregs):
                if i == 0:
                    a(f"v_xor_b32 v{vbad}, s{sT}, v{r+1}")
                else:
                    a(f"v_xor_b32 v{vt}, s{sT}, v{r+1}\nv_or_b32 v{vbad}, v{vbad}, v{vt}")
            a(f"v_cmp_ne_u32 vcc, 0, v{vbad}")
            a("s_mov_b64 exec, -1")
            a(f"s_cbranch_vccz {Pd}")
            a("s_add_u32 s81, s81, 1")
            a(f"s_cmp_ge_u32 s81, {SPIN_LIMIT}")
            a(f"s_cbranch_scc1 {Pd}")
            a(f"s_sleep {psleep}")
            a(f"s_branch {P}")
            a(f"{Pd}:")
        L = a.label("poll"); Ld = a.label("polld")
        a("s_mov_b32 s81, 0")
        a(f"{L}:")
        loads()
        a("s_waitcnt vmcnt(0)")
        for i, r in enumerate(regs):
            self.check(r, width, t8, vbad, vt, vu, i == 0)
        a(f"v_cmp_ne_u32 vcc, 0, v{vbad}")
        a(f"s_cbranch_vccz {Ld}")
        a("s_add_u32 s81, s81, 1")
        a(f"s_cmp_ge_u32 s81, {SPIN_LIMIT}")
        a(f"s_cbranch_scc1 {Ld}")
        a(f"s_sleep {sleep}")
        a(f"s_branch {L}")
        a(f"{Ld}:")
        if t8:
            for r in regs:
                a(f"v_and_b32 v{r}, s{sFF00}, v{r}")
                a(f"v_and_b32 v{r+2}, s{sFF00}, v{r+2}")

    def spoll(self, off_expr, loads, tags, sleep, name="", t8regs=()):
        a = self.a
        if name and (('no_' + name) in self.o.skip or ('once_' + name) in self.o.skip or ('nospoll_' + name) in self.o.skip):
            return
        P = a.label("sp"); Pd = a.label("spd")
        a(f"s_add_u32 s78, s{sWS}, s{off_expr}\ns_addc_u32 s79, s{sWS+1}, 0")
        a("s_mov_b32 s81, 0")
        a(f"{P}:")
        for ndw, dst, imm in loads:
            rng = f"s[{dst}:{dst+ndw-1}]" if ndw > 1 else f"s{dst}"
            a(f"s_load_dword{'x'+str(ndw) if ndw > 1 else ''} {rng}, s[78:79], {imm} glc")
        a("s_waitcnt lgkmcnt(0)")
        for i, t in enumerate(tags):
            if i == 0:
                a(f"s_xor_b32 s80, s{t}, s{sT}")
            else:
                a(f"s_xor_b32 s82, s{t}, s{sT}\ns_or_b32 s80, s80, s82")
        if t8regs:
            a(f"s_xor_b32 s83, s{t8regs[0]}, s{sT8}")
            for t in t8regs[1:]:
                a(f"s_xor_b32 s82, s{t}, s{sT8}\ns_or_b32 s83, s83, s82")
            a("s_and_b32 s83, s83, 0xff\ns_or_b32 s80, s80, s83")
        a(f"s_cmp_eq_u32 s80, 0\ns_cbranch_scc1 {Pd}")
        a("s_add_u32 s81, s81, 1")
        a(f"s_cmp_ge_u32 s81, {SPIN_LIMIT}\ns_cbranch_scc1 {Pd}")
        a(f"s_sleep {sleep}\ns_branch {P}")
        a(f"{Pd}:")

    def bf16_round(self, dst, src):
        a = self.a
        a(f"v_cvt_pk_bf16_f32 v{dst}, v{src}, v{src}")
        a(f"v_and_b32 v{dst}, 0xffff0000, v{dst}")

    def row16_reduce(self, op, v):
        for r in (8, 4, 2, 1):
            self.a(f"{op}_dpp v{v}, v{v}, v{v} row_ror:{r} {DPP}")

    def swap_reduce(self, op, v, t, which):
        a = self.a
        a(f"v_mov_b32 v{t}, v{v}")
        a(f"v_permlane{which}_swap_b32 v{v}, v{t}")
        a(f"{op} v{v}, v{v}, v{t}")

    def prologue(self):
        a = self.a
        a("s_cmp_ge_u32 s2, 256")
        a("s_cbranch_scc1 L_end")
        a("s_load_dwordx16 s[4:19], s[0:1], 0")
        a("s_load_dwordx8 s[20:27], s[0:1], 64")
        a("s_load_dwordx4 s[28:31], s[0:1], 96")
        if self.o.stamps:
            for i in range(16):
                a(f"s_mov_b32 s{STAMP0+i}, 0")
            a("s_memrealtime s[100:101]")
        a("v_lshrrev_b32 v1, 6, v0")
        a("v_and_b32 v0, 63, v0")
        a("v_readfirstlane_b32 s3, v1")
        a(f"s_and_b32 s{sKVH}, s2, 7")
        a(f"s_lshr_b32 s{sJ}, s2, 3")
        a(f"s_and_b32 s{sB}, s{sJ}, 7")
        a(f"s_lshr_b32 s{sS}, s{sJ}, 3")
        a(f"s_sub_u32 s40, s{sJ}, 4")
        a(f"s_cmp_lt_u32 s{sJ}, 4")
        a(f"s_cselect_b32 s{sJJ}, 255, s40")
        a(f"s_mov_b32 s{sFF00}, 0xffffff00")
        a(f"s_mov_b32 s{sPSEL}, 0x0c0c0400")
        a("s_cmp_ge_u32 s3, 8")
        a("s_cbranch_scc1 L_helper")

    def after_karg(self):
        a = self.a
        a("s_waitcnt lgkmcnt(0)")
        if self.o.stamps:
            a(f"s_mov_b32 s{STAMP0}, s100")
        a(f"s_load_dword s{sT}, s[{sWS}:{sWS+1}], 0")

    def tag_setup(self):
        a = self.a
        a("s_waitcnt lgkmcnt(0)")
        a(f"s_add_u32 s{sT}, s{sT}, 1")
        a(f"s_mul_i32 s{sT8}, s{sT}, 0x9E3779B1")
        a(f"s_lshr_b32 s{sT8}, s{sT8}, 24")
        a(f"s_lshl_b32 s{sT88}, s{sT8}, 8")
        a(f"s_or_b32 s{sT88}, s{sT88}, s{sT8}")

    def streaming(self):
        a = self.a; o = self.o
        KD, VD = 8, 72
        QA = 136
        D0 = 144
        XS = 148
        SEL = 156
        vKo, vVo = 1, 2
        a.c("================= streaming wave =================")
        a(f"s_mov_b32 s{sW}, s3")
        a(f"s_lshl_b32 s75, s{sB}, 3\ns_add_u32 s75, s75, s{sKVH}\ns_lshl_b32 s75, s75, 21")
        a(f"s_lshl_b32 s76, s{sS}, 17\ns_add_u32 s75, s75, s76")
        a(f"s_add_u32 s75, s75, 0x180000")
        mb, mk, mw, ms = o.rot
        terms = [(sB, mb), (sKVH, mk), (sW, mw), (sS, ms)]
        a("s_mov_b32 s76, 0")
        for reg, m in terms:
            if m == 1:
                a(f"s_add_u32 s76, s76, s{reg}")
            elif m:
                a(f"s_mul_i32 s77, s{reg}, {m}\ns_add_u32 s76, s76, s77")
        if o.kmap == 'contig':
            a(f"s_lshl_b32 s77, s{sW}, 14\ns_add_u32 s75, s75, s77")
            a("s_and_b32 s76, s76, 7\ns_lshl_b32 s76, s76, 11")
            for t in range(8):
                if t:
                    a(f"s_add_u32 s76, s76, 0x800\ns_and_b32 s76, s76, 0x3fff")
                a(f"s_add_u32 s{40+t}, s76, s75")
        elif o.kmap == 'inter':
            a(f"s_lshl_b32 s77, s{sW}, 11\ns_add_u32 s75, s75, s77")
            a("s_and_b32 s76, s76, 7\ns_lshl_b32 s76, s76, 14")
            for t in range(8):
                if t:
                    a(f"s_add_u32 s76, s76, 0x4000\ns_and_b32 s76, s76, 0x1ffff")
                a(f"s_add_u32 s{40+t}, s76, s75")
        elif o.kmap == 'rot64':
            a(f"s_lshl_b32 s77, s{sW}, 3\ns_add_u32 s76, s76, s77\ns_and_b32 s76, s76, 63\ns_lshl_b32 s76, s76, 11")
            for t in range(8):
                if t:
                    a(f"s_add_u32 s76, s76, 0x800\ns_and_b32 s76, s76, 0x1ffff")
                a(f"s_add_u32 s{40+t}, s76, s75")
        a(f"v_lshrrev_b32 v3, 4, v0\nv_lshlrev_b32 v{vKo}, 6, v3")
        a(f"v_bfe_u32 v4, v0, 2, 2\nv_lshl_add_u32 v{vKo}, v4, 9, v{vKo}")
        a(f"v_and_b32 v4, 3, v0\nv_lshl_add_u32 v{vKo}, v4, 4, v{vKo}")
        a(f"v_and_b32 v4, 15, v0\nv_lshlrev_b32 v4, 4, v4\nv_lshl_add_u32 v{vVo}, v3, 9, v4")
        self.after_karg()
        srd(a, 52, sK, 0x8000000)
        def ld(m, isv):
            t, c = m // 2, m % 2
            r = (VD if isv else KD) + 4 * m
            a(f"buffer_load_dwordx4 v[{r}:{r+3}], v{vVo if isv else vKo}, {'s[56:59]' if isv else 's[52:55]'}, s{40+t} offen offset:{c*256} nt")
        npre = o.npre
        if o.sprio == 'kfirst':
            a("s_setprio 1")
        for m in range(npre):
            ld(m, False)
        a("s_barrier")
        srd(a, 56, sV, 0x8000000)
        srd(a, 48, sWS, WS_SIZE)
        if o.sprio == 'young':
            a(f"s_cmp_ge_u32 s{sW}, 4\ns_cbranch_scc0 L_noprio\ns_setprio 1\nL_noprio:")
        for m in range(npre, 16):
            ld(m, False)
        if o.sprio == 'kfirst':
            a("s_setprio 0")
        for m in range(16):
            ld(m, True)
        self.stamp(1)
        self.tag_setup()
        for base, val in ((64, 0x22222222), (66, 0x44444444), (68, 0x88888888)):
            a(f"s_mov_b32 s{base}, {hex(val)}\ns_mov_b32 s{base+1}, {hex(val)}")
        a("s_mov_b32 s70, 0\ns_mov_b32 s71, -1")
        vQ, vPw, vPr, vOw = 3, 4, 5, 6
        a(f"v_lshrrev_b32 v7, 4, v0\nv_lshlrev_b32 v{vQ}, 6, v7")
        a(f"v_bfe_u32 v164, v0, 2, 1\nv_lshl_add_u32 v{vQ}, v164, 9, v{vQ}")
        a(f"v_and_b32 v164, 3, v0\nv_lshl_add_u32 v{vQ}, v164, 4, v{vQ}")
        a(f"v_add_u32 v{vQ}, {L_Q}, v{vQ}")
        a(f"s_lshl_b32 s77, s{sW}, 7\ns_add_u32 s77, s77, {L_P}")
        a(f"v_bfe_u32 v164, v0, 2, 3\nv_lshlrev_b32 v{vPw}, 4, v164")
        a(f"v_lshrrev_b32 v164, 5, v0\nv_lshl_add_u32 v{vPw}, v164, 3, v{vPw}")
        a(f"v_and_b32 v164, 3, v0\nv_lshl_add_u32 v{vPw}, v164, 1, v{vPw}")
        a(f"v_add_u32 v{vPw}, s77, v{vPw}")
        a(f"v_bfe_u32 v164, v0, 3, 1\nv_lshlrev_b32 v{vPr}, 6, v164")
        a(f"v_lshl_add_u32 v{vPr}, v7, 4, v{vPr}\nv_add_u32 v{vPr}, s77, v{vPr}")
        a(f"s_lshl_b32 s77, s{sW}, 11\ns_add_u32 s77, s77, {L_OP}")
        a(f"v_lshrrev_b32 v164, 5, v0\nv_lshlrev_b32 v{vOw}, 10, v164")
        a(f"v_and_b32 v164, 15, v0\nv_lshl_add_u32 v{vOw}, v164, 5, v{vOw}")
        a(f"v_bfe_u32 v164, v0, 4, 1\nv_lshl_add_u32 v{vOw}, v164, 4, v{vOw}")
        a(f"v_add_u32 v{vOw}, s77, v{vOw}")
        a("v_and_b32 v164, 1, v0\nv_cmp_eq_u32 vcc, 1, v164")
        a("v_mov_b32 v165, 0x0c0c0100\nv_mov_b32 v166, 0x01000c0c\nv_cndmask_b32 v165, v165, v166, vcc")
        a("v_mov_b32 v166, 0x0c0c0302\nv_mov_b32 v167, 0x03020c0c\nv_cndmask_b32 v166, v166, v167, vcc")
        a("v_bfe_u32 v164, v0, 1, 2\nv_mov_b32 v167, 0x0c0c0c0c")
        for j in range(4):
            a(f"v_cmp_eq_u32 vcc, {j}, v164")
            a(f"v_cndmask_b32 v{SEL+j}, v167, v165, vcc")
            a(f"v_cndmask_b32 v{SEL+4+j}, v167, v166, vcc")
        if 'qwait' not in o.skip:
            self.lds_wait(C_Q, 4, 164, 165, sleep=2)
        self.stamp(2)
        a(f"ds_read_b128 v[{QA}:{QA+3}], v{vQ}")
        a(f"ds_read_b128 v[{QA+4}:{QA+7}], v{vQ} offset:256")
        a("s_waitcnt lgkmcnt(0)")
        Dreg = [D0] + [KD + 8 * (t - 1) for t in range(1, 8)]
        for t in range(8):
            a(f"s_waitcnt vmcnt({30 - 2*t})")
            k0, k1 = KD + 8 * t, KD + 8 * t + 4
            d = Dreg[t]
            a(f"v_mfma_f32_16x16x32_bf16 v[{d}:{d+3}], v[{QA}:{QA+3}], v[{k0}:{k0+3}], 0")
            a(f"v_mfma_f32_16x16x32_bf16 v[{d}:{d+3}], v[{QA+4}:{QA+7}], v[{k1}:{k1+3}], v[{d}:{d+3}]")
        self.stamp(3)
        for t in range(8):
            d = Dreg[t]; x = XS + t
            a(f"v_cndmask_b32 v{x}, v{d}, v{d+1}, s[64:65]")
            a(f"v_cndmask_b32 v{x}, v{x}, v{d+2}, s[66:67]")
            a(f"v_cndmask_b32 v{x}, v{x}, v{d+3}, s[68:69]")
        for i in range(4):
            a(f"v_cndmask_b32 v{XS+i}, v{XS+i}, v{XS+4+i}, s[70:71]")
        for i in range(4):
            a(f"v_add_f32_dpp v{XS+i}, v{XS+i}, v{XS+i} quad_perm:[1,0,3,2] {DPP}")
        for i in range(4):
            a(f"v_add_f32_dpp v{XS+i}, v{XS+i}, v{XS+i} quad_perm:[2,3,0,1] {DPP}")
        Z, M_, P_, T_ = XS + 4, XS + 6, XS + 7, XS + 5
        a(f"v_cndmask_b32 v{Z}, v{XS}, v{XS+1}, s[64:65]")
        a(f"v_cndmask_b32 v{Z}, v{Z}, v{XS+2}, s[66:67]")
        a(f"v_cndmask_b32 v{Z}, v{Z}, v{XS+3}, s[68:69]")
        self.bf16_round(Z, Z)
        a(f"v_mul_f32 v{Z}, 0x3db8aa3b, v{Z}")
        a(f"v_mov_b32 v{M_}, v{Z}")
        self.row16_reduce("v_max_f32", M_)
        self.swap_reduce("v_max_f32", M_, T_, 32)
        a(f"v_sub_f32 v{P_}, v{Z}, v{M_}")
        a(f"v_exp_f32 v{P_}, v{P_}")
        a(f"v_cvt_pk_bf16_f32 v{T_}, v{P_}, v{P_}")
        a(f"ds_write_b16 v{vPw}, v{T_}")
        P8 = KD
        a(f"ds_read_b128 v[{P8}:{P8+3}], v{vPr}")
        self.row16_reduce("v_add_f32", P_)
        self.swap_reduce("v_add_f32", P_, XS, 32)
        a(f"s_lshl_b32 s77, s{sW}, 3\ns_add_u32 s77, s77, {L_ST}")
        a(f"v_bfe_u32 v164, v0, 4, 1\nv_lshlrev_b32 v164, 6, v164\nv_add_u32 v164, s77, v164")
        self.setexec(0x10001, 0)
        a(f"ds_write_b64 v164, v[{M_}:{M_+1}]")
        a("s_mov_b64 exec, -1")
        a("s_waitcnt lgkmcnt(1)")
        ACC = QA
        AR = [KD + 8, KD + 12]
        for u in range(8):
            ar = AR[u & 1]
            for j in range(4):
                a(f"v_perm_b32 v{ar+j}, v{P8 + u//2}, v{P8 + u//2}, v{SEL + 4*(u&1) + j}")
            a(f"s_waitcnt vmcnt({14 - 2*u})")
            for c in range(2):
                vb = VD + 8 * u + 4 * c
                acc = ACC + 4 * c
                cin = "0" if u == 0 else f"v[{acc}:{acc+3}]"
                a(f"v_mfma_f32_16x16x32_bf16 v[{acc}:{acc+3}], v[{ar}:{ar+3}], v[{vb}:{vb+3}], {cin}")
        self.stamp(4)
        a(f"s_lshl_b32 s77, s{sW}, 8\ns_add_u32 s77, s77, {L_OP}")
        a(f"v_lshlrev_b32 v3, 2, v0\nv_add_u32 v3, s77, v3")
        a(f"s_lshr_b32 s77, s{sW}, 2\ns_lshl_b32 s77, s77, 6\ns_add_u32 s77, s77, {L_ST}")
        a(f"v_mov_b32 v4, s77")
        a(f"v_mov_b32 v33, s{sT8}\nv_mov_b32 v35, s{sT}\nv_lshlrev_b32 v32, 3, v0")
        a(f"s_lshl_b32 s76, s{sKVH}, 3\ns_add_u32 s76, s76, s{sB}")
        a(f"s_lshl_b32 s78, s76, 2\ns_add_u32 s78, s78, s{sS}\ns_lshl_b32 s78, s78, 12")
        a(f"s_lshl_b32 s79, s{sW}, 9\ns_add_u32 s78, s78, s79\ns_add_u32 s78, s78, {WS_OP}")
        a(f"ds_write_b128 v{vOw}, v[{ACC}:{ACC+3}]")
        a(f"ds_write_b128 v{vOw}, v[{ACC+4}:{ACC+7}] offset:512")
        a("s_waitcnt lgkmcnt(0)")
        a("s_barrier")
        self.stamp(5)
        if 'tail' in o.skip:
            a("s_barrier\ns_branch L_fin")
        OW, SW = 8, 16
        for i in range(4):
            a(f"ds_read_b128 v[{SW+4*i}:{SW+4*i+3}], v4 offset:{16*i}")
        for i in range(4):
            a(f"ds_read2st64_b32 v[{OW+2*i}:{OW+2*i+1}], v3 offset0:{16*i} offset1:{16*i+8}")
        a("s_waitcnt lgkmcnt(4)")
        ms_ = [SW + 2 * w for w in range(8)]
        a(f"v_max3_f32 v5, v{ms_[0]}, v{ms_[1]}, v{ms_[2]}")
        a(f"v_max3_f32 v6, v{ms_[3]}, v{ms_[4]}, v{ms_[5]}")
        a(f"v_max3_f32 v5, v5, v{ms_[6]}, v{ms_[7]}")
        a(f"v_max_f32 v5, v5, v6")
        a(f"v_and_b32 v5, s{sFF00}, v5")
        for w in range(8):
            a(f"v_sub_f32 v{ms_[w]}, v{ms_[w]}, v5")
        for w in range(8):
            a(f"v_exp_f32 v{ms_[w]}, v{ms_[w]}")
        a("s_waitcnt lgkmcnt(0)")
        a(f"v_mul_f32 v6, v{ms_[0]}, v{OW}\nv_mul_f32 v7, v{ms_[1]}, v{OW+1}")
        for w in range(2, 8, 2):
            a(f"v_fmac_f32 v6, v{ms_[w]}, v{OW+w}\nv_fmac_f32 v7, v{ms_[w+1]}, v{OW+w+1}")
        a("v_add_f32 v6, v6, v7")
        a(f"v_and_or_b32 v34, v6, s{sFF00}, v33")
        a(f"buffer_store_dwordx2 v[34:35], v32, {SRD_WS}, s78 offen @POL@")
        Ls = a.label("nost")
        a(f"s_and_b32 s78, s{sW}, 3\ns_cmp_lg_u32 s78, 0\ns_cbranch_scc1 {Ls}")
        a(f"v_mul_f32 v7, v{ms_[0]}, v{ms_[0]+1}")
        for w in range(1, 8):
            a(f"v_fmac_f32 v7, v{ms_[w]}, v{ms_[w]+1}")
        a(f"v_or_b32 v36, v5, v33\nv_mov_b32 v37, s{sT}")
        a(f"v_and_or_b32 v38, v7, s{sFF00}, v33\nv_mov_b32 v39, s{sT}")
        a(f"s_lshl_b32 s77, s76, 1\ns_lshr_b32 s78, s{sW}, 2\ns_add_u32 s77, s77, s78\ns_lshl_b32 s77, s77, 2")
        a(f"s_add_u32 s77, s77, s{sS}\ns_lshl_b32 s77, s77, 4\ns_add_u32 s77, s77, {WS_ST}")
        a("v_mov_b32 v32, 0")
        self.setexec(1, 0)
        a(f"buffer_store_dwordx4 v[36:39], v32, {SRD_WS}, s77 offen @POL@")
        a("s_mov_b64 exec, -1")
        a(f"{Ls}:")
        self.stamp(6)
        Lng = a.label("nogather")
        a(f"s_cmp_eq_u32 s{sJJ}, 255\ns_cbranch_scc1 {Lng}")
        a(f"s_lshl_b32 s76, s{sKVH}, 3\ns_add_u32 s76, s76, s{sW}")
        a(f"s_and_b32 s78, s{sJJ}, 3")
        a(f"s_lshl_b32 s77, s76, 14\ns_lshl_b32 s79, s78, 10\ns_add_u32 s77, s77, s79\ns_add_u32 s40, s77, {WS_OP}")
        for s_ in range(1, 4):
            a(f"s_add_u32 s{40+s_}, s40, {4096*s_}")
        a(f"s_lshl_b32 s77, s76, 1\ns_lshr_b32 s79, s78, 1\ns_add_u32 s77, s77, s79\ns_lshl_b32 s77, s77, 6\ns_add_u32 s44, s77, {WS_ST}")
        a("v_lshlrev_b32 v3, 4, v0")
        G = 40
        self.spoll(44, [(16, 52, 0)], [53, 55, 57, 59, 61, 63, 65, 67], 1, name='a', t8regs=[52 + 2 * i for i in range(8)])
        def loads():
            for s_ in range(4):
                a(f"buffer_load_dwordx4 v[{G+4*s_}:{G+4*s_+3}], v3, {SRD_WS}, s{40+s_} offen @POL@")
        loads()
        for i in range(8):
            a(f"s_and_b32 s{52+2*i}, s{52+2*i}, s{sFF00}")
        a("v_mov_b32 v8, s52\nv_mov_b32 v9, s56\nv_mov_b32 v10, s60\nv_mov_b32 v11, s64")
        a("v_max3_f32 v5, v8, v9, v10\nv_max_f32 v5, v5, v11")
        for i in range(4):
            a(f"v_sub_f32 v{8+i}, v{8+i}, v5")
        for i in range(4):
            a(f"v_exp_f32 v{8+i}, v{8+i}")
        a("v_mul_f32 v6, s54, v8\nv_fmac_f32 v6, s58, v9\nv_fmac_f32 v6, s62, v10\nv_fmac_f32 v6, s66, v11")
        a("v_rcp_f32 v6, v6")
        for i in range(4):
            a(f"v_mul_f32 v{8+i}, v{8+i}, v6")
        Lr = a.label("ga"); Ld = a.label("gad")
        a("s_mov_b32 s81, 0")
        a(f"{Lr}:")
        a("s_waitcnt vmcnt(0)")
        for i in range(4):
            self.check(G + 4 * i, 4, True, 5, 6, 7, i == 0)
        a(f"v_cmp_ne_u32 vcc, 0, v5\ns_cbranch_vccz {Ld}")
        a(f"s_add_u32 s81, s81, 1\ns_cmp_ge_u32 s81, {SPIN_LIMIT}\ns_cbranch_scc1 {Ld}")
        loads()
        a(f"s_branch {Lr}\n{Ld}:")
        self.stamp(7)
        for s_ in range(4):
            a(f"v_and_b32 v{G+4*s_}, s{sFF00}, v{G+4*s_}\nv_and_b32 v{G+4*s_+2}, s{sFF00}, v{G+4*s_+2}")
        a(f"v_mul_f32 v12, v8, v{G}\nv_mul_f32 v13, v8, v{G+2}")
        for s_ in range(1, 4):
            a(f"v_fmac_f32 v12, v{8+s_}, v{G+4*s_}\nv_fmac_f32 v13, v{8+s_}, v{G+4*s_+2}")
        a("v_cvt_pk_bf16_f32 v8, v12, v13")
        a(f"s_mul_i32 s77, s{sW}, 272\ns_add_u32 s77, s77, {L_A}")
        a("v_lshlrev_b32 v3, 2, v0\nv_add_u32 v3, s77, v3")
        a("ds_write_b32 v3, v8")
        a("s_waitcnt lgkmcnt(0)")
        a(f"{Lng}:")
        a("s_barrier")
        self.stamp(8)
        a(f"s_cmp_lg_u32 s{sW}, 0\ns_cbranch_scc1 L_fin")
        a(f"s_cmp_eq_u32 s{sJJ}, 255\ns_cbranch_scc1 L_fin")
        a(f"s_mul_i32 s76, s{sKVH}, 28\ns_add_u32 s76, s76, s{sJJ}")
        a(f"s_lshl_b32 s77, s76, 12\ns_add_u32 s40, s77, {WS_BP}")
        for i in range(1, 4):
            a(f"s_add_u32 s{40+i}, s40, {1024*i}")
        a(f"s_lshl_b32 s77, s76, 10\ns_add_u32 s44, s77, {WS_MP}")
        a("v_lshlrev_b32 v3, 4, v0")
        a(f"v_and_b32 v4, 7, v0\nv_lshlrev_b32 v4, 3, v4\nv_add_u32 v4, {L_FIN}, v4")
        a(f"v_mov_b32 v9, {L_FIN+64}")
        a("ds_read_b64 v[10:11], v4")
        a("ds_read_b64 v[14:15], v9")
        srd(a, 60, sOUT, 8 * 448 * 2)
        a(f"s_mul_i32 s46, s{sKVH}, 896\ns_lshl_b32 s78, s{sJJ}, 5\ns_add_u32 s46, s46, s78")
        def loads2():
            a(f"buffer_load_dwordx4 v[{G+16}:{G+19}], v3, {SRD_WS}, s44 offen @POL@")
            for i in range(4):
                a(f"buffer_load_dwordx4 v[{G+4*i}:{G+4*i+3}], v3, {SRD_WS}, s{40+i} offen @POL@")
        self.poll(loads2, [G+16, G, G+4, G+8, G+12], 5, 6, 7, sleep=1, name='b')
        self.stamp(9)
        for e in (0, 2):
            a(f"v_add_f32 v{G+e}, v{G+e}, v{G+4+e}\nv_add_f32 v{G+8+e}, v{G+8+e}, v{G+12+e}")
        for e in (0, 2):
            a(f"v_add_f32 v{G+e}, v{G+e}, v{G+8+e}")
        vals = [G, G + 2, G + 16, G + 18]
        for e in vals:
            a(f"v_add_f32_dpp v{e}, v{e}, v{e} row_ror:8 {DPP}")
        tmp = [20, 21, 22, 23]
        for which in (16, 32):
            for e, t in zip(vals, tmp):
                a(f"v_mov_b32 v{t}, v{e}")
            for e, t in zip(vals, tmp):
                a(f"v_permlane{which}_swap_b32 v{e}, v{t}")
            for e, t in zip(vals, tmp):
                a(f"v_add_f32 v{e}, v{e}, v{t}")
        a("s_waitcnt lgkmcnt(0)")
        a(f"v_cvt_pk_bf16_f32 v20, v{G}, v{G+2}\nv_cvt_pk_bf16_f32 v21, v{G+16}, v{G+18}")
        a("v_lshlrev_b32 v22, 16, v20\nv_and_b32 v23, 0xffff0000, v20")
        a("v_lshlrev_b32 v24, 16, v21\nv_and_b32 v25, 0xffff0000, v21")
        a("v_add_f32 v24, v24, v10\nv_add_f32 v25, v25, v11")
        a("v_mul_f32 v22, v22, v14\nv_mul_f32 v23, v23, v14")
        a("v_cvt_pk_bf16_f32 v21, v24, v25\nv_cvt_pk_bf16_f32 v20, v22, v23")
        a("v_lshlrev_b32 v24, 16, v21\nv_and_b32 v25, 0xffff0000, v21")
        a("v_lshlrev_b32 v22, 16, v20\nv_and_b32 v23, 0xffff0000, v20")
        a("v_mul_f32 v24, v24, v15\nv_mul_f32 v25, v25, v15")
        a("v_cvt_pk_bf16_f32 v21, v24, v25")
        a("v_lshlrev_b32 v24, 16, v21\nv_and_b32 v25, 0xffff0000, v21")
        a("v_add_f32 v22, v22, v24\nv_add_f32 v23, v23, v25")
        a("v_cvt_pk_bf16_f32 v8, v22, v23")
        a("v_lshlrev_b32 v3, 2, v0")
        self.setexec(0xff, 0)
        a("buffer_store_dword v8, v3, s[60:63], s46 offen")
        a("s_cmp_lg_u32 s2, 32\ns_cbranch_scc1 L_fin")
        a(f"v_mov_b32 v8, s{sT}\nv_mov_b32 v3, 0")
        self.setexec(1, 0)
        a(f"buffer_store_dword v8, v3, {SRD_WS}, 0 offen sc1")
        a("s_branch L_fin")

    def publish_f32(self, d, s_base, s_stride, tmp):
        a = self.a
        va, vt8, pair = tmp, tmp + 1, tmp + 2
        assert pair % 2 == 0
        a(f"v_lshrrev_b32 v{va}, 4, v0\nv_lshlrev_b32 v{va}, 2, v{va}")
        a(f"v_mul_lo_u32 v{va}, v{va}, s{s_stride}")
        a(f"v_and_b32 v{vt8}, 15, v0\nv_lshl_add_u32 v{va}, v{vt8}, 3, v{va}")
        a(f"v_mov_b32 v{vt8}, s{sT8}")
        for r in range(4):
            a(f"v_mov_b32 v{pair+2*r+1}, s{sT}")
        for r in range(4):
            a(f"v_and_or_b32 v{pair+2*r}, v{d+r}, s{sFF00}, v{vt8}")
        self.setexec(0xffffffff, 0)
        for r in range(4):
            if 'nopub' in self.o.skip: break
            a(f"buffer_store_dwordx2 v[{pair+2*r}:{pair+2*r+1}], v{va}, {SRD_WS}, s{s_base} offen @POL@")
            if r < 3:
                a(f"s_add_u32 s{s_base}, s{s_base}, s{s_stride}")
        a("s_mov_b64 exec, -1")

    def publish_bf16(self, d, s_base, s_stride, tmp):
        a = self.a
        va, vt, pair = tmp, tmp + 1, tmp + 2
        assert pair % 2 == 0
        a(f"v_lshrrev_b32 v{va}, 4, v0\nv_lshlrev_b32 v{va}, 2, v{va}")
        a(f"v_mul_lo_u32 v{va}, v{va}, s{s_stride}")
        a(f"v_and_b32 v{vt}, 14, v0\nv_lshl_add_u32 v{va}, v{vt}, 2, v{va}")
        for r in range(4):
            a(f"v_mov_b32_dpp v{pair+2*r+1}, v{d+r} quad_perm:[1,0,3,2] {DPP}")
        for r in range(4):
            a(f"v_cvt_pk_bf16_f32 v{pair+2*r}, v{d+r}, v{pair+2*r+1}")
        for r in range(4):
            a(f"v_mov_b32 v{pair+2*r+1}, s{sT}")
        self.setexec(0x55555555, 0)
        for r in range(4):
            if 'nopub' in self.o.skip: break
            a(f"buffer_store_dwordx2 v[{pair+2*r}:{pair+2*r+1}], v{va}, {SRD_WS}, s{s_base} offen @POL@")
            if r < 3:
                a(f"s_add_u32 s{s_base}, s{s_base}, s{s_stride}")
        a("s_mov_b64 exec, -1")

    def helper(self):
        a = self.a; o = self.o
        a("L_helper:")
        a.c("================= helper wave =================")
        a("s_setprio 3")
        a(f"s_sub_u32 s{sW}, s3, 8")
        a(f"v_mov_b32 v1, {L_CNT}\nv_mov_b32 v2, 0\nv_mov_b32 v3, 0\nv_mov_b32 v4, 0\nv_mov_b32 v5, 0")
        a(f"s_cmp_lg_u32 s{sW}, 0\ns_cbranch_scc1 L_h_noinit")
        self.setexec(1, 0)
        a("ds_write_b128 v1, v[2:5]")
        a("s_mov_b64 exec, -1")
        a("L_h_noinit:")
        cq, c1, c2 = o.cntq, o.cnt1, o.cnt2
        assert sum(cq) == 64 and sum(c1) == 28 and sum(c2) == 56
        for x in range(8):
            assert cq[x] + c1[x] + c2[x] <= 32
        pref = lambda c: [sum(c[:i]) for i in range(8)]
        def table(vals, dst):
            lo, hi = pack8(vals)
            a(f"s_mov_b32 s76, {hex(lo)}\ns_mov_b32 s77, {hex(hi)}")
            a(f"s_lshr_b64 s[76:77], s[76:77], s78\ns_and_b32 s{dst}, s76, 0xff")
        a(f"s_lshl_b32 s78, s{sKVH}, 3")
        table(cq, 40); table([cq[x] + c1[x] for x in range(8)], 41); table([cq[x] + c1[x] + c2[x] for x in range(8)], 42)
        table(pref(cq), 43)
        table([(pref(c1)[x] - cq[x]) & 0xff for x in range(8)], 44)
        table([(pref(c2)[x] - cq[x] - c1[x]) & 0xff for x in range(8)], 46)
        a("v_lshrrev_b32 v1, 3, v0\nv_bfe_u32 v3, v0, 4, 1\nv_lshlrev_b32 v3, 1, v3\nv_and_b32 v2, 7, v0\nv_xor_b32 v2, v2, v3\nv_lshlrev_b32 v2, 4, v2")
        if 'helpers' in o.skip:
            self.after_karg()
            srd(a, 48, sWS, WS_SIZE)
            a("s_barrier\ns_branch L_h_tail")
        a(f"s_cmp_lt_u32 s{sJ}, s40\ns_cbranch_scc1 L_h_q")
        a(f"s_cmp_lt_u32 s{sJ}, s41\ns_cbranch_scc1 L_h_m1")
        a(f"s_cmp_lt_u32 s{sJ}, s42\ns_cbranch_scc1 L_h_m2")
        a("s_mov_b32 s45, 3")
        self.after_karg()
        srd(a, 48, sWS, WS_SIZE)
        a("s_barrier")
        self.tag_setup()
        a("s_branch L_h_qgather")
        a("L_h_q:")
        a(f"s_add_u32 s47, s43, s{sJ}\ns_and_b32 s47, s47, 0xff")
        a(f"s_lshl_b32 s40, s47, 7")
        a("s_mov_b32 s41, 8192")
        a(f"s_mov_b32 s42, {L_X}")
        a(f"s_lshr_b32 s43, s47, 3\ns_lshl_b32 s43, s43, 14\ns_and_b32 s76, s47, 7\ns_lshl_b32 s76, s76, 8\ns_add_u32 s43, s43, s76\ns_add_u32 s43, s43, {WS_QP}")
        a("s_mov_b32 s44, 2048\ns_mov_b32 s45, 0\ns_mov_b32 s46, 64")
        self.after_karg()
        srd(a, 52, sWQ, 448 * 8192)
        a("s_branch L_h_tile")
        a("L_h_m1:")
        a(f"s_add_u32 s47, s44, s{sJ}\ns_and_b32 s47, s47, 0xff")
        a(f"s_lshl_b32 s40, s47, 7")
        a("s_mov_b32 s41, 3584")
        a(f"s_mov_b32 s42, {L_Y}")
        a(f"s_lshl_b32 s43, s47, 8\ns_add_u32 s43, s43, {WS_HP}")
        a("s_mov_b32 s44, 7168\ns_mov_b32 s45, 1\ns_mov_b32 s46, 64")
        self.after_karg()
        srd(a, 52, sW1, 448 * 3584)
        a("s_branch L_h_tile")
        a("L_h_m2:")
        a(f"s_add_u32 s47, s46, s{sJ}\ns_and_b32 s47, s47, 0xff")
        a(f"s_and_b32 s76, s47, 7\ns_lshr_b32 s77, s47, 3")
        a(f"s_mul_i32 s40, s76, {224*896}\ns_lshl_b32 s78, s77, 7\ns_add_u32 s40, s40, s78")
        a("s_mov_b32 s41, 896")
        a(f"s_mov_b32 s42, {L_Y}")
        a(f"s_lshl_b32 s43, s77, 12\ns_lshl_b32 s78, s76, 7\ns_add_u32 s43, s43, s78\ns_add_u32 s43, s43, {WS_MP}")
        a(f"s_mov_b32 s44, {28*1024}\ns_mov_b32 s45, 2\ns_mov_b32 s46, 1024")
        self.after_karg()
        srd(a, 52, sW2, 1792 * 896)
        a("L_h_tile:")
        if 'faketile' in o.skip:
            a("s_mov_b32 s41, 128\ns_mul_i32 s40, s47, 28672")
        if 'fakeA' in o.skip:
            a("s_cmp_eq_u32 s45, 0\ns_cselect_b32 s41, 8064, s41")
        if 'fakeB' in o.skip:
            a("s_cmp_eq_u32 s45, 0\ns_cbranch_scc0 L_fb")
            a("v_lshrrev_b32 v1, 4, v0\nv_and_b32 v2, 15, v0\nv_lshlrev_b32 v2, 4, v2")
            a("s_lshr_b32 s40, s47, 1\ns_lshl_b32 s40, s40, 8\ns_and_b32 s75, s47, 1\ns_mul_i32 s75, s75, 1835008\ns_add_u32 s40, s40, s75")
            a("s_mov_b32 s41, 4096")
            a("v_lshlrev_b32 v1, 1, v1")
            a("L_fb:")
        if 'notile' in o.skip:
            a("s_mov_b32 s41, 0\ns_mov_b32 s40, 0")
        a("v_mul_lo_u32 v1, v1, s41")
        a(f"s_cmp_eq_u32 s45, 2\ns_cselect_b32 s75, s{sW}, 0\ns_and_b32 s75, s75, 1\ns_lshl_b32 s75, s75, 6")
        a("v_xor_b32 v2, s75, v2\nv_xor_b32 v6, 64, v2\nv_add_u32 v6, v1, v6\nv_add_u32 v1, v1, v2")
        a("s_cmp_eq_u32 s45, 2\ns_cselect_b32 s75, 56, 112")
        a(f"s_mul_i32 s75, s75, s{sW}")
        a("s_lshl_b32 s76, s75, 7")
        a("s_mul_i32 s75, s75, s41\ns_add_u32 s75, s75, s40")
        a("s_lshl_b32 s77, s41, 3")
        a("s_cmp_eq_u32 s45, 2\ns_cbranch_scc1 L_h_nox")
        srd(a, 56, sX, 7168)
        a("v_lshlrev_b32 v3, 4, v0")
        a(f"s_lshl_b32 s78, s{sW}, 1\ns_mul_i32 s79, s78, {XP}\ns_mul_i32 s78, s78, 896")
        self.setexec(0xffffffff, 0x00ffffff)
        a(f"s_add_u32 m0, s79, {L_X}")
        a("buffer_load_dwordx4 v3, s[56:59], s78 offen lds" if 'nodma' not in o.skip else "s_nop 0")
        a(f"s_add_u32 s78, s78, 896\ns_add_u32 m0, s79, {L_X + XP}")
        a("buffer_load_dwordx4 v3, s[56:59], s78 offen lds" if 'nodma' not in o.skip else "s_nop 0")
        a("s_mov_b64 exec, -1")
        a("L_h_nox:")
        def tl(i):
            if 'nodma' in o.skip: return
            a(f"s_add_u32 m0, s76, {L_TILE + 1024*i}")
            a(f"buffer_load_dwordx4 v{1 if i % 2 == 0 else 6}, s[52:55], s75 offen nt lds")
            a("s_add_u32 s75, s75, s77")
        for i in range(o.hpre):
            tl(i)
        srd(a, 48, sWS, WS_SIZE)
        a("s_barrier")
        for i in range(o.hpre, 7):
            tl(i)
        a("s_cmp_eq_u32 s45, 2\ns_cbranch_scc1 L_h_m2q")
        for i in range(7, 14):
            tl(i)
        self.stamp(1)
        self.tag_setup()
        a("s_cmp_eq_u32 s45, 1\ns_cbranch_scc0 L_h_nob1")
        srd(a, 56, sB1, 3584)
        a(f"v_and_b32 v3, 15, v0\nv_lshlrev_b32 v3, 1, v3\ns_lshl_b32 s78, s47, 7\ns_lshl_b32 s79, s{sW}, 5\ns_add_u32 s78, s78, s79")
        a("buffer_load_ushort v98, v3, s[56:59], s78 offen")
        a("L_h_nob1:")
        a("s_waitcnt vmcnt(0)")
        self.lds_signal(C_A0, 3, 4)
        self.lds_wait(C_A0, 4, 3, 4)
        a("s_cmp_eq_u32 s45, 0\ns_cbranch_scc1 L_h_mm")
        self.layernorm()
        a("s_waitcnt lgkmcnt(0)")
        self.lds_signal(C_A1, 3, 4)
        self.lds_wait(C_A1, 4, 3, 4)
        a("s_branch L_h_mm")
        a("L_h_m2q:")
        self.stamp(1)
        self.tag_setup()
        self.qgather()
        self.hgather()
        a("s_waitcnt lgkmcnt(0)")
        self.lds_signal(C_A1, 3, 4)
        self.lds_wait(C_A1, 4, 3, 4)
        a("L_h_mm:")
        self.stamp(2)
        BF, AF = 8, 40
        self.tr_addr(L_TILE)
        a(f"v_and_b32 v2, 7, v0\nv_mul_u32_u24 v2, {XP}, v2\nv_lshrrev_b32 v3, 4, v0\nv_lshl_add_u32 v2, v3, 4, v2\nv_add_u32 v2, s42, v2")
        def rd(m):
            b = BF + 4 * (m % 7); af = AF + 4 * (m % 7)
            a(f"ds_read_b64_tr_b16 v[{b}:{b+1}], v1 offset:{4096*m}")
            a(f"ds_read_b64_tr_b16 v[{b+2}:{b+3}], v1 offset:{4096*m+512}")
            a(f"ds_read_b128 v[{af}:{af+3}], v2 offset:{64*m}")
        def mm(m):
            b = BF + 4 * (m % 7); af = AF + 4 * (m % 7)
            a(f"v_mfma_f32_16x16x32_bf16 v[4:7], v[{af}:{af+3}], v[{b}:{b+3}], {'0' if m == 0 else 'v[4:7]'}")
        for m in range(4):
            rd(m)
        for m in range(7):
            if m + 4 < 7:
                a("s_waitcnt lgkmcnt(9)"); mm(m); rd(m + 4)
            else:
                a(f"s_waitcnt lgkmcnt({3*(6-m)})"); mm(m)
        a("s_cmp_eq_u32 s45, 2\ns_cbranch_scc1 L_h_pub2")
        for m in range(7, 11):
            rd(m)
        for m in range(7, 14):
            if m + 4 < 14:
                a("s_waitcnt lgkmcnt(9)"); mm(m); rd(m + 4)
            else:
                a(f"s_waitcnt lgkmcnt({3*(13-m)})"); mm(m)
        a(f"s_mul_i32 s75, s{sW}, s46\ns_add_u32 s43, s43, s75")
        a("s_cmp_eq_u32 s45, 0\ns_cbranch_scc1 L_h_pubq")
        a("s_nop 7")
        a("v_lshlrev_b32 v98, 16, v98")
        for r in range(4):
            self.bf16_round(4 + r, 4 + r)
            a(f"v_add_f32 v{4+r}, v{4+r}, v98")
            self.bf16_round(4 + r, 4 + r)
        for r in range(4):
            self.gelu(4 + r, 8 + 2 * r, 9 + 2 * r)
        a("L_h_pubq:")
        a("s_nop 7")
        self.publish_bf16(4, 43, 44, 70)
        self.stamp(3)
        a("s_branch L_h_qgather")
        a("L_h_pub2:")
        a(f"s_mul_i32 s75, s{sW}, s46\ns_add_u32 s43, s43, s75")
        a("s_nop 7")
        self.publish_f32(4, 43, 44, 70)
        self.stamp(3)
        a("s_branch L_h_wo")
        a("L_h_qgather:")
        self.qgather()
        a("L_h_wo:")
        self.stamp(4)
        WB = 100
        a(f"s_cmp_eq_u32 s{sJJ}, 255\ns_cbranch_scc1 L_h_tail")
        a(f"s_cmp_lg_u32 s{sW}, 3\ns_cbranch_scc1 L_h_noprep")
        if 'nofin' not in o.skip:
            self.finalprep()
        a("L_h_noprep:")
        a(f"s_setprio {o.woprio}")
        srd(a, 60, sWO, 4096 * 896)
        a(f"s_and_b32 s75, s{sJJ}, 3\ns_lshl_b32 s75, s75, 7\ns_lshl_b32 s76, s{sKVH}, 9\ns_add_u32 s75, s75, s76")
        a(f"s_lshl_b32 s76, s{sW}, 5\ns_add_u32 s75, s75, s76\ns_mul_i32 s75, s75, 896")
        a(f"s_lshr_b32 s76, s{sJJ}, 2\ns_lshl_b32 s76, s76, 7\ns_add_u32 s75, s75, s76")
        a("v_lshrrev_b32 v1, 3, v0\nv_mul_u32_u24 v1, 896, v1\nv_bfe_u32 v3, v0, 4, 1\nv_lshlrev_b32 v3, 1, v3\nv_and_b32 v2, 7, v0\nv_xor_b32 v2, v2, v3\nv_lshlrev_b32 v2, 4, v2")
        a("v_xor_b32 v6, 64, v2\nv_add_u32 v6, v1, v6\nv_add_u32 v1, v1, v2")
        a(f"s_lshl_b32 s76, s{sW}, 12")
        for i in range(4):
            if 'nowo' in o.skip: break
            a(f"s_add_u32 m0, s76, {L_WO + 1024*i}")
            a(f"buffer_load_dwordx4 v{1 if i % 2 == 0 else 6}, s[60:63], s75 offen nt lds")
            if i < 3:
                a(f"s_add_u32 s75, s75, {8*896}")
        a("s_setprio 3")
        self.tr_addr(L_WO)
        a(f"s_lshr_b32 s75, s{sJJ}, 2\ns_lshl_b32 s75, s75, 2\ns_add_u32 s75, s75, s{sW}\ns_lshl_b32 s43, s75, 12")
        a(f"s_lshl_b32 s75, s{sKVH}, 2\ns_and_b32 s76, s{sJJ}, 3\ns_add_u32 s75, s75, s76\ns_lshl_b32 s75, s75, 7")
        a(f"s_add_u32 s43, s43, s75\ns_add_u32 s43, s43, {WS_BP}\ns_mov_b32 s44, {28*4096}")
        a(f"v_and_b32 v2, 7, v0\nv_mul_u32_u24 v2, 272, v2\nv_lshrrev_b32 v3, 4, v0\nv_lshl_add_u32 v2, v3, 4, v2\nv_add_u32 v2, {L_A}, v2")
        self.stamp(5)
        a("s_barrier")
        if 'tail' in o.skip:
            a("s_barrier\ns_branch L_fin")
        a("s_waitcnt vmcnt(0)")
        self.lds_signal(C_WO, 3, 4)
        self.lds_wait(C_WO, 4, 3, 4)
        for m in range(4):
            a(f"ds_read_b64_tr_b16 v[{WB+4*m}:{WB+4*m+1}], v1 offset:{4096*m}")
            a(f"ds_read_b64_tr_b16 v[{WB+4*m+2}:{WB+4*m+3}], v1 offset:{4096*m+512}")
        a("v_lshrrev_b32 v70, 4, v0\nv_lshlrev_b32 v70, 2, v70\nv_mul_lo_u32 v70, v70, s44\nv_and_b32 v71, 15, v0\nv_lshl_add_u32 v70, v71, 3, v70")
        a(f"v_mov_b32 v71, s{sT8}")
        for r in range(4):
            a(f"v_mov_b32 v{73+2*r}, s{sT}\ns_mul_i32 s{76+r}, s44, {r}\ns_add_u32 s{76+r}, s{76+r}, s43")
        a("s_waitcnt lgkmcnt(0)")
        self.stamp(6)
        a("s_barrier")
        for m in range(4):
            a(f"ds_read_b128 v[{40+4*m}:{40+4*m+3}], v2 offset:{64*m}")
        for m in range(4):
            a(f"s_waitcnt lgkmcnt({3-m})")
            a(f"v_mfma_f32_16x16x32_bf16 v[4:7], v[{40+4*m}:{40+4*m+3}], v[{WB+4*m}:{WB+4*m+3}], {'0' if m == 0 else 'v[4:7]'}")
        self.setexec(0xffffffff, 0)
        for r in range(4):
            a(f"v_and_or_b32 v{72+2*r}, v{4+r}, s{sFF00}, v71")
            a(f"buffer_store_dwordx2 v[{72+2*r}:{73+2*r}], v70, {SRD_WS}, s{76+r} offen @POL@")
        self.stamp(7)
        a("s_branch L_fin")
        a("L_h_tail:")
        self.stamp(5)
        a("s_barrier\ns_barrier")
        a("s_branch L_fin")

    def tr_addr(self, lbase):
        a = self.a
        a("v_lshrrev_b32 v1, 4, v0\nv_lshlrev_b32 v1, 3, v1\nv_bfe_u32 v2, v0, 2, 2\nv_add_u32 v1, v1, v2\nv_lshlrev_b32 v1, 7, v1")
        a("v_bfe_u32 v2, v0, 3, 2")
        a(f"v_xor_b32 v2, s{sW}, v2\nv_lshl_add_u32 v1, v2, 5, v1")
        a(f"v_and_b32 v2, 3, v0\nv_lshl_add_u32 v1, v2, 3, v1\nv_add_u32 v1, {lbase}, v1")

    def qgather(self):
        a = self.a
        a(f"s_lshl_b32 s75, s{sKVH}, 3\ns_add_u32 s75, s75, s{sB}\ns_lshl_b32 s75, s75, 11\ns_lshl_b32 s76, s{sW}, 9\ns_add_u32 s75, s75, s76")
        a(f"s_add_u32 s75, s75, {WS_QP}")
        a("v_lshlrev_b32 v1, 3, v0")
        a("s_add_u32 s76, s75, 248")
        self.spoll(76, [(2, 60, 0), (2, 62, 256)], [61, 63], self.o.ssleep, name='q')
        def lq():
            a(f"buffer_load_dwordx2 v[8:9], v1, {SRD_WS}, s75 offen @POL@")
        self.poll(lq, [8], 5, 6, 7, sleep=self.o.qsleep, name='q', width=2, t8=False)
        a(f"s_lshl_b32 s75, s{sW}, 8\ns_add_u32 s75, s75, {L_Q}\nv_lshlrev_b32 v1, 2, v0\nv_add_u32 v1, s75, v1")
        a("ds_write_b32 v1, v8")
        a("s_waitcnt lgkmcnt(0)")
        self.lds_signal(C_Q, 3, 4)

    def layernorm(self):
        a = self.a
        X = 8; F = 16
        a(f"s_lshl_b32 s75, s{sW}, 1\ns_mul_i32 s75, s75, {XP}")
        a(f"v_lshrrev_b32 v1, 5, v0\nv_mul_u32_u24 v1, {XP}, v1\nv_and_b32 v2, 31, v0\nv_mul_u32_u24 v2, 28, v2\nv_add_u32 v1, v1, v2\nv_add_u32 v1, s75, v1")
        a(f"v_add_u32 v2, {L_X}, v1")
        for i in range(3):
            a(f"ds_read2_b32 v[{X+2*i}:{X+2*i+1}], v2 offset0:{2*i} offset1:{2*i+1}")
        a(f"ds_read_b32 v{X+6}, v2 offset:24")
        a("s_waitcnt lgkmcnt(0)")
        for i in range(7):
            a(f"v_lshlrev_b32 v{F+2*i}, 16, v{X+i}\nv_and_b32 v{F+2*i+1}, 0xffff0000, v{X+i}")
        a(f"v_add_f32 v3, v{F}, v{F+1}")
        for i in range(2, 14):
            a(f"v_add_f32 v3, v3, v{F+i}")
        self.row16_reduce("v_add_f32", 3)
        self.swap_reduce("v_add_f32", 3, 4, 16)
        a("v_mul_f32 v3, 0x3b124925, v3")
        a(f"v_sub_f32 v5, v{F}, v3\nv_mul_f32 v4, v5, v5")
        for i in range(1, 14):
            a(f"v_sub_f32 v5, v{F+i}, v3\nv_fmac_f32 v4, v5, v5")
        self.row16_reduce("v_add_f32", 4)
        self.swap_reduce("v_add_f32", 4, 5, 16)
        a("v_mul_f32 v4, 0x3b124925, v4")
        self.bf16_round(3, 3)
        self.bf16_round(4, 4)
        a("v_add_f32 v4, 0x3727c5ac, v4")
        self.bf16_round(4, 4)
        a("v_sqrt_f32 v4, v4")
        self.bf16_round(4, 4)
        a("v_rcp_f32 v4, v4")
        a(f"v_add_u32 v2, {L_Y}, v1")
        for i in range(7):
            a(f"v_sub_f32 v{F+2*i}, v{F+2*i}, v3\nv_sub_f32 v{F+2*i+1}, v{F+2*i+1}, v3")
            a(f"v_cvt_pk_bf16_f32 v5, v{F+2*i}, v{F+2*i+1}")
            a(f"v_lshlrev_b32 v6, 16, v5\nv_and_b32 v5, 0xffff0000, v5")
            a(f"v_mul_f32 v6, v6, v4\nv_mul_f32 v5, v5, v4")
            a(f"v_cvt_pk_bf16_f32 v{X+i}, v6, v5")
            a(f"ds_write_b32 v2, v{X+i} offset:{4*i}")

    def gelu(self, x, t0, t1):
        a = self.a
        a(f"v_mul_f32 v{t0}, v{x}, v{x}")
        a(f"v_mov_b32 v{t1}, 0xc0135761")
        a(f"v_fmac_f32 v{t1}, 0xbdd2d3e2, v{t0}")
        a(f"v_mul_f32 v{t1}, v{t1}, v{x}")
        a(f"v_exp_f32 v{t1}, v{t1}")
        a(f"v_add_f32 v{t1}, 1.0, v{t1}")
        a(f"v_rcp_f32 v{t1}, v{t1}")
        a(f"v_mul_f32 v{x}, v{x}, v{t1}")

    def hgather(self):
        a = self.a
        a(f"s_lshl_b32 s75, s{sW}, 1\ns_mul_i32 s76, s75, 7168\ns_mul_i32 s77, s75, {XP}")
        a(f"s_and_b32 s78, s47, 7\ns_mul_i32 s78, s78, 896\ns_add_u32 s76, s76, s78\ns_add_u32 s76, s76, {WS_HP}")
        a(f"s_add_u32 s77, s77, {L_Y}")
        a("v_cmp_le_u32 vcc, 56, v0\nv_subrev_u32 v56, 56, v0\nv_cndmask_b32 v56, v0, v56, vcc\nv_cndmask_b32 v57, 0, 1, vcc")
        a("v_min_u32 v58, 47, v0\nv_add_u32 v58, 8, v58")
        a("v_lshlrev_b32 v60, 4, v56\nv_mul_u32_u24 v59, 7168, v57\nv_add_u32 v60, v60, v59")
        a("v_lshlrev_b32 v61, 4, v58\nv_add_u32 v61, 7168, v61")
        a(f"v_lshlrev_b32 v62, 3, v56\nv_mul_u32_u24 v59, {XP}, v57\nv_add_u32 v62, v62, v59\nv_add_u32 v62, s77, v62")
        a(f"v_lshlrev_b32 v63, 3, v58\nv_add_u32 v63, {XP}, v63\nv_add_u32 v63, s77, v63")
        def lh():
            a(f"buffer_load_dwordx4 v[8:11], v60, {SRD_WS}, s76 offen @POL@")
            a(f"buffer_load_dwordx4 v[12:15], v61, {SRD_WS}, s76 offen @POL@")
        def pre_h():
            a(f"buffer_load_dwordx4 v[12:15], v61, {SRD_WS}, s76 offen @POL@")
        a("s_add_u32 s75, s76, 7168")
        self.spoll(75, [(2, 60, 0), (2, 62, 256), (2, 64, 512), (2, 66, 768), (2, 68, 888)], [61, 63, 65, 67, 69], self.o.ssleep, name='h')
        self.poll(lh, [8, 12], 5, 6, 7, sleep=8, name='h', width=4, t8=False)
        a("v_mov_b32 v9, v10\nv_mov_b32 v13, v14")
        a("ds_write_b64 v62, v[8:9]\nds_write_b64 v63, v[12:13]")

    def finalprep(self):
        a = self.a
        srd(a, 56, sX, 7168)
        a(f"s_mul_i32 s75, s{sKVH}, 896")
        a("v_lshlrev_b32 v3, 4, v0")
        a("v_mov_b32 v8, 0\nv_mov_b32 v9, 0\nv_mov_b32 v10, 0\nv_mov_b32 v11, 0")
        self.setexec(0xffffffff, 0x00ffffff)
        a("buffer_load_dwordx4 v[8:11], v3, s[56:59], s75 offen")
        a("s_mov_b64 exec, -1")
        srd(a, 56, sGW, 896)
        a("buffer_load_dwordx4 v[12:15], v3, s[56:59], 0 offen")
        srd(a, 56, sB2, 896)
        a(f"s_lshl_b32 s75, s{sJJ}, 5")
        a("v_and_b32 v4, 7, v0\nv_lshlrev_b32 v4, 2, v4")
        a("buffer_load_dword v16, v4, s[56:59], s75 offen")
        a("s_waitcnt vmcnt(0)")
        a("v_mov_b32 v24, 0")
        for i in range(4):
            a(f"v_lshlrev_b32 v25, 16, v{8+i}\nv_lshlrev_b32 v26, 16, v{12+i}\nv_mul_f32 v25, v25, v26")
            a(f"v_and_b32 v26, 0xffff0000, v{8+i}\nv_and_b32 v27, 0xffff0000, v{12+i}\nv_mul_f32 v26, v26, v27")
            a("v_cvt_pk_bf16_f32 v25, v25, v26")
            a("v_lshlrev_b32 v26, 16, v25\nv_and_b32 v25, 0xffff0000, v25\nv_add_f32 v24, v24, v26\nv_add_f32 v24, v24, v25")
        self.row16_reduce("v_add_f32", 24)
        self.swap_reduce("v_add_f32", 24, 25, 16)
        self.swap_reduce("v_add_f32", 24, 25, 32)
        self.bf16_round(24, 24)
        a("v_mul_f32 v24, 0xbfb8aa3b, v24\nv_exp_f32 v24, v24\nv_add_f32 v24, 1.0, v24\nv_rcp_f32 v24, v24")
        self.bf16_round(24, 24)
        a("v_sub_f32 v25, 1.0, v24")
        self.bf16_round(25, 25)
        a("v_lshlrev_b32 v28, 16, v16\nv_and_b32 v29, 0xffff0000, v16")
        a(f"v_lshlrev_b32 v4, 1, v4\nv_add_u32 v4, {L_FIN}, v4\nv_mov_b32 v5, {L_FIN+64}")
        self.setexec(0xff, 0)
        a("ds_write_b64 v4, v[28:29]")
        self.setexec(1, 0)
        a("ds_write_b64 v5, v[24:25]")
        a("s_mov_b64 exec, -1")
        a("s_waitcnt lgkmcnt(0)")

    def build(self):
        a = self.a
        self.prologue()
        self.streaming()
        self.helper()
        a("L_fin:")
        self.dump_stamps()
        a("L_end:")
        a("s_endpgm")
        body = a.text()
        body = "\n".join((l.replace("@POL@", self.o.stpol) if "buffer_store" in l else l.replace("@POL@", self.o.ldpol)) for l in body.split("\n"))
        hdr = open("cdna_kernels/" + NAME + ".s.ref").read().split("; Override launch geometry")[0]
        out = hdr
        out += "; Override launch geometry by editing the next line (default: block=256,\n"
        out += f"; @launch grid=(256,1,1) block=(768,1,1) lds={LDS_BYTES}\n"
        out += '.amdgcn_target "amdgcn-amd-amdhsa--gfx950"\n.text\n'
        out += f".globl {KNAME}\n.p2align 8\n.type {KNAME},@function\n{KNAME}:\n"
        out += body
        out += f""".section .rodata,"a"
.p2align 6
.amdhsa_kernel {KNAME}
  .amdhsa_next_free_vgpr 168
  .amdhsa_next_free_sgpr 102
  .amdhsa_accum_offset 168
  .amdhsa_group_segment_fixed_size 0
  .amdhsa_kernarg_size 112
  .amdhsa_user_sgpr_count 2
  .amdhsa_user_sgpr_kernarg_segment_ptr 1
  .amdhsa_system_sgpr_workgroup_id_x 1
.end_amdhsa_kernel
"""
        return out

def parse(argv):
    p = argparse.ArgumentParser()
    p.add_argument("-o", default="cdna_kernels/" + NAME + ".s")
    p.add_argument("--stamps", action="store_true")
    p.add_argument("--rot", default="1,1,1,0")
    p.add_argument("--skip", default="")
    p.add_argument("--ldpol", default="sc1")
    p.add_argument("--stpol", default="sc1")
    p.add_argument("--npre", type=int, default=2)
    p.add_argument("--kmap", default="contig")
    p.add_argument("--order", default="kv")
    p.add_argument("--sprio", default="")
    p.add_argument("--hpre", type=int, default=4)
    p.add_argument("--woprio", type=int, default=0)
    p.add_argument("--qsleep", type=int, default=8)
    p.add_argument("--ssleep", type=int, default=2)
    p.add_argument("--cntq", default="16,0,16,0,16,0,16,0")
    p.add_argument("--cnt1", default="4,3,4,3,4,3,4,3")
    p.add_argument("--cnt2", default="2,12,2,12,2,12,2,12")
    o = p.parse_args(argv)
    o.rot = tuple(int(x) for x in o.rot.split(","))
    o.skip = set(x for x in o.skip.split(",") if x)
    for k in ("cntq", "cnt1", "cnt2"):
        setattr(o, k, [int(x) for x in getattr(o, k).split(",")])
    return o

if __name__ == "__main__":
    o = parse(sys.argv[1:])
    open(o.o, "w").write(Gen(o).build())
    print("wrote", o.o)
```

```python
import sys, argparse
from emit import Asm

NAME = "gated_mix__sliding_block_cached__mixer_channel_mlp__decode"
KNAME = NAME + "_kernel"

WS_QP = 0x100000
WS_HP = 0x180000
WS_OP = 0x200000
WS_ST = 0x300000
WS_BP = 0x400000
WS_MP = 0x500000
WS_XI = 0x5c0000
WS_DBG = 0x600000
WS_SIZE = 0x800000

L_TILE = 0
XP = 928
L_X = 57344
L_Y = 64768
L_WO = 72192
L_Q = 88576
L_P = 89600
L_OP = 90624
L_ST = 107008
L_A = 107136
L_FIN = 109312
L_CNT = 109440
LDS_BYTES = 109568
C_A0, C_A1, C_WO, C_Q = 0, 4, 8, 12

SPIN_LIMIT = 20000

sX, sK, sV, sWQ, sWO, sW1, sB1, sW2, sB2, sGW, sOUT, sDBG, sWS = 4, 6, 8, 10, 12, 16, 18, 20, 22, 24, 26, 28, 30
sT, sT8, sT88 = 32, 33, 34
sKVH, sJ, sB, sS, sJJ = 35, 36, 37, 38, 39
SRD_WS = "s[48:51]"
sFF00 = 72
sPSEL = 73
sW = 74
STAMP0 = 84
DPP = "row_mask:0xf bank_mask:0xf"

def srd(a, base, ptr, nbytes):
    a(f"s_mov_b32 s{base}, s{ptr}")
    a(f"s_and_b32 s{base+1}, s{ptr+1}, 0xffff")
    a(f"s_mov_b32 s{base+2}, {nbytes}")
    a(f"s_mov_b32 s{base+3}, 0x20000")

def pack8(vals):
    v = 0
    for i, x in enumerate(vals):
        assert 0 <= x < 256
        v |= x << (8 * i)
    return v & 0xffffffff, v >> 32

class Gen:
    def __init__(self, opt):
        self.o = opt
        self.a = Asm()

    def stamp(self, idx):
        if self.o.stamps:
            self.a("s_memrealtime s[100:101]")
            self.a("s_waitcnt lgkmcnt(0)")
            self.a(f"s_mov_b32 s{STAMP0+idx}, s100")

    def dump_stamps(self):
        if not self.o.stamps:
            return
        a = self.a
        if self.o.dbgtime:
            a("s_mov_b64 exec, -1")
            srd(a, 60, sDBG, 256)
            a(f"s_not_b32 s{STAMP0}, s{STAMP0}")
            a("v_mov_b32 v1, 0")
            for i in range(16):
                a(f"v_writelane_b32 v1, s{STAMP0+i}, {i}")
            a("s_memrealtime s[100:101]\ns_waitcnt lgkmcnt(0)")
            a("v_writelane_b32 v1, s100, 15")
            a("v_mbcnt_lo_u32_b32 v2, -1, 0\nv_mbcnt_hi_u32_b32 v2, -1, v2\nv_lshlrev_b32 v2, 2, v2")
            a("s_cmp_ge_u32 s3, 8\ns_cselect_b32 s80, 64, 0")
            a("s_mov_b32 exec_lo, 0xffff\ns_mov_b32 exec_hi, 0")
            a("buffer_atomic_umax v1, v2, s[60:63], s80 offen")
            a("s_waitcnt vmcnt(0)")
            return
        a("s_mov_b64 exec, -1")
        a("s_lshl_b32 s80, s2, 4\ns_add_u32 s80, s80, s3\ns_lshl_b32 s80, s80, 6")
        a(f"s_add_u32 s80, s80, {WS_DBG}")
        a("v_mov_b32 v1, 0")
        for i in range(16):
            a(f"v_writelane_b32 v1, s{STAMP0+i}, {i}")
        a("v_mbcnt_lo_u32_b32 v2, -1, 0\nv_mbcnt_hi_u32_b32 v2, -1, v2\nv_lshlrev_b32 v2, 2, v2")
        a("s_mov_b32 exec_lo, 0xffff\ns_mov_b32 exec_hi, 0")
        a(f"buffer_store_dword v1, v2, {SRD_WS}, s80 offen")
        a("s_waitcnt vmcnt(0)")

    def setexec(self, lo, hi):
        self.a(f"s_mov_b32 exec_lo, {hex(lo)}\ns_mov_b32 exec_hi, {hex(hi)}")

    def lds_signal(self, cnt_off, v0, v1):
        a = self.a
        a(f"v_mov_b32 v{v0}, {L_CNT + cnt_off}")
        a(f"v_mov_b32 v{v1}, 1")
        self.setexec(1, 0)
        a(f"ds_add_u32 v{v0}, v{v1}")
        a("s_mov_b64 exec, -1")

    def lds_wait(self, cnt_off, target, v0, v1, sleep=1):
        a = self.a
        L = a.label("lw"); Ld = a.label("lwd")
        a(f"v_mov_b32 v{v0}, {L_CNT + cnt_off}")
        a(f"s_mov_b32 s81, 0")
        a(f"{L}:")
        a(f"ds_read_b32 v{v1}, v{v0}")
        a("s_waitcnt lgkmcnt(0)")
        a(f"v_readfirstlane_b32 s80, v{v1}")
        a(f"s_cmp_ge_u32 s80, {target}")
        a(f"s_cbranch_scc1 {Ld}")
        a(f"s_add_u32 s81, s81, 1")
        a(f"s_cmp_ge_u32 s81, {SPIN_LIMIT*8}")
        a(f"s_cbranch_scc1 {Ld}")
        a(f"s_sleep {sleep}")
        a(f"s_branch {L}")
        a(f"{Ld}:")

    def check(self, r, width, t8, vbad, vt, vu, first):
        a = self.a
        if width == 2:
            if first:
                a(f"v_xor_b32 v{vbad}, s{sT}, v{r+1}")
            else:
                a(f"v_xor_b32 v{vt}, s{sT}, v{r+1}\nv_or_b32 v{vbad}, v{vbad}, v{vt}")
            assert not t8
            return
        a(f"v_xor_b32 v{vt}, s{sT}, v{r+1}")
        a(f"v_xor_b32 v{vu}, s{sT}, v{r+3}")
        if first:
            a(f"v_or_b32 v{vbad}, v{vt}, v{vu}")
        else:
            a(f"v_or3_b32 v{vbad}, v{vbad}, v{vt}, v{vu}")
        if t8:
            a(f"v_perm_b32 v{vt}, v{r}, v{r+2}, s{sPSEL}")
            a(f"v_xor_b32 v{vt}, s{sT88}, v{vt}")
            a(f"v_or_b32 v{vbad}, v{vbad}, v{vt}")

    def poll(self, loads, regs, vbad, vt, vu, sleep=2, pre=None, name="", width=4, t8=True):
        a = self.a
        if name and ('no_' + name) in self.o.skip:
            return
        if name and ('once_' + name) in self.o.skip:
            loads()
            a("s_waitcnt vmcnt(0)")
            return
        if name and ('nopre_' + name) in self.o.skip:
            pre = None
        if pre is not None:
            emit, pregs, (lo, hi), psleep = pre
            P = a.label("pre"); Pd = a.label("pred")
            a("s_mov_b32 s81, 0")
            a(f"{P}:")
            self.setexec(lo, hi)
            emit()
            a("s_waitcnt vmcnt(0)")
            for i, r in enumerate(pregs):
                if i == 0:
                    a(f"v_xor_b32 v{vbad}, s{sT}, v{r+1}")
                else:
                    a(f"v_xor_b32 v{vt}, s{sT}, v{r+1}\nv_or_b32 v{vbad}, v{vbad}, v{vt}")
            a(f"v_cmp_ne_u32 vcc, 0, v{vbad}")
            a("s_mov_b64 exec, -1")
            a(f"s_cbranch_vccz {Pd}")
            a("s_add_u32 s81, s81, 1")
            a(f"s_cmp_ge_u32 s81, {SPIN_LIMIT}")
            a(f"s_cbranch_scc1 {Pd}")
            a(f"s_sleep {psleep}")
            a(f"s_branch {P}")
            a(f"{Pd}:")
        L = a.label("poll"); Ld = a.label("polld")
        a("s_mov_b32 s81, 0")
        a(f"{L}:")
        loads()
        a("s_waitcnt vmcnt(0)")
        for i, r in enumerate(regs):
            self.check(r, width, t8, vbad, vt, vu, i == 0)
        a(f"v_cmp_ne_u32 vcc, 0, v{vbad}")
        a(f"s_cbranch_vccz {Ld}")
        a("s_add_u32 s81, s81, 1")
        a(f"s_cmp_ge_u32 s81, {SPIN_LIMIT}")
        a(f"s_cbranch_scc1 {Ld}")
        a(f"s_sleep {sleep}")
        a(f"s_branch {L}")
        a(f"{Ld}:")
        if t8:
            for r in regs:
                a(f"v_and_b32 v{r}, s{sFF00}, v{r}")
                a(f"v_and_b32 v{r+2}, s{sFF00}, v{r+2}")

    def spoll(self, off_expr, loads, tags, sleep, name="", t8regs=()):
        a = self.a
        if name and (('no_' + name) in self.o.skip or ('once_' + name) in self.o.skip or ('nospoll_' + name) in self.o.skip):
            return
        P = a.label("sp"); Pd = a.label("spd")
        a(f"s_add_u32 s78, s{sWS}, s{off_expr}\ns_addc_u32 s79, s{sWS+1}, 0")
        a("s_mov_b32 s81, 0")
        a(f"{P}:")
        for ndw, dst, imm in loads:
            rng = f"s[{dst}:{dst+ndw-1}]" if ndw > 1 else f"s{dst}"
            a(f"s_load_dword{'x'+str(ndw) if ndw > 1 else ''} {rng}, s[78:79], {imm} glc")
        a("s_waitcnt lgkmcnt(0)")
        for i, t in enumerate(tags):
            if i == 0:
                a(f"s_xor_b32 s80, s{t}, s{sT}")
            else:
                a(f"s_xor_b32 s82, s{t}, s{sT}\ns_or_b32 s80, s80, s82")
        if t8regs:
            a(f"s_xor_b32 s83, s{t8regs[0]}, s{sT8}")
            for t in t8regs[1:]:
                a(f"s_xor_b32 s82, s{t}, s{sT8}\ns_or_b32 s83, s83, s82")
            a("s_and_b32 s83, s83, 0xff\ns_or_b32 s80, s80, s83")
        a(f"s_cmp_eq_u32 s80, 0\ns_cbranch_scc1 {Pd}")
        a("s_add_u32 s81, s81, 1")
        a(f"s_cmp_ge_u32 s81, {SPIN_LIMIT}\ns_cbranch_scc1 {Pd}")
        a(f"s_sleep {sleep}\ns_branch {P}")
        a(f"{Pd}:")

    def bf16_round(self, dst, src):
        a = self.a
        a(f"v_cvt_pk_bf16_f32 v{dst}, v{src}, v{src}")
        a(f"v_and_b32 v{dst}, 0xffff0000, v{dst}")

    def row16_reduce(self, op, v):
        for r in (8, 4, 2, 1):
            self.a(f"{op}_dpp v{v}, v{v}, v{v} row_ror:{r} {DPP}")

    def swap_reduce(self, op, v, t, which):
        a = self.a
        a(f"v_mov_b32 v{t}, v{v}")
        a(f"v_permlane{which}_swap_b32 v{v}, v{t}")
        a(f"{op} v{v}, v{v}, v{t}")

    def prologue(self):
        a = self.a
        a("s_cmp_ge_u32 s2, 256")
        a("s_cbranch_scc1 L_end")
        a("s_load_dwordx16 s[4:19], s[0:1], 0")
        a("s_load_dwordx8 s[20:27], s[0:1], 64")
        a("s_load_dwordx4 s[28:31], s[0:1], 96")
        if self.o.stamps:
            for i in range(16):
                a(f"s_mov_b32 s{STAMP0+i}, 0")
            a("s_memrealtime s[100:101]")
        a("v_lshrrev_b32 v1, 6, v0")
        a("v_and_b32 v0, 63, v0")
        a("v_readfirstlane_b32 s3, v1")
        a(f"s_and_b32 s{sKVH}, s2, 7")
        a(f"s_lshr_b32 s{sJ}, s2, 3")
        a(f"s_and_b32 s{sB}, s{sJ}, 7")
        a(f"s_lshr_b32 s{sS}, s{sJ}, 3")
        a(f"s_sub_u32 s40, s{sJ}, 4")
        a(f"s_cmp_lt_u32 s{sJ}, 4")
        a(f"s_cselect_b32 s{sJJ}, 255, s40")
        a(f"s_mov_b32 s{sFF00}, 0xffffff00")
        a(f"s_mov_b32 s{sPSEL}, 0x0c0c0400")
        a("s_cmp_ge_u32 s3, 8")
        a("s_cbranch_scc1 L_helper")

    def after_karg(self):
        a = self.a
        a("s_waitcnt lgkmcnt(0)")
        if self.o.stamps:
            a(f"s_mov_b32 s{STAMP0}, s100")
        a(f"s_load_dword s{sT}, s[{sWS}:{sWS+1}], 0")

    def tag_setup(self):
        a = self.a
        a("s_waitcnt lgkmcnt(0)")
        a(f"s_add_u32 s{sT}, s{sT}, 1")
        a(f"s_mul_i32 s{sT8}, s{sT}, 0x9E3779B1")
        a(f"s_lshr_b32 s{sT8}, s{sT8}, 24")
        a(f"s_lshl_b32 s{sT88}, s{sT8}, 8")
        a(f"s_or_b32 s{sT88}, s{sT88}, s{sT8}")

    def streaming(self):
        a = self.a; o = self.o
        KD, VD = 8, 72
        QA = 136
        D0 = 144
        XS = 148
        SEL = 156
        vKo, vVo = 1, 2
        a.c("================= streaming wave =================")
        a(f"s_mov_b32 s{sW}, s3")
        a(f"s_lshl_b32 s75, s{sB}, 3\ns_add_u32 s75, s75, s{sKVH}\ns_lshl_b32 s75, s75, 21")
        a(f"s_lshl_b32 s76, s{sS}, 17\ns_add_u32 s75, s75, s76")
        a(f"s_add_u32 s75, s75, 0x180000")
        mb, mk, mw, ms = o.rot
        terms = [(sB, mb), (sKVH, mk), (sW, mw), (sS, ms)]
        a("s_mov_b32 s76, 0")
        for reg, m in terms:
            if m == 1:
                a(f"s_add_u32 s76, s76, s{reg}")
            elif m:
                a(f"s_mul_i32 s77, s{reg}, {m}\ns_add_u32 s76, s76, s77")
        if o.kmap == 'contig':
            a(f"s_lshl_b32 s77, s{sW}, 14\ns_add_u32 s75, s75, s77")
            a("s_and_b32 s76, s76, 7\ns_lshl_b32 s76, s76, 11")
            for t in range(8):
                if t:
                    a(f"s_add_u32 s76, s76, 0x800\ns_and_b32 s76, s76, 0x3fff")
                a(f"s_add_u32 s{40+t}, s76, s75")
        elif o.kmap == 'inter':
            a(f"s_lshl_b32 s77, s{sW}, 11\ns_add_u32 s75, s75, s77")
            a("s_and_b32 s76, s76, 7\ns_lshl_b32 s76, s76, 14")
            for t in range(8):
                if t:
                    a(f"s_add_u32 s76, s76, 0x4000\ns_and_b32 s76, s76, 0x1ffff")
                a(f"s_add_u32 s{40+t}, s76, s75")
        elif o.kmap == 'rot64':
            a(f"s_lshl_b32 s77, s{sW}, 3\ns_add_u32 s76, s76, s77\ns_and_b32 s76, s76, 63\ns_lshl_b32 s76, s76, 11")
            for t in range(8):
                if t:
                    a(f"s_add_u32 s76, s76, 0x800\ns_and_b32 s76, s76, 0x1ffff")
                a(f"s_add_u32 s{40+t}, s76, s75")
        a(f"v_lshrrev_b32 v3, 4, v0\nv_lshlrev_b32 v{vKo}, 6, v3")
        a(f"v_bfe_u32 v4, v0, 2, 2\nv_lshl_add_u32 v{vKo}, v4, 9, v{vKo}")
        a(f"v_and_b32 v4, 3, v0\nv_lshl_add_u32 v{vKo}, v4, 4, v{vKo}")
        a(f"v_and_b32 v4, 15, v0\nv_lshlrev_b32 v4, 4, v4\nv_lshl_add_u32 v{vVo}, v3, 9, v4")
        self.after_karg()
        srd(a, 52, sK, 0x8000000)
        def ld(m, isv):
            t, c = m // 2, m % 2
            r = (VD if isv else KD) + 4 * m
            a(f"buffer_load_dwordx4 v[{r}:{r+3}], v{vVo if isv else vKo}, {'s[56:59]' if isv else 's[52:55]'}, s{40+t} offen offset:{c*256} nt")
        npre = o.npre
        if o.sprio == 'kfirst':
            a("s_setprio 1")
        for m in range(npre):
            ld(m, False)
        a("s_barrier")
        srd(a, 56, sV, 0x8000000)
        srd(a, 48, sWS, WS_SIZE)
        if o.sprio == 'young':
            a(f"s_cmp_ge_u32 s{sW}, 4\ns_cbranch_scc0 L_noprio\ns_setprio 1\nL_noprio:")
        for m in range(npre, 16):
            ld(m, False)
        if o.sprio == 'kfirst':
            a("s_setprio 0")
        for m in range(16):
            ld(m, True)
        self.stamp(1)
        self.tag_setup()
        for base, val in ((64, 0x22222222), (66, 0x44444444), (68, 0x88888888)):
            a(f"s_mov_b32 s{base}, {hex(val)}\ns_mov_b32 s{base+1}, {hex(val)}")
        a("s_mov_b32 s70, 0\ns_mov_b32 s71, -1")
        vQ, vPw, vPr, vOw = 3, 4, 5, 6
        a(f"v_lshrrev_b32 v7, 4, v0\nv_lshlrev_b32 v{vQ}, 6, v7")
        a(f"v_bfe_u32 v164, v0, 2, 1\nv_lshl_add_u32 v{vQ}, v164, 9, v{vQ}")
        a(f"v_and_b32 v164, 3, v0\nv_lshl_add_u32 v{vQ}, v164, 4, v{vQ}")
        a(f"v_add_u32 v{vQ}, {L_Q}, v{vQ}")
        a(f"s_lshl_b32 s77, s{sW}, 7\ns_add_u32 s77, s77, {L_P}")
        a(f"v_bfe_u32 v164, v0, 2, 3\nv_lshlrev_b32 v{vPw}, 4, v164")
        a(f"v_lshrrev_b32 v164, 5, v0\nv_lshl_add_u32 v{vPw}, v164, 3, v{vPw}")
        a(f"v_and_b32 v164, 3, v0\nv_lshl_add_u32 v{vPw}, v164, 1, v{vPw}")
        a(f"v_add_u32 v{vPw}, s77, v{vPw}")
        a(f"v_bfe_u32 v164, v0, 3, 1\nv_lshlrev_b32 v{vPr}, 6, v164")
        a(f"v_lshl_add_u32 v{vPr}, v7, 4, v{vPr}\nv_add_u32 v{vPr}, s77, v{vPr}")
        a(f"s_lshl_b32 s77, s{sW}, 11\ns_add_u32 s77, s77, {L_OP}")
        a(f"v_lshrrev_b32 v164, 5, v0\nv_lshlrev_b32 v{vOw}, 10, v164")
        a(f"v_and_b32 v164, 15, v0\nv_lshl_add_u32 v{vOw}, v164, 5, v{vOw}")
        a(f"v_bfe_u32 v164, v0, 4, 1\nv_lshl_add_u32 v{vOw}, v164, 4, v{vOw}")
        a(f"v_add_u32 v{vOw}, s77, v{vOw}")
        a("v_and_b32 v164, 1, v0\nv_cmp_eq_u32 vcc, 1, v164")
        a("v_mov_b32 v165, 0x0c0c0100\nv_mov_b32 v166, 0x01000c0c\nv_cndmask_b32 v165, v165, v166, vcc")
        a("v_mov_b32 v166, 0x0c0c0302\nv_mov_b32 v167, 0x03020c0c\nv_cndmask_b32 v166, v166, v167, vcc")
        a("v_bfe_u32 v164, v0, 1, 2\nv_mov_b32 v167, 0x0c0c0c0c")
        for j in range(4):
            a(f"v_cmp_eq_u32 vcc, {j}, v164")
            a(f"v_cndmask_b32 v{SEL+j}, v167, v165, vcc")
            a(f"v_cndmask_b32 v{SEL+4+j}, v167, v166, vcc")
        if 'qwait' not in o.skip:
            self.lds_wait(C_Q, 4, 164, 165, sleep=2)
        self.stamp(2)
        a(f"ds_read_b128 v[{QA}:{QA+3}], v{vQ}")
        a(f"ds_read_b128 v[{QA+4}:{QA+7}], v{vQ} offset:256")
        a("s_waitcnt lgkmcnt(0)")
        Dreg = [D0] + [KD + 8 * (t - 1) for t in range(1, 8)]
        for t in range(8):
            a(f"s_waitcnt vmcnt({30 - 2*t})")
            k0, k1 = KD + 8 * t, KD + 8 * t + 4
            d = Dreg[t]
            a(f"v_mfma_f32_16x16x32_bf16 v[{d}:{d+3}], v[{QA}:{QA+3}], v[{k0}:{k0+3}], 0")
            a(f"v_mfma_f32_16x16x32_bf16 v[{d}:{d+3}], v[{QA+4}:{QA+7}], v[{k1}:{k1+3}], v[{d}:{d+3}]")
        self.stamp(3)
        for t in range(8):
            d = Dreg[t]; x = XS + t
            a(f"v_cndmask_b32 v{x}, v{d}, v{d+1}, s[64:65]")
            a(f"v_cndmask_b32 v{x}, v{x}, v{d+2}, s[66:67]")
            a(f"v_cndmask_b32 v{x}, v{x}, v{d+3}, s[68:69]")
        for i in range(4):
            a(f"v_cndmask_b32 v{XS+i}, v{XS+i}, v{XS+4+i}, s[70:71]")
        for i in range(4):
            a(f"v_add_f32_dpp v{XS+i}, v{XS+i}, v{XS+i} quad_perm:[1,0,3,2] {DPP}")
        for i in range(4):
            a(f"v_add_f32_dpp v{XS+i}, v{XS+i}, v{XS+i} quad_perm:[2,3,0,1] {DPP}")
        Z, M_, P_, T_ = XS + 4, XS + 6, XS + 7, XS + 5
        a(f"v_cndmask_b32 v{Z}, v{XS}, v{XS+1}, s[64:65]")
        a(f"v_cndmask_b32 v{Z}, v{Z}, v{XS+2}, s[66:67]")
        a(f"v_cndmask_b32 v{Z}, v{Z}, v{XS+3}, s[68:69]")
        self.bf16_round(Z, Z)
        a(f"v_mul_f32 v{Z}, 0x3db8aa3b, v{Z}")
        a(f"v_mov_b32 v{M_}, v{Z}")
        self.row16_reduce("v_max_f32", M_)
        self.swap_reduce("v_max_f32", M_, T_, 32)
        a(f"v_sub_f32 v{P_}, v{Z}, v{M_}")
        a(f"v_exp_f32 v{P_}, v{P_}")
        a(f"v_cvt_pk_bf16_f32 v{T_}, v{P_}, v{P_}")
        a(f"ds_write_b16 v{vPw}, v{T_}")
        P8 = KD
        a(f"ds_read_b128 v[{P8}:{P8+3}], v{vPr}")
        self.row16_reduce("v_add_f32", P_)
        self.swap_reduce("v_add_f32", P_, XS, 32)
        a(f"s_lshl_b32 s77, s{sW}, 3\ns_add_u32 s77, s77, {L_ST}")
        a(f"v_bfe_u32 v164, v0, 4, 1\nv_lshlrev_b32 v164, 6, v164\nv_add_u32 v164, s77, v164")
        self.setexec(0x10001, 0)
        a(f"ds_write_b64 v164, v[{M_}:{M_+1}]")
        a("s_mov_b64 exec, -1")
        a("s_waitcnt lgkmcnt(1)")
        ACC = QA
        AR = [KD + 8, KD + 12]
        for u in range(8):
            ar = AR[u & 1]
            for j in range(4):
                a(f"v_perm_b32 v{ar+j}, v{P8 + u//2}, v{P8 + u//2}, v{SEL + 4*(u&1) + j}")
            a(f"s_waitcnt vmcnt({14 - 2*u})")
            for c in range(2):
                vb = VD + 8 * u + 4 * c
                acc = ACC + 4 * c
                cin = "0" if u == 0 else f"v[{acc}:{acc+3}]"
                a(f"v_mfma_f32_16x16x32_bf16 v[{acc}:{acc+3}], v[{ar}:{ar+3}], v[{vb}:{vb+3}], {cin}")
        self.stamp(4)
        a(f"s_lshl_b32 s77, s{sW}, 8\ns_add_u32 s77, s77, {L_OP}")
        a(f"v_lshlrev_b32 v3, 2, v0\nv_add_u32 v3, s77, v3")
        a(f"s_lshr_b32 s77, s{sW}, 2\ns_lshl_b32 s77, s77, 6\ns_add_u32 s77, s77, {L_ST}")
        a(f"v_mov_b32 v4, s77")
        a(f"v_mov_b32 v33, s{sT8}\nv_mov_b32 v35, s{sT}\nv_lshlrev_b32 v32, 3, v0")
        a(f"s_lshl_b32 s76, s{sKVH}, 3\ns_add_u32 s76, s76, s{sB}")
        a(f"s_lshl_b32 s78, s76, 2\ns_add_u32 s78, s78, s{sS}\ns_lshl_b32 s78, s78, 12")
        a(f"s_lshl_b32 s79, s{sW}, 9\ns_add_u32 s78, s78, s79\ns_add_u32 s78, s78, {WS_OP}")
        a(f"ds_write_b128 v{vOw}, v[{ACC}:{ACC+3}]")
        a(f"ds_write_b128 v{vOw}, v[{ACC+4}:{ACC+7}] offset:512")
        a("s_waitcnt lgkmcnt(0)")
        a("s_barrier")
        self.stamp(5)
        if 'tail' in o.skip:
            a("s_barrier\ns_branch L_fin")
        OW, SW = 8, 16
        for i in range(4):
            a(f"ds_read_b128 v[{SW+4*i}:{SW+4*i+3}], v4 offset:{16*i}")
        for i in range(4):
            a(f"ds_read2st64_b32 v[{OW+2*i}:{OW+2*i+1}], v3 offset0:{16*i} offset1:{16*i+8}")
        a("s_waitcnt lgkmcnt(4)")
        ms_ = [SW + 2 * w for w in range(8)]
        a(f"v_max3_f32 v5, v{ms_[0]}, v{ms_[1]}, v{ms_[2]}")
        a(f"v_max3_f32 v6, v{ms_[3]}, v{ms_[4]}, v{ms_[5]}")
        a(f"v_max3_f32 v5, v5, v{ms_[6]}, v{ms_[7]}")
        a(f"v_max_f32 v5, v5, v6")
        a(f"v_and_b32 v5, s{sFF00}, v5")
        for w in range(8):
            a(f"v_sub_f32 v{ms_[w]}, v{ms_[w]}, v5")
        for w in range(8):
            a(f"v_exp_f32 v{ms_[w]}, v{ms_[w]}")
        a("s_waitcnt lgkmcnt(0)")
        a(f"v_mul_f32 v6, v{ms_[0]}, v{OW}\nv_mul_f32 v7, v{ms_[1]}, v{OW+1}")
        for w in range(2, 8, 2):
            a(f"v_fmac_f32 v6, v{ms_[w]}, v{OW+w}\nv_fmac_f32 v7, v{ms_[w+1]}, v{OW+w+1}")
        a("v_add_f32 v6, v6, v7")
        a(f"v_and_or_b32 v34, v6, s{sFF00}, v33")
        a(f"buffer_store_dwordx2 v[34:35], v32, {SRD_WS}, s78 offen @POL@")
        Ls = a.label("nost")
        a(f"s_and_b32 s78, s{sW}, 3\ns_cmp_lg_u32 s78, 0\ns_cbranch_scc1 {Ls}")
        a(f"v_mul_f32 v7, v{ms_[0]}, v{ms_[0]+1}")
        for w in range(1, 8):
            a(f"v_fmac_f32 v7, v{ms_[w]}, v{ms_[w]+1}")
        a(f"v_or_b32 v36, v5, v33\nv_mov_b32 v37, s{sT}")
        a(f"v_and_or_b32 v38, v7, s{sFF00}, v33\nv_mov_b32 v39, s{sT}")
        a(f"s_lshl_b32 s77, s76, 1\ns_lshr_b32 s78, s{sW}, 2\ns_add_u32 s77, s77, s78\ns_lshl_b32 s77, s77, 2")
        a(f"s_add_u32 s77, s77, s{sS}\ns_lshl_b32 s77, s77, 4\ns_add_u32 s77, s77, {WS_ST}")
        a("v_mov_b32 v32, 0")
        self.setexec(1, 0)
        a(f"buffer_store_dwordx4 v[36:39], v32, {SRD_WS}, s77 offen @POL@")
        a("s_mov_b64 exec, -1")
        a(f"{Ls}:")
        self.stamp(6)
        Lng = a.label("nogather")
        a(f"s_cmp_eq_u32 s{sJJ}, 255\ns_cbranch_scc1 {Lng}")
        a(f"s_lshl_b32 s76, s{sKVH}, 3\ns_add_u32 s76, s76, s{sW}")
        a(f"s_and_b32 s78, s{sJJ}, 3")
        a(f"s_lshl_b32 s77, s76, 14\ns_lshl_b32 s79, s78, 10\ns_add_u32 s77, s77, s79\ns_add_u32 s40, s77, {WS_OP}")
        for s_ in range(1, 4):
            a(f"s_add_u32 s{40+s_}, s40, {4096*s_}")
        a(f"s_lshl_b32 s77, s76, 1\ns_lshr_b32 s79, s78, 1\ns_add_u32 s77, s77, s79\ns_lshl_b32 s77, s77, 6\ns_add_u32 s44, s77, {WS_ST}")
        a("v_lshlrev_b32 v3, 4, v0")
        G = 40
        self.spoll(44, [(16, 52, 0)], [53, 55, 57, 59, 61, 63, 65, 67], 1, name='a', t8regs=[52 + 2 * i for i in range(8)])
        def loads():
            for s_ in range(4):
                a(f"buffer_load_dwordx4 v[{G+4*s_}:{G+4*s_+3}], v3, {SRD_WS}, s{40+s_} offen @POL@")
        loads()
        for i in range(8):
            a(f"s_and_b32 s{52+2*i}, s{52+2*i}, s{sFF00}")
        a("v_mov_b32 v8, s52\nv_mov_b32 v9, s56\nv_mov_b32 v10, s60\nv_mov_b32 v11, s64")
        a("v_max3_f32 v5, v8, v9, v10\nv_max_f32 v5, v5, v11")
        for i in range(4):
            a(f"v_sub_f32 v{8+i}, v{8+i}, v5")
        for i in range(4):
            a(f"v_exp_f32 v{8+i}, v{8+i}")
        a("v_mul_f32 v6, s54, v8\nv_fmac_f32 v6, s58, v9\nv_fmac_f32 v6, s62, v10\nv_fmac_f32 v6, s66, v11")
        a("v_rcp_f32 v6, v6")
        for i in range(4):
            a(f"v_mul_f32 v{8+i}, v{8+i}, v6")
        Lr = a.label("ga"); Ld = a.label("gad")
        a("s_mov_b32 s81, 0")
        a(f"{Lr}:")
        a("s_waitcnt vmcnt(0)")
        for i in range(4):
            self.check(G + 4 * i, 4, True, 5, 6, 7, i == 0)
        a(f"v_cmp_ne_u32 vcc, 0, v5\ns_cbranch_vccz {Ld}")
        a(f"s_add_u32 s81, s81, 1\ns_cmp_ge_u32 s81, {SPIN_LIMIT}\ns_cbranch_scc1 {Ld}")
        loads()
        a(f"s_branch {Lr}\n{Ld}:")
        self.stamp(7)
        for s_ in range(4):
            a(f"v_and_b32 v{G+4*s_}, s{sFF00}, v{G+4*s_}\nv_and_b32 v{G+4*s_+2}, s{sFF00}, v{G+4*s_+2}")
        a(f"v_mul_f32 v12, v8, v{G}\nv_mul_f32 v13, v8, v{G+2}")
        for s_ in range(1, 4):
            a(f"v_fmac_f32 v12, v{8+s_}, v{G+4*s_}\nv_fmac_f32 v13, v{8+s_}, v{G+4*s_+2}")
        a("v_cvt_pk_bf16_f32 v8, v12, v13")
        a(f"s_mul_i32 s77, s{sW}, 272\ns_add_u32 s77, s77, {L_A}")
        a("v_lshlrev_b32 v3, 2, v0\nv_add_u32 v3, s77, v3")
        a("ds_write_b32 v3, v8")
        a("s_waitcnt lgkmcnt(0)")
        a(f"{Lng}:")
        a("s_barrier")
        self.stamp(8)
        a(f"s_cmp_lg_u32 s{sW}, 0\ns_cbranch_scc1 L_fin")
        a(f"s_cmp_eq_u32 s{sJJ}, 255\ns_cbranch_scc1 L_fin")
        a(f"s_mul_i32 s76, s{sKVH}, 28\ns_add_u32 s76, s76, s{sJJ}")
        a(f"s_lshl_b32 s77, s76, 12\ns_add_u32 s40, s77, {WS_BP}")
        for i in range(1, 4):
            a(f"s_add_u32 s{40+i}, s40, {1024*i}")
        a(f"s_lshl_b32 s77, s76, 10\ns_add_u32 s44, s77, {WS_MP}")
        a("v_lshlrev_b32 v3, 4, v0")
        a(f"v_and_b32 v4, 7, v0\nv_lshlrev_b32 v4, 3, v4\nv_add_u32 v4, {L_FIN}, v4")
        a(f"v_mov_b32 v9, {L_FIN+64}")
        a("ds_read_b64 v[10:11], v4")
        a("ds_read_b64 v[14:15], v9")
        srd(a, 60, sOUT, 8 * 448 * 2)
        a(f"s_mul_i32 s46, s{sKVH}, 896\ns_lshl_b32 s78, s{sJJ}, 5\ns_add_u32 s46, s46, s78")
        def loads2():
            a(f"buffer_load_dwordx4 v[{G+16}:{G+19}], v3, {SRD_WS}, s44 offen @POL@")
            for i in range(4):
                a(f"buffer_load_dwordx4 v[{G+4*i}:{G+4*i+3}], v3, {SRD_WS}, s{40+i} offen @POL@")
        self.poll(loads2, [G+16, G, G+4, G+8, G+12], 5, 6, 7, sleep=1, name='b')
        self.stamp(9)
        for e in (0, 2):
            a(f"v_add_f32 v{G+e}, v{G+e}, v{G+4+e}\nv_add_f32 v{G+8+e}, v{G+8+e}, v{G+12+e}")
        for e in (0, 2):
            a(f"v_add_f32 v{G+e}, v{G+e}, v{G+8+e}")
        vals = [G, G + 2, G + 16, G + 18]
        for e in vals:
            a(f"v_add_f32_dpp v{e}, v{e}, v{e} row_ror:8 {DPP}")
        tmp = [20, 21, 22, 23]
        for which in (16, 32):
            for e, t in zip(vals, tmp):
                a(f"v_mov_b32 v{t}, v{e}")
            for e, t in zip(vals, tmp):
                a(f"v_permlane{which}_swap_b32 v{e}, v{t}")
            for e, t in zip(vals, tmp):
                a(f"v_add_f32 v{e}, v{e}, v{t}")
        a("s_waitcnt lgkmcnt(0)")
        a(f"v_cvt_pk_bf16_f32 v20, v{G}, v{G+2}\nv_cvt_pk_bf16_f32 v21, v{G+16}, v{G+18}")
        a("v_lshlrev_b32 v22, 16, v20\nv_and_b32 v23, 0xffff0000, v20")
        a("v_lshlrev_b32 v24, 16, v21\nv_and_b32 v25, 0xffff0000, v21")
        a("v_add_f32 v24, v24, v10\nv_add_f32 v25, v25, v11")
        a("v_mul_f32 v22, v22, v14\nv_mul_f32 v23, v23, v14")
        a("v_cvt_pk_bf16_f32 v21, v24, v25\nv_cvt_pk_bf16_f32 v20, v22, v23")
        a("v_lshlrev_b32 v24, 16, v21\nv_and_b32 v25, 0xffff0000, v21")
        a("v_lshlrev_b32 v22, 16, v20\nv_and_b32 v23, 0xffff0000, v20")
        a("v_mul_f32 v24, v24, v15\nv_mul_f32 v25, v25, v15")
        a("v_cvt_pk_bf16_f32 v21, v24, v25")
        a("v_lshlrev_b32 v24, 16, v21\nv_and_b32 v25, 0xffff0000, v21")
        a("v_add_f32 v22, v22, v24\nv_add_f32 v23, v23, v25")
        a("v_cvt_pk_bf16_f32 v8, v22, v23")
        a("v_lshlrev_b32 v3, 2, v0")
        self.setexec(0xff, 0)
        a("buffer_store_dword v8, v3, s[60:63], s46 offen")
        a("s_cmp_lg_u32 s2, 32\ns_cbranch_scc1 L_fin")
        a(f"v_mov_b32 v8, s{sT}\nv_mov_b32 v3, 0")
        self.setexec(1, 0)
        a(f"buffer_store_dword v8, v3, {SRD_WS}, 0 offen sc1")
        a("s_branch L_fin")

    def publish_f32(self, d, s_base, s_stride, tmp):
        a = self.a
        va, vt8, pair = tmp, tmp + 1, tmp + 2
        assert pair % 2 == 0
        a(f"v_lshrrev_b32 v{va}, 4, v0\nv_lshlrev_b32 v{va}, 2, v{va}")
        a(f"v_mul_lo_u32 v{va}, v{va}, s{s_stride}")
        a(f"v_and_b32 v{vt8}, 15, v0\nv_lshl_add_u32 v{va}, v{vt8}, 3, v{va}")
        a(f"v_mov_b32 v{vt8}, s{sT8}")
        for r in range(4):
            a(f"v_mov_b32 v{pair+2*r+1}, s{sT}")
        for r in range(4):
            a(f"v_and_or_b32 v{pair+2*r}, v{d+r}, s{sFF00}, v{vt8}")
        self.setexec(0xffffffff, 0)
        for r in range(4):
            if 'nopub' in self.o.skip: break
            a(f"buffer_store_dwordx2 v[{pair+2*r}:{pair+2*r+1}], v{va}, {SRD_WS}, s{s_base} offen @POL@")
            if r < 3:
                a(f"s_add_u32 s{s_base}, s{s_base}, s{s_stride}")
        a("s_mov_b64 exec, -1")

    def publish_bf16(self, d, s_base, s_stride, tmp):
        a = self.a
        va, vt, pair = tmp, tmp + 1, tmp + 2
        assert pair % 2 == 0
        a(f"v_lshrrev_b32 v{va}, 4, v0\nv_lshlrev_b32 v{va}, 2, v{va}")
        a(f"v_mul_lo_u32 v{va}, v{va}, s{s_stride}")
        a(f"v_and_b32 v{vt}, 14, v0\nv_lshl_add_u32 v{va}, v{vt}, 2, v{va}")
        for r in range(4):
            a(f"v_mov_b32_dpp v{pair+2*r+1}, v{d+r} quad_perm:[1,0,3,2] {DPP}")
        for r in range(4):
            a(f"v_cvt_pk_bf16_f32 v{pair+2*r}, v{d+r}, v{pair+2*r+1}")
        for r in range(4):
            a(f"v_mov_b32 v{pair+2*r+1}, s{sT}")
        self.setexec(0x55555555, 0)
        for r in range(4):
            if 'nopub' in self.o.skip: break
            a(f"buffer_store_dwordx2 v[{pair+2*r}:{pair+2*r+1}], v{va}, {SRD_WS}, s{s_base} offen @POL@")
            if r < 3:
                a(f"s_add_u32 s{s_base}, s{s_base}, s{s_stride}")
        a("s_mov_b64 exec, -1")

    def helper(self):
        a = self.a; o = self.o
        a("L_helper:")
        a.c("================= helper wave =================")
        a("s_setprio 3")
        a(f"s_sub_u32 s{sW}, s3, 8")
        a(f"v_mov_b32 v1, {L_CNT}\nv_mov_b32 v2, 0\nv_mov_b32 v3, 0\nv_mov_b32 v4, 0\nv_mov_b32 v5, 0")
        a(f"s_cmp_lg_u32 s{sW}, 0\ns_cbranch_scc1 L_h_noinit")
        self.setexec(1, 0)
        a("ds_write_b128 v1, v[2:5]")
        a("s_mov_b64 exec, -1")
        a("L_h_noinit:")
        cq, c1, c2 = o.cntq, o.cnt1, o.cnt2
        assert sum(cq) == 64 and sum(c1) == 28 and sum(c2) == 56
        for x in range(8):
            assert cq[x] + c1[x] + c2[x] <= 32
        pref = lambda c: [sum(c[:i]) for i in range(8)]
        def table(vals, dst):
            lo, hi = pack8(vals)
            a(f"s_mov_b32 s76, {hex(lo)}\ns_mov_b32 s77, {hex(hi)}")
            a(f"s_lshr_b64 s[76:77], s[76:77], s78\ns_and_b32 s{dst}, s76, 0xff")
        a(f"s_lshl_b32 s78, s{sKVH}, 3")
        table(cq, 40); table([cq[x] + c1[x] for x in range(8)], 41); table([cq[x] + c1[x] + c2[x] for x in range(8)], 42)
        table(pref(cq), 43)
        table([(pref(c1)[x] - cq[x]) & 0xff for x in range(8)], 44)
        table([(pref(c2)[x] - cq[x] - c1[x]) & 0xff for x in range(8)], 46)
        a("v_lshrrev_b32 v1, 3, v0\nv_bfe_u32 v3, v0, 4, 1\nv_lshlrev_b32 v3, 1, v3\nv_and_b32 v2, 7, v0\nv_xor_b32 v2, v2, v3\nv_lshlrev_b32 v2, 4, v2")
        if 'helpers' in o.skip:
            self.after_karg()
            srd(a, 48, sWS, WS_SIZE)
            a("s_barrier\ns_branch L_h_tail")
        a(f"s_cmp_lt_u32 s{sJ}, s40\ns_cbranch_scc1 L_h_q")
        a(f"s_cmp_lt_u32 s{sJ}, s41\ns_cbranch_scc1 L_h_m1")
        a(f"s_cmp_lt_u32 s{sJ}, s42\ns_cbranch_scc1 L_h_m2")
        a("s_mov_b32 s45, 3")
        self.after_karg()
        srd(a, 48, sWS, WS_SIZE)
        a("s_barrier")
        self.tag_setup()
        a("s_branch L_h_qgather")
        a("L_h_q:")
        a(f"s_add_u32 s47, s43, s{sJ}\ns_and_b32 s47, s47, 0xff")
        a(f"s_lshl_b32 s40, s47, 7")
        a("s_mov_b32 s41, 8192")
        a(f"s_mov_b32 s42, {L_X}")
        a(f"s_lshr_b32 s43, s47, 3\ns_lshl_b32 s43, s43, 14\ns_and_b32 s76, s47, 7\ns_lshl_b32 s76, s76, 8\ns_add_u32 s43, s43, s76\ns_add_u32 s43, s43, {WS_QP}")
        a("s_mov_b32 s44, 2048\ns_mov_b32 s45, 0\ns_mov_b32 s46, 64")
        self.after_karg()
        srd(a, 52, sWQ, 448 * 8192)
        a("s_branch L_h_tile")
        a("L_h_m1:")
        a(f"s_add_u32 s47, s44, s{sJ}\ns_and_b32 s47, s47, 0xff")
        a(f"s_lshl_b32 s40, s47, 7")
        a("s_mov_b32 s41, 3584")
        a(f"s_mov_b32 s42, {L_Y}")
        a(f"s_lshl_b32 s43, s47, 8\ns_add_u32 s43, s43, {WS_HP}")
        a("s_mov_b32 s44, 7168\ns_mov_b32 s45, 1\ns_mov_b32 s46, 64")
        self.after_karg()
        srd(a, 52, sW1, 448 * 3584)
        a("s_branch L_h_tile")
        a("L_h_m2:")
        a(f"s_add_u32 s47, s46, s{sJ}\ns_and_b32 s47, s47, 0xff")
        a(f"s_and_b32 s76, s47, 7\ns_lshr_b32 s77, s47, 3")
        a(f"s_mul_i32 s40, s76, {224*896}\ns_lshl_b32 s78, s77, 7\ns_add_u32 s40, s40, s78")
        a("s_mov_b32 s41, 896")
        a(f"s_mov_b32 s42, {L_Y}")
        a(f"s_lshl_b32 s43, s77, 12\ns_lshl_b32 s78, s76, 7\ns_add_u32 s43, s43, s78\ns_add_u32 s43, s43, {WS_MP}")
        a(f"s_mov_b32 s44, {28*1024}\ns_mov_b32 s45, 2\ns_mov_b32 s46, 1024")
        self.after_karg()
        srd(a, 52, sW2, 1792 * 896)
        a("L_h_tile:")
        if 'faketile' in o.skip:
            a("s_mov_b32 s41, 128\ns_mul_i32 s40, s47, 28672")
        if 'fakeA' in o.skip:
            a("s_cmp_eq_u32 s45, 0\ns_cselect_b32 s41, 8064, s41")
        if 'fakeB' in o.skip:
            a("s_cmp_eq_u32 s45, 0\ns_cbranch_scc0 L_fb")
            a("v_lshrrev_b32 v1, 4, v0\nv_and_b32 v2, 15, v0\nv_lshlrev_b32 v2, 4, v2")
            a("s_lshr_b32 s40, s47, 1\ns_lshl_b32 s40, s40, 8\ns_and_b32 s75, s47, 1\ns_mul_i32 s75, s75, 1835008\ns_add_u32 s40, s40, s75")
            a("s_mov_b32 s41, 4096")
            a("v_lshlrev_b32 v1, 1, v1")
            a("L_fb:")
        if 'notile' in o.skip:
            a("s_mov_b32 s41, 0\ns_mov_b32 s40, 0")
        a("v_mul_lo_u32 v1, v1, s41")
        a(f"s_cmp_eq_u32 s45, 2\ns_cselect_b32 s75, s{sW}, 0\ns_and_b32 s75, s75, 1\ns_lshl_b32 s75, s75, 6")
        a("v_xor_b32 v2, s75, v2\nv_xor_b32 v6, 64, v2\nv_add_u32 v6, v1, v6\nv_add_u32 v1, v1, v2")
        a("s_cmp_eq_u32 s45, 2\ns_cselect_b32 s75, 56, 112")
        a(f"s_mul_i32 s75, s75, s{sW}")
        a("s_lshl_b32 s76, s75, 7")
        a("s_mul_i32 s75, s75, s41\ns_add_u32 s75, s75, s40")
        a("s_lshl_b32 s77, s41, 3")
        a("s_cmp_eq_u32 s45, 2\ns_cbranch_scc1 L_h_nox")
        srd(a, 56, sX, 7168)
        a("v_lshlrev_b32 v3, 4, v0")
        a(f"s_lshl_b32 s78, s{sW}, 1\ns_mul_i32 s79, s78, {XP}\ns_mul_i32 s78, s78, 896")
        self.setexec(0xffffffff, 0x00ffffff)
        a(f"s_add_u32 m0, s79, {L_X}")
        a("buffer_load_dwordx4 v3, s[56:59], s78 offen lds" if 'nodma' not in o.skip else "s_nop 0")
        a(f"s_add_u32 s78, s78, 896\ns_add_u32 m0, s79, {L_X + XP}")
        a("buffer_load_dwordx4 v3, s[56:59], s78 offen lds" if 'nodma' not in o.skip else "s_nop 0")
        a("s_mov_b64 exec, -1")
        a("L_h_nox:")
        def tl(i):
            if 'nodma' in o.skip: return
            a(f"s_add_u32 m0, s76, {L_TILE + 1024*i}")
            a(f"buffer_load_dwordx4 v{1 if i % 2 == 0 else 6}, s[52:55], s75 offen nt lds")
            a("s_add_u32 s75, s75, s77")
        for i in range(o.hpre):
            tl(i)
        srd(a, 48, sWS, WS_SIZE)
        a("s_barrier")
        for i in range(o.hpre, 7):
            tl(i)
        a("s_cmp_eq_u32 s45, 2\ns_cbranch_scc1 L_h_m2q")
        for i in range(7, 14):
            tl(i)
        self.stamp(1)
        self.tag_setup()
        a("s_cmp_eq_u32 s45, 1\ns_cbranch_scc0 L_h_nob1")
        srd(a, 56, sB1, 3584)
        a(f"v_and_b32 v3, 15, v0\nv_lshlrev_b32 v3, 1, v3\ns_lshl_b32 s78, s47, 7\ns_lshl_b32 s79, s{sW}, 5\ns_add_u32 s78, s78, s79")
        a("buffer_load_ushort v98, v3, s[56:59], s78 offen")
        a("L_h_nob1:")
        a("s_waitcnt vmcnt(0)")
        self.lds_signal(C_A0, 3, 4)
        self.lds_wait(C_A0, 4, 3, 4)
        a("s_cmp_eq_u32 s45, 0\ns_cbranch_scc1 L_h_mm")
        self.layernorm()
        a("s_waitcnt lgkmcnt(0)")
        self.lds_signal(C_A1, 3, 4)
        self.lds_wait(C_A1, 4, 3, 4)
        a("s_branch L_h_mm")
        a("L_h_m2q:")
        self.stamp(1)
        self.tag_setup()
        self.qgather()
        self.hgather()
        a("s_waitcnt lgkmcnt(0)")
        self.lds_signal(C_A1, 3, 4)
        self.lds_wait(C_A1, 4, 3, 4)
        a("L_h_mm:")
        self.stamp(2)
        BF, AF = 8, 40
        self.tr_addr(L_TILE)
        a(f"v_and_b32 v2, 7, v0\nv_mul_u32_u24 v2, {XP}, v2\nv_lshrrev_b32 v3, 4, v0\nv_lshl_add_u32 v2, v3, 4, v2\nv_add_u32 v2, s42, v2")
        def rd(m):
            b = BF + 4 * (m % 7); af = AF + 4 * (m % 7)
            a(f"ds_read_b64_tr_b16 v[{b}:{b+1}], v1 offset:{4096*m}")
            a(f"ds_read_b64_tr_b16 v[{b+2}:{b+3}], v1 offset:{4096*m+512}")
            a(f"ds_read_b128 v[{af}:{af+3}], v2 offset:{64*m}")
        def mm(m):
            b = BF + 4 * (m % 7); af = AF + 4 * (m % 7)
            a(f"v_mfma_f32_16x16x32_bf16 v[4:7], v[{af}:{af+3}], v[{b}:{b+3}], {'0' if m == 0 else 'v[4:7]'}")
        for m in range(4):
            rd(m)
        for m in range(7):
            if m + 4 < 7:
                a("s_waitcnt lgkmcnt(9)"); mm(m); rd(m + 4)
            else:
                a(f"s_waitcnt lgkmcnt({3*(6-m)})"); mm(m)
        a("s_cmp_eq_u32 s45, 2\ns_cbranch_scc1 L_h_pub2")
        for m in range(7, 11):
            rd(m)
        for m in range(7, 14):
            if m + 4 < 14:
                a("s_waitcnt lgkmcnt(9)"); mm(m); rd(m + 4)
            else:
                a(f"s_waitcnt lgkmcnt({3*(13-m)})"); mm(m)
        a(f"s_mul_i32 s75, s{sW}, s46\ns_add_u32 s43, s43, s75")
        a("s_cmp_eq_u32 s45, 0\ns_cbranch_scc1 L_h_pubq")
        a("s_nop 7")
        a("v_lshlrev_b32 v98, 16, v98")
        for r in range(4):
            self.bf16_round(4 + r, 4 + r)
            a(f"v_add_f32 v{4+r}, v{4+r}, v98")
            self.bf16_round(4 + r, 4 + r)
        for r in range(4):
            self.gelu(4 + r, 8 + 2 * r, 9 + 2 * r)
        a("L_h_pubq:")
        a("s_nop 7")
        self.publish_bf16(4, 43, 44, 70)
        self.stamp(3)
        a("s_branch L_h_qgather")
        a("L_h_pub2:")
        a(f"s_mul_i32 s75, s{sW}, s46\ns_add_u32 s43, s43, s75")
        a("s_nop 7")
        self.publish_f32(4, 43, 44, 70)
        self.stamp(3)
        a("s_branch L_h_wo")
        a("L_h_qgather:")
        self.qgather()
        a("L_h_wo:")
        self.stamp(4)
        WB = 100
        a(f"s_cmp_eq_u32 s{sJJ}, 255\ns_cbranch_scc1 L_h_tail")
        a(f"s_cmp_lg_u32 s{sW}, 3\ns_cbranch_scc1 L_h_noprep")
        if 'nofin' not in o.skip:
            self.finalprep()
        a("L_h_noprep:")
        a(f"s_setprio {o.woprio}")
        srd(a, 60, sWO, 4096 * 896)
        a(f"s_and_b32 s75, s{sJJ}, 3\ns_lshl_b32 s75, s75, 7\ns_lshl_b32 s76, s{sKVH}, 9\ns_add_u32 s75, s75, s76")
        a(f"s_lshl_b32 s76, s{sW}, 5\ns_add_u32 s75, s75, s76\ns_mul_i32 s75, s75, 896")
        a(f"s_lshr_b32 s76, s{sJJ}, 2\ns_lshl_b32 s76, s76, 7\ns_add_u32 s75, s75, s76")
        a("v_lshrrev_b32 v1, 3, v0\nv_mul_u32_u24 v1, 896, v1\nv_bfe_u32 v3, v0, 4, 1\nv_lshlrev_b32 v3, 1, v3\nv_and_b32 v2, 7, v0\nv_xor_b32 v2, v2, v3\nv_lshlrev_b32 v2, 4, v2")
        a("v_xor_b32 v6, 64, v2\nv_add_u32 v6, v1, v6\nv_add_u32 v1, v1, v2")
        a(f"s_lshl_b32 s76, s{sW}, 12")
        for i in range(4):
            if 'nowo' in o.skip: break
            a(f"s_add_u32 m0, s76, {L_WO + 1024*i}")
            a(f"buffer_load_dwordx4 v{1 if i % 2 == 0 else 6}, s[60:63], s75 offen nt lds")
            if i < 3:
                a(f"s_add_u32 s75, s75, {8*896}")
        a("s_setprio 3")
        self.tr_addr(L_WO)
        a(f"s_lshr_b32 s75, s{sJJ}, 2\ns_lshl_b32 s75, s75, 2\ns_add_u32 s75, s75, s{sW}\ns_lshl_b32 s43, s75, 12")
        a(f"s_lshl_b32 s75, s{sKVH}, 2\ns_and_b32 s76, s{sJJ}, 3\ns_add_u32 s75, s75, s76\ns_lshl_b32 s75, s75, 7")
        a(f"s_add_u32 s43, s43, s75\ns_add_u32 s43, s43, {WS_BP}\ns_mov_b32 s44, {28*4096}")
        a(f"v_and_b32 v2, 7, v0\nv_mul_u32_u24 v2, 272, v2\nv_lshrrev_b32 v3, 4, v0\nv_lshl_add_u32 v2, v3, 4, v2\nv_add_u32 v2, {L_A}, v2")
        self.stamp(5)
        a("s_barrier")
        if 'tail' in o.skip:
            a("s_barrier\ns_branch L_fin")
        a("s_waitcnt vmcnt(0)")
        self.lds_signal(C_WO, 3, 4)
        self.lds_wait(C_WO, 4, 3, 4)
        for m in range(4):
            a(f"ds_read_b64_tr_b16 v[{WB+4*m}:{WB+4*m+1}], v1 offset:{4096*m}")
            a(f"ds_read_b64_tr_b16 v[{WB+4*m+2}:{WB+4*m+3}], v1 offset:{4096*m+512}")
        a("v_lshrrev_b32 v70, 4, v0\nv_lshlrev_b32 v70, 2, v70\nv_mul_lo_u32 v70, v70, s44\nv_and_b32 v71, 15, v0\nv_lshl_add_u32 v70, v71, 3, v70")
        a(f"v_mov_b32 v71, s{sT8}")
        for r in range(4):
            a(f"v_mov_b32 v{73+2*r}, s{sT}\ns_mul_i32 s{76+r}, s44, {r}\ns_add_u32 s{76+r}, s{76+r}, s43")
        a("s_waitcnt lgkmcnt(0)")
        self.stamp(6)
        a("s_barrier")
        for m in range(4):
            a(f"ds_read_b128 v[{40+4*m}:{40+4*m+3}], v2 offset:{64*m}")
        for m in range(4):
            a(f"s_waitcnt lgkmcnt({3-m})")
            a(f"v_mfma_f32_16x16x32_bf16 v[4:7], v[{40+4*m}:{40+4*m+3}], v[{WB+4*m}:{WB+4*m+3}], {'0' if m == 0 else 'v[4:7]'}")
        self.setexec(0xffffffff, 0)
        for r in range(4):
            a(f"v_and_or_b32 v{72+2*r}, v{4+r}, s{sFF00}, v71")
            a(f"buffer_store_dwordx2 v[{72+2*r}:{73+2*r}], v70, {SRD_WS}, s{76+r} offen @POL@")
        self.stamp(7)
        a("s_branch L_fin")
        a("L_h_tail:")
        self.stamp(5)
        a("s_barrier\ns_barrier")
        a("s_branch L_fin")

    def tr_addr(self, lbase):
        a = self.a
        a("v_lshrrev_b32 v1, 4, v0\nv_lshlrev_b32 v1, 3, v1\nv_bfe_u32 v2, v0, 2, 2\nv_add_u32 v1, v1, v2\nv_lshlrev_b32 v1, 7, v1")
        a("v_bfe_u32 v2, v0, 3, 2")
        a(f"v_xor_b32 v2, s{sW}, v2\nv_lshl_add_u32 v1, v2, 5, v1")
        a(f"v_and_b32 v2, 3, v0\nv_lshl_add_u32 v1, v2, 3, v1\nv_add_u32 v1, {lbase}, v1")

    def qgather(self):
        a = self.a
        a(f"s_lshl_b32 s75, s{sKVH}, 3\ns_add_u32 s75, s75, s{sB}\ns_lshl_b32 s75, s75, 11\ns_lshl_b32 s76, s{sW}, 9\ns_add_u32 s75, s75, s76")
        a(f"s_add_u32 s75, s75, {WS_QP}")
        a("v_lshlrev_b32 v1, 3, v0")
        a("s_add_u32 s76, s75, 248")
        self.spoll(76, [(2, 60, 0), (2, 62, 256)], [61, 63], self.o.ssleep, name='q')
        def lq():
            a(f"buffer_load_dwordx2 v[8:9], v1, {SRD_WS}, s75 offen @POL@")
        self.poll(lq, [8], 5, 6, 7, sleep=self.o.qsleep, name='q', width=2, t8=False)
        a(f"s_lshl_b32 s75, s{sW}, 8\ns_add_u32 s75, s75, {L_Q}\nv_lshlrev_b32 v1, 2, v0\nv_add_u32 v1, s75, v1")
        a("ds_write_b32 v1, v8")
        a("s_waitcnt lgkmcnt(0)")
        self.lds_signal(C_Q, 3, 4)

    def layernorm(self):
        a = self.a
        X = 8; F = 16
        a(f"s_lshl_b32 s75, s{sW}, 1\ns_mul_i32 s75, s75, {XP}")
        a(f"v_lshrrev_b32 v1, 5, v0\nv_mul_u32_u24 v1, {XP}, v1\nv_and_b32 v2, 31, v0\nv_mul_u32_u24 v2, 28, v2\nv_add_u32 v1, v1, v2\nv_add_u32 v1, s75, v1")
        a(f"v_add_u32 v2, {L_X}, v1")
        for i in range(3):
            a(f"ds_read2_b32 v[{X+2*i}:{X+2*i+1}], v2 offset0:{2*i} offset1:{2*i+1}")
        a(f"ds_read_b32 v{X+6}, v2 offset:24")
        a("s_waitcnt lgkmcnt(0)")
        for i in range(7):
            a(f"v_lshlrev_b32 v{F+2*i}, 16, v{X+i}\nv_and_b32 v{F+2*i+1}, 0xffff0000, v{X+i}")
        a(f"v_add_f32 v3, v{F}, v{F+1}")
        for i in range(2, 14):
            a(f"v_add_f32 v3, v3, v{F+i}")
        self.row16_reduce("v_add_f32", 3)
        self.swap_reduce("v_add_f32", 3, 4, 16)
        a("v_mul_f32 v3, 0x3b124925, v3")
        a(f"v_sub_f32 v5, v{F}, v3\nv_mul_f32 v4, v5, v5")
        for i in range(1, 14):
            a(f"v_sub_f32 v5, v{F+i}, v3\nv_fmac_f32 v4, v5, v5")
        self.row16_reduce("v_add_f32", 4)
        self.swap_reduce("v_add_f32", 4, 5, 16)
        a("v_mul_f32 v4, 0x3b124925, v4")
        self.bf16_round(3, 3)
        self.bf16_round(4, 4)
        a("v_add_f32 v4, 0x3727c5ac, v4")
        self.bf16_round(4, 4)
        a("v_sqrt_f32 v4, v4")
        self.bf16_round(4, 4)
        a("v_rcp_f32 v4, v4")
        a(f"v_add_u32 v2, {L_Y}, v1")
        for i in range(7):
            a(f"v_sub_f32 v{F+2*i}, v{F+2*i}, v3\nv_sub_f32 v{F+2*i+1}, v{F+2*i+1}, v3")
            a(f"v_cvt_pk_bf16_f32 v5, v{F+2*i}, v{F+2*i+1}")
            a(f"v_lshlrev_b32 v6, 16, v5\nv_and_b32 v5, 0xffff0000, v5")
            a(f"v_mul_f32 v6, v6, v4\nv_mul_f32 v5, v5, v4")
            a(f"v_cvt_pk_bf16_f32 v{X+i}, v6, v5")
            a(f"ds_write_b32 v2, v{X+i} offset:{4*i}")

    def gelu(self, x, t0, t1):
        a = self.a
        a(f"v_mul_f32 v{t0}, v{x}, v{x}")
        a(f"v_mov_b32 v{t1}, 0xc0135761")
        a(f"v_fmac_f32 v{t1}, 0xbdd2d3e2, v{t0}")
        a(f"v_mul_f32 v{t1}, v{t1}, v{x}")
        a(f"v_exp_f32 v{t1}, v{t1}")
        a(f"v_add_f32 v{t1}, 1.0, v{t1}")
        a(f"v_rcp_f32 v{t1}, v{t1}")
        a(f"v_mul_f32 v{x}, v{x}, v{t1}")

    def hgather(self):
        a = self.a
        a(f"s_lshl_b32 s75, s{sW}, 1\ns_mul_i32 s76, s75, 7168\ns_mul_i32 s77, s75, {XP}")
        a(f"s_and_b32 s78, s47, 7\ns_mul_i32 s78, s78, 896\ns_add_u32 s76, s76, s78\ns_add_u32 s76, s76, {WS_HP}")
        a(f"s_add_u32 s77, s77, {L_Y}")
        a("v_cmp_le_u32 vcc, 56, v0\nv_subrev_u32 v56, 56, v0\nv_cndmask_b32 v56, v0, v56, vcc\nv_cndmask_b32 v57, 0, 1, vcc")
        a("v_min_u32 v58, 47, v0\nv_add_u32 v58, 8, v58")
        a("v_lshlrev_b32 v60, 4, v56\nv_mul_u32_u24 v59, 7168, v57\nv_add_u32 v60, v60, v59")
        a("v_lshlrev_b32 v61, 4, v58\nv_add_u32 v61, 7168, v61")
        a(f"v_lshlrev_b32 v62, 3, v56\nv_mul_u32_u24 v59, {XP}, v57\nv_add_u32 v62, v62, v59\nv_add_u32 v62, s77, v62")
        a(f"v_lshlrev_b32 v63, 3, v58\nv_add_u32 v63, {XP}, v63\nv_add_u32 v63, s77, v63")
        def lh():
            a(f"buffer_load_dwordx4 v[8:11], v60, {SRD_WS}, s76 offen @POL@")
            a(f"buffer_load_dwordx4 v[12:15], v61, {SRD_WS}, s76 offen @POL@")
        def pre_h():
            a(f"buffer_load_dwordx4 v[12:15], v61, {SRD_WS}, s76 offen @POL@")
        a("s_add_u32 s75, s76, 7168")
        self.spoll(75, [(2, 60, 0), (2, 62, 256), (2, 64, 512), (2, 66, 768), (2, 68, 888)], [61, 63, 65, 67, 69], self.o.ssleep, name='h')
        self.poll(lh, [8, 12], 5, 6, 7, sleep=8, name='h', width=4, t8=False)
        a("v_mov_b32 v9, v10\nv_mov_b32 v13, v14")
        a("ds_write_b64 v62, v[8:9]\nds_write_b64 v63, v[12:13]")

    def finalprep(self):
        a = self.a
        srd(a, 56, sX, 7168)
        a(f"s_mul_i32 s75, s{sKVH}, 896")
        a("v_lshlrev_b32 v3, 4, v0")
        a("v_mov_b32 v8, 0\nv_mov_b32 v9, 0\nv_mov_b32 v10, 0\nv_mov_b32 v11, 0")
        self.setexec(0xffffffff, 0x00ffffff)
        a("buffer_load_dwordx4 v[8:11], v3, s[56:59], s75 offen")
        a("s_mov_b64 exec, -1")
        srd(a, 56, sGW, 896)
        a("buffer_load_dwordx4 v[12:15], v3, s[56:59], 0 offen")
        srd(a, 56, sB2, 896)
        a(f"s_lshl_b32 s75, s{sJJ}, 5")
        a("v_and_b32 v4, 7, v0\nv_lshlrev_b32 v4, 2, v4")
        a("buffer_load_dword v16, v4, s[56:59], s75 offen")
        a("s_waitcnt vmcnt(0)")
        a("v_mov_b32 v24, 0")
        for i in range(4):
            a(f"v_lshlrev_b32 v25, 16, v{8+i}\nv_lshlrev_b32 v26, 16, v{12+i}\nv_mul_f32 v25, v25, v26")
            a(f"v_and_b32 v26, 0xffff0000, v{8+i}\nv_and_b32 v27, 0xffff0000, v{12+i}\nv_mul_f32 v26, v26, v27")
            a("v_cvt_pk_bf16_f32 v25, v25, v26")
            a("v_lshlrev_b32 v26, 16, v25\nv_and_b32 v25, 0xffff0000, v25\nv_add_f32 v24, v24, v26\nv_add_f32 v24, v24, v25")
        self.row16_reduce("v_add_f32", 24)
        self.swap_reduce("v_add_f32", 24, 25, 16)
        self.swap_reduce("v_add_f32", 24, 25, 32)
        self.bf16_round(24, 24)
        a("v_mul_f32 v24, 0xbfb8aa3b, v24\nv_exp_f32 v24, v24\nv_add_f32 v24, 1.0, v24\nv_rcp_f32 v24, v24")
        self.bf16_round(24, 24)
        a("v_sub_f32 v25, 1.0, v24")
        self.bf16_round(25, 25)
        a("v_lshlrev_b32 v28, 16, v16\nv_and_b32 v29, 0xffff0000, v16")
        a(f"v_lshlrev_b32 v4, 1, v4\nv_add_u32 v4, {L_FIN}, v4\nv_mov_b32 v5, {L_FIN+64}")
        self.setexec(0xff, 0)
        a("ds_write_b64 v4, v[28:29]")
        self.setexec(1, 0)
        a("ds_write_b64 v5, v[24:25]")
        a("s_mov_b64 exec, -1")
        a("s_waitcnt lgkmcnt(0)")

    def build(self):
        a = self.a
        self.prologue()
        self.streaming()
        self.helper()
        a("L_fin:")
        self.dump_stamps()
        a("L_end:")
        a("s_endpgm")
        body = a.text()
        body = "\n".join((l.replace("@POL@", self.o.stpol) if "buffer_store" in l else l.replace("@POL@", self.o.ldpol)) for l in body.split("\n"))
        hdr = open("cdna_kernels/" + NAME + ".s.ref").read().split("; Override launch geometry")[0]
        out = hdr
        out += "; Override launch geometry by editing the next line (default: block=256,\n"
        out += f"; @launch grid=(256,1,1) block=(768,1,1) lds={LDS_BYTES}\n"
        out += '.amdgcn_target "amdgcn-amd-amdhsa--gfx950"\n.text\n'
        out += f".globl {KNAME}\n.p2align 8\n.type {KNAME},@function\n{KNAME}:\n"
        out += body
        out += f""".section .rodata,"a"
.p2align 6
.amdhsa_kernel {KNAME}
  .amdhsa_next_free_vgpr 168
  .amdhsa_next_free_sgpr 102
  .amdhsa_accum_offset 168
  .amdhsa_group_segment_fixed_size 0
  .amdhsa_kernarg_size 112
  .amdhsa_user_sgpr_count 2
  .amdhsa_user_sgpr_kernarg_segment_ptr 1
  .amdhsa_system_sgpr_workgroup_id_x 1
.end_amdhsa_kernel
"""
        return out

def parse(argv):
    p = argparse.ArgumentParser()
    p.add_argument("-o", default="cdna_kernels/" + NAME + ".s")
    p.add_argument("--stamps", action="store_true")
    p.add_argument("--dbgtime", action="store_true")
    p.add_argument("--rot", default="1,1,1,0")
    p.add_argument("--skip", default="")
    p.add_argument("--ldpol", default="sc1")
    p.add_argument("--stpol", default="sc1")
    p.add_argument("--npre", type=int, default=2)
    p.add_argument("--kmap", default="contig")
    p.add_argument("--order", default="kv")
    p.add_argument("--sprio", default="")
    p.add_argument("--hpre", type=int, default=4)
    p.add_argument("--woprio", type=int, default=0)
    p.add_argument("--qsleep", type=int, default=8)
    p.add_argument("--ssleep", type=int, default=2)
    p.add_argument("--cntq", default="16,0,16,0,16,0,16,0")
    p.add_argument("--cnt1", default="4,3,4,3,4,3,4,3")
    p.add_argument("--cnt2", default="2,12,2,12,2,12,2,12")
    o = p.parse_args(argv)
    o.rot = tuple(int(x) for x in o.rot.split(","))
    o.skip = set(x for x in o.skip.split(",") if x)
    for k in ("cntq", "cnt1", "cnt2"):
        setattr(o, k, [int(x) for x in getattr(o, k).split(",")])
    return o

if __name__ == "__main__":
    o = parse(sys.argv[1:])
    open(o.o, "w").write(Gen(o).build())
    print("wrote", o.o)
```

```python
import sys, argparse
from emit import Asm

NAME = "gated_mix__sliding_block_cached__mixer_channel_mlp__decode"
KNAME = NAME + "_kernel"

WS_QP = 0x100000
WS_HP = 0x180000
WS_OP = 0x200000
WS_ST = 0x300000
WS_BP = 0x400000
WS_MP = 0x500000
WS_XI = 0x5c0000
WS_DBG = 0x600000
WS_SIZE = 0x800000

L_TILE = 0
XP = 928
L_X = 57344
L_Y = 64768
L_WO = 72192
L_Q = 88576
L_P = 89600
L_OP = 90624
L_ST = 107008
L_A = 107136
L_FIN = 109312
L_CNT = 109440
L_SH = 109568
LDS_BYTES = 111616
C_A0, C_A1, C_WO, C_Q = 0, 4, 8, 12

SPIN_LIMIT = 20000

sX, sK, sV, sWQ, sWO, sW1, sB1, sW2, sB2, sGW, sOUT, sDBG, sWS = 4, 6, 8, 10, 12, 16, 18, 20, 22, 24, 26, 28, 30
sT, sT8, sT88 = 32, 33, 34
sKVH, sJ, sB, sS, sJJ = 35, 36, 37, 38, 39
SRD_WS = "s[48:51]"
sFF00 = 72
sPSEL = 73
sW = 74
STAMP0 = 84
DPP = "row_mask:0xf bank_mask:0xf"

def srd(a, base, ptr, nbytes):
    a(f"s_mov_b32 s{base}, s{ptr}")
    a(f"s_and_b32 s{base+1}, s{ptr+1}, 0xffff")
    a(f"s_mov_b32 s{base+2}, {nbytes}")
    a(f"s_mov_b32 s{base+3}, 0x20000")

def pack8(vals):
    v = 0
    for i, x in enumerate(vals):
        assert 0 <= x < 256
        v |= x << (8 * i)
    return v & 0xffffffff, v >> 32

class Gen:
    def __init__(self, opt):
        self.o = opt
        self.a = Asm()

    def stamp(self, idx):
        if self.o.stamps:
            self.a("s_memrealtime s[100:101]")
            self.a("s_waitcnt lgkmcnt(0)")
            self.a(f"s_mov_b32 s{STAMP0+idx}, s100")

    def dump_stamps(self):
        if not self.o.stamps:
            return
        a = self.a
        if self.o.dbgtime:
            a("s_mov_b64 exec, -1")
            srd(a, 60, sDBG, 256)
            a(f"s_not_b32 s{STAMP0}, s{STAMP0}")
            a("v_mov_b32 v1, 0")
            for i in range(16):
                a(f"v_writelane_b32 v1, s{STAMP0+i}, {i}")
            a("s_memrealtime s[100:101]\ns_waitcnt lgkmcnt(0)")
            a("v_writelane_b32 v1, s100, 15")
            a("v_mbcnt_lo_u32_b32 v2, -1, 0\nv_mbcnt_hi_u32_b32 v2, -1, v2\nv_lshlrev_b32 v2, 2, v2")
            a("s_cmp_ge_u32 s3, 8\ns_cselect_b32 s80, 64, 0")
            a("s_mov_b32 exec_lo, 0xffff\ns_mov_b32 exec_hi, 0")
            a("buffer_atomic_umax v1, v2, s[60:63], s80 offen")
            a("s_waitcnt vmcnt(0)")
            return
        a("s_mov_b64 exec, -1")
        a("s_lshl_b32 s80, s2, 4\ns_add_u32 s80, s80, s3\ns_lshl_b32 s80, s80, 6")
        a(f"s_add_u32 s80, s80, {WS_DBG}")
        a("v_mov_b32 v1, 0")
        for i in range(16):
            a(f"v_writelane_b32 v1, s{STAMP0+i}, {i}")
        a("v_mbcnt_lo_u32_b32 v2, -1, 0\nv_mbcnt_hi_u32_b32 v2, -1, v2\nv_lshlrev_b32 v2, 2, v2")
        a("s_mov_b32 exec_lo, 0xffff\ns_mov_b32 exec_hi, 0")
        a(f"buffer_store_dword v1, v2, {SRD_WS}, s80 offen")
        a("s_waitcnt vmcnt(0)")

    def setexec(self, lo, hi):
        self.a(f"s_mov_b32 exec_lo, {hex(lo)}\ns_mov_b32 exec_hi, {hex(hi)}")

    def lds_signal(self, cnt_off, v0, v1):
        a = self.a
        a(f"v_mov_b32 v{v0}, {L_CNT + cnt_off}")
        a(f"v_mov_b32 v{v1}, 1")
        self.setexec(1, 0)
        a(f"ds_add_u32 v{v0}, v{v1}")
        a("s_mov_b64 exec, -1")

    def lds_wait(self, cnt_off, target, v0, v1, sleep=1):
        a = self.a
        L = a.label("lw"); Ld = a.label("lwd")
        a(f"v_mov_b32 v{v0}, {L_CNT + cnt_off}")
        a(f"s_mov_b32 s81, 0")
        a(f"{L}:")
        a(f"ds_read_b32 v{v1}, v{v0}")
        a("s_waitcnt lgkmcnt(0)")
        a(f"v_readfirstlane_b32 s80, v{v1}")
        a(f"s_cmp_ge_u32 s80, {target}")
        a(f"s_cbranch_scc1 {Ld}")
        a(f"s_add_u32 s81, s81, 1")
        a(f"s_cmp_ge_u32 s81, {SPIN_LIMIT*8}")
        a(f"s_cbranch_scc1 {Ld}")
        a(f"s_sleep {sleep}")
        a(f"s_branch {L}")
        a(f"{Ld}:")

    def check(self, r, width, t8, vbad, vt, vu, first):
        a = self.a
        if width == 2:
            if first:
                a(f"v_xor_b32 v{vbad}, s{sT}, v{r+1}")
            else:
                a(f"v_xor_b32 v{vt}, s{sT}, v{r+1}\nv_or_b32 v{vbad}, v{vbad}, v{vt}")
            assert not t8
            return
        a(f"v_xor_b32 v{vt}, s{sT}, v{r+1}")
        a(f"v_xor_b32 v{vu}, s{sT}, v{r+3}")
        if first:
            a(f"v_or_b32 v{vbad}, v{vt}, v{vu}")
        else:
            a(f"v_or3_b32 v{vbad}, v{vbad}, v{vt}, v{vu}")
        if t8:
            a(f"v_perm_b32 v{vt}, v{r}, v{r+2}, s{sPSEL}")
            a(f"v_xor_b32 v{vt}, s{sT88}, v{vt}")
            a(f"v_or_b32 v{vbad}, v{vbad}, v{vt}")

    def poll(self, loads, regs, vbad, vt, vu, sleep=2, pre=None, name="", width=4, t8=True):
        a = self.a
        if name and ('no_' + name) in self.o.skip:
            return
        if name and ('once_' + name) in self.o.skip:
            loads()
            a("s_waitcnt vmcnt(0)")
            return
        if name and ('nopre_' + name) in self.o.skip:
            pre = None
        if pre is not None:
            emit, pregs, (lo, hi), psleep = pre
            P = a.label("pre"); Pd = a.label("pred")
            a("s_mov_b32 s81, 0")
            a(f"{P}:")
            self.setexec(lo, hi)
            emit()
            a("s_waitcnt vmcnt(0)")
            for i, r in enumerate(pregs):
                if i == 0:
                    a(f"v_xor_b32 v{vbad}, s{sT}, v{r+1}")
                else:
                    a(f"v_xor_b32 v{vt}, s{sT}, v{r+1}\nv_or_b32 v{vbad}, v{vbad}, v{vt}")
            a(f"v_cmp_ne_u32 vcc, 0, v{vbad}")
            a("s_mov_b64 exec, -1")
            a(f"s_cbranch_vccz {Pd}")
            a("s_add_u32 s81, s81, 1")
            a(f"s_cmp_ge_u32 s81, {SPIN_LIMIT}")
            a(f"s_cbranch_scc1 {Pd}")
            a(f"s_sleep {psleep}")
            a(f"s_branch {P}")
            a(f"{Pd}:")
        L = a.label("poll"); Ld = a.label("polld")
        a("s_mov_b32 s81, 0")
        a(f"{L}:")
        loads()
        a("s_waitcnt vmcnt(0)")
        for i, r in enumerate(regs):
            self.check(r, width, t8, vbad, vt, vu, i == 0)
        a(f"v_cmp_ne_u32 vcc, 0, v{vbad}")
        a(f"s_cbranch_vccz {Ld}")
        a("s_add_u32 s81, s81, 1")
        a(f"s_cmp_ge_u32 s81, {SPIN_LIMIT}")
        a(f"s_cbranch_scc1 {Ld}")
        a(f"s_sleep {sleep}")
        a(f"s_branch {L}")
        a(f"{Ld}:")
        if t8:
            for r in regs:
                a(f"v_and_b32 v{r}, s{sFF00}, v{r}")
                a(f"v_and_b32 v{r+2}, s{sFF00}, v{r+2}")

    def spoll(self, off_expr, loads, tags, sleep, name="", t8regs=()):
        a = self.a
        if name and (('no_' + name) in self.o.skip or ('once_' + name) in self.o.skip or ('nospoll_' + name) in self.o.skip):
            return
        P = a.label("sp"); Pd = a.label("spd")
        a(f"s_add_u32 s78, s{sWS}, s{off_expr}\ns_addc_u32 s79, s{sWS+1}, 0")
        a("s_mov_b32 s81, 0")
        a(f"{P}:")
        for ndw, dst, imm in loads:
            rng = f"s[{dst}:{dst+ndw-1}]" if ndw > 1 else f"s{dst}"
            a(f"s_load_dword{'x'+str(ndw) if ndw > 1 else ''} {rng}, s[78:79], {imm} glc")
        a("s_waitcnt lgkmcnt(0)")
        for i, t in enumerate(tags):
            if i == 0:
                a(f"s_xor_b32 s80, s{t}, s{sT}")
            else:
                a(f"s_xor_b32 s82, s{t}, s{sT}\ns_or_b32 s80, s80, s82")
        if t8regs:
            a(f"s_xor_b32 s83, s{t8regs[0]}, s{sT8}")
            for t in t8regs[1:]:
                a(f"s_xor_b32 s82, s{t}, s{sT8}\ns_or_b32 s83, s83, s82")
            a("s_and_b32 s83, s83, 0xff\ns_or_b32 s80, s80, s83")
        a(f"s_cmp_eq_u32 s80, 0\ns_cbranch_scc1 {Pd}")
        a("s_add_u32 s81, s81, 1")
        a(f"s_cmp_ge_u32 s81, {SPIN_LIMIT}\ns_cbranch_scc1 {Pd}")
        a(f"s_sleep {sleep}\ns_branch {P}")
        a(f"{Pd}:")

    def bf16_round(self, dst, src):
        a = self.a
        a(f"v_cvt_pk_bf16_f32 v{dst}, v{src}, v{src}")
        a(f"v_and_b32 v{dst}, 0xffff0000, v{dst}")

    def row16_reduce(self, op, v):
        for r in (8, 4, 2, 1):
            self.a(f"{op}_dpp v{v}, v{v}, v{v} row_ror:{r} {DPP}")

    def swap_reduce(self, op, v, t, which):
        a = self.a
        a(f"v_mov_b32 v{t}, v{v}")
        a(f"v_permlane{which}_swap_b32 v{v}, v{t}")
        a(f"{op} v{v}, v{v}, v{t}")

    def prologue(self):
        a = self.a
        a("s_cmp_ge_u32 s2, 256")
        a("s_cbranch_scc1 L_end")
        a("s_load_dwordx16 s[4:19], s[0:1], 0")
        a("s_load_dwordx8 s[20:27], s[0:1], 64")
        a("s_load_dwordx4 s[28:31], s[0:1], 96")
        if self.o.stamps:
            for i in range(16):
                a(f"s_mov_b32 s{STAMP0+i}, 0")
            a("s_memrealtime s[100:101]")
        a("v_lshrrev_b32 v1, 6, v0")
        a("v_and_b32 v0, 63, v0")
        a("v_readfirstlane_b32 s3, v1")
        a(f"s_and_b32 s{sKVH}, s2, 7")
        a(f"s_lshr_b32 s{sJ}, s2, 3")
        a(f"s_and_b32 s{sB}, s{sJ}, 7")
        a(f"s_lshr_b32 s{sS}, s{sJ}, 3")
        a(f"s_sub_u32 s40, s{sJ}, 4")
        a(f"s_cmp_lt_u32 s{sJ}, 4")
        a(f"s_cselect_b32 s{sJJ}, 255, s40")
        a(f"s_mov_b32 s{sFF00}, 0xffffff00")
        a(f"s_mov_b32 s{sPSEL}, 0x0c0c0400")
        a("s_cmp_ge_u32 s3, 8")
        a("s_cbranch_scc1 L_helper")

    def after_karg(self):
        a = self.a
        a("s_waitcnt lgkmcnt(0)")
        if self.o.stamps:
            a(f"s_mov_b32 s{STAMP0}, s100")
        a(f"s_load_dword s{sT}, s[{sWS}:{sWS+1}], 0")

    def tag_setup(self):
        a = self.a
        a("s_waitcnt lgkmcnt(0)")
        a(f"s_add_u32 s{sT}, s{sT}, 1")
        a(f"s_mul_i32 s{sT8}, s{sT}, 0x9E3779B1")
        a(f"s_lshr_b32 s{sT8}, s{sT8}, 24")
        a(f"s_lshl_b32 s{sT88}, s{sT8}, 8")
        a(f"s_or_b32 s{sT88}, s{sT88}, s{sT8}")

    def streaming(self):
        a = self.a; o = self.o
        KD, VD = 8, 72
        QA = 136
        D0 = 144
        XS = 148
        SEL = 156
        vKo, vVo = 1, 2
        a.c("================= streaming wave =================")
        a(f"s_mov_b32 s{sW}, s3")
        a(f"s_lshl_b32 s75, s{sB}, 3\ns_add_u32 s75, s75, s{sKVH}\ns_lshl_b32 s75, s75, 21")
        a(f"s_lshl_b32 s76, s{sS}, 17\ns_add_u32 s75, s75, s76")
        a(f"s_add_u32 s75, s75, 0x180000")
        mb, mk, mw, ms = o.rot
        terms = [(sB, mb), (sKVH, mk), (sW, mw), (sS, ms)]
        a("s_mov_b32 s76, 0")
        for reg, m in terms:
            if m == 1:
                a(f"s_add_u32 s76, s76, s{reg}")
            elif m:
                a(f"s_mul_i32 s77, s{reg}, {m}\ns_add_u32 s76, s76, s77")
        if o.kmap == 'contig':
            a(f"s_lshl_b32 s77, s{sW}, 14\ns_add_u32 s75, s75, s77")
            a("s_and_b32 s76, s76, 7\ns_lshl_b32 s76, s76, 11")
            for t in range(8):
                if t:
                    a(f"s_add_u32 s76, s76, 0x800\ns_and_b32 s76, s76, 0x3fff")
                a(f"s_add_u32 s{40+t}, s76, s75")
        elif o.kmap == 'inter':
            a(f"s_lshl_b32 s77, s{sW}, 11\ns_add_u32 s75, s75, s77")
            a("s_and_b32 s76, s76, 7\ns_lshl_b32 s76, s76, 14")
            for t in range(8):
                if t:
                    a(f"s_add_u32 s76, s76, 0x4000\ns_and_b32 s76, s76, 0x1ffff")
                a(f"s_add_u32 s{40+t}, s76, s75")
        elif o.kmap == 'rot64':
            a(f"s_lshl_b32 s77, s{sW}, 3\ns_add_u32 s76, s76, s77\ns_and_b32 s76, s76, 63\ns_lshl_b32 s76, s76, 11")
            for t in range(8):
                if t:
                    a(f"s_add_u32 s76, s76, 0x800\ns_and_b32 s76, s76, 0x1ffff")
                a(f"s_add_u32 s{40+t}, s76, s75")
        a(f"v_lshrrev_b32 v3, 4, v0\nv_lshlrev_b32 v{vKo}, 6, v3")
        a(f"v_bfe_u32 v4, v0, 2, 2\nv_lshl_add_u32 v{vKo}, v4, 9, v{vKo}")
        a(f"v_and_b32 v4, 3, v0\nv_lshl_add_u32 v{vKo}, v4, 4, v{vKo}")
        a(f"v_and_b32 v4, 15, v0\nv_lshlrev_b32 v4, 4, v4\nv_lshl_add_u32 v{vVo}, v3, 9, v4")
        self.after_karg()
        srd(a, 52, sK, 0x8000000)
        def ld(m, isv):
            t, c = m // 2, m % 2
            r = (VD if isv else KD) + 4 * m
            a(f"buffer_load_dwordx4 v[{r}:{r+3}], v{vVo if isv else vKo}, {'s[56:59]' if isv else 's[52:55]'}, s{40+t} offen offset:{c*256} {o.kvpol}")
        npre = o.npre
        if o.sprio == 'kfirst':
            a("s_setprio 1")
        for m in range(npre):
            ld(m, False)
        a("s_barrier")
        srd(a, 56, sV, 0x8000000)
        srd(a, 48, sWS, WS_SIZE)
        if o.sprio == 'young':
            a(f"s_cmp_ge_u32 s{sW}, 4\ns_cbranch_scc0 L_noprio\ns_setprio 1\nL_noprio:")
        for m in range(npre, 16):
            if o.kwin and m >= o.kwin:
                a(f"s_waitcnt vmcnt({o.kwin - 1})")
            ld(m, False)
        if o.sprio == 'kfirst':
            a("s_setprio 0")
        for m in range(16):
            if o.kwin and m < o.vwin_n:
                a(f"s_waitcnt vmcnt({o.kwin - 1})")
            ld(m, True)
        self.stamp(1)
        self.tag_setup()
        for base, val in ((64, 0x22222222), (66, 0x44444444), (68, 0x88888888)):
            a(f"s_mov_b32 s{base}, {hex(val)}\ns_mov_b32 s{base+1}, {hex(val)}")
        a("s_mov_b32 s70, 0\ns_mov_b32 s71, -1")
        vQ, vPw, vPr, vOw = 3, 4, 5, 6
        a(f"v_lshrrev_b32 v7, 4, v0\nv_lshlrev_b32 v{vQ}, 6, v7")
        a(f"v_bfe_u32 v164, v0, 2, 1\nv_lshl_add_u32 v{vQ}, v164, 9, v{vQ}")
        a(f"v_and_b32 v164, 3, v0\nv_lshl_add_u32 v{vQ}, v164, 4, v{vQ}")
        a(f"v_add_u32 v{vQ}, {L_Q}, v{vQ}")
        a(f"s_lshl_b32 s77, s{sW}, 7\ns_add_u32 s77, s77, {L_P}")
        a(f"v_bfe_u32 v164, v0, 2, 3\nv_lshlrev_b32 v{vPw}, 4, v164")
        a(f"v_lshrrev_b32 v164, 5, v0\nv_lshl_add_u32 v{vPw}, v164, 3, v{vPw}")
        a(f"v_and_b32 v164, 3, v0\nv_lshl_add_u32 v{vPw}, v164, 1, v{vPw}")
        a(f"v_add_u32 v{vPw}, s77, v{vPw}")
        a(f"v_bfe_u32 v164, v0, 3, 1\nv_lshlrev_b32 v{vPr}, 6, v164")
        a(f"v_lshl_add_u32 v{vPr}, v7, 4, v{vPr}\nv_add_u32 v{vPr}, s77, v{vPr}")
        a(f"s_lshl_b32 s77, s{sW}, 11\ns_add_u32 s77, s77, {L_OP}")
        a(f"v_lshrrev_b32 v164, 5, v0\nv_lshlrev_b32 v{vOw}, 10, v164")
        a(f"v_and_b32 v164, 15, v0\nv_lshl_add_u32 v{vOw}, v164, 5, v{vOw}")
        a(f"v_bfe_u32 v164, v0, 4, 1\nv_lshl_add_u32 v{vOw}, v164, 4, v{vOw}")
        a(f"v_add_u32 v{vOw}, s77, v{vOw}")
        a("v_and_b32 v164, 1, v0\nv_cmp_eq_u32 vcc, 1, v164")
        a("v_mov_b32 v165, 0x0c0c0100\nv_mov_b32 v166, 0x01000c0c\nv_cndmask_b32 v165, v165, v166, vcc")
        a("v_mov_b32 v166, 0x0c0c0302\nv_mov_b32 v167, 0x03020c0c\nv_cndmask_b32 v166, v166, v167, vcc")
        a("v_bfe_u32 v164, v0, 1, 2\nv_mov_b32 v167, 0x0c0c0c0c")
        for j in range(4):
            a(f"v_cmp_eq_u32 vcc, {j}, v164")
            a(f"v_cndmask_b32 v{SEL+j}, v167, v165, vcc")
            a(f"v_cndmask_b32 v{SEL+4+j}, v167, v166, vcc")
        if 'qwait' not in o.skip:
            self.lds_wait(C_Q, 4, 164, 165, sleep=2)
        self.stamp(2)
        a(f"ds_read_b128 v[{QA}:{QA+3}], v{vQ}")
        a(f"ds_read_b128 v[{QA+4}:{QA+7}], v{vQ} offset:256")
        a(f"v_mov_b32 v164, {L_FIN+72}\nds_read_b32 v165, v164")
        a("s_waitcnt lgkmcnt(0)")
        a("v_readfirstlane_b32 s47, v165")
        Dreg = [D0] + [KD + 8 * (t - 1) for t in range(1, 8)]
        for t in range(8):
            a(f"s_waitcnt vmcnt({30 - 2*t})")
            k0, k1 = KD + 8 * t, KD + 8 * t + 4
            d = Dreg[t]
            a(f"v_mfma_f32_16x16x32_bf16 v[{d}:{d+3}], v[{QA}:{QA+3}], v[{k0}:{k0+3}], 0")
            a(f"v_mfma_f32_16x16x32_bf16 v[{d}:{d+3}], v[{QA+4}:{QA+7}], v[{k1}:{k1+3}], v[{d}:{d+3}]")
        self.stamp(3)
        for t in range(8):
            d = Dreg[t]; x = XS + t
            a(f"v_cndmask_b32 v{x}, v{d}, v{d+1}, s[64:65]")
            a(f"v_cndmask_b32 v{x}, v{x}, v{d+2}, s[66:67]")
            a(f"v_cndmask_b32 v{x}, v{x}, v{d+3}, s[68:69]")
        for i in range(4):
            a(f"v_cndmask_b32 v{XS+i}, v{XS+i}, v{XS+4+i}, s[70:71]")
        for i in range(4):
            a(f"v_add_f32_dpp v{XS+i}, v{XS+i}, v{XS+i} quad_perm:[1,0,3,2] {DPP}")
        for i in range(4):
            a(f"v_add_f32_dpp v{XS+i}, v{XS+i}, v{XS+i} quad_perm:[2,3,0,1] {DPP}")
        Z, M_, P_, T_ = XS + 4, XS + 6, XS + 7, XS + 5
        a(f"v_cndmask_b32 v{Z}, v{XS}, v{XS+1}, s[64:65]")
        a(f"v_cndmask_b32 v{Z}, v{Z}, v{XS+2}, s[66:67]")
        a(f"v_cndmask_b32 v{Z}, v{Z}, v{XS+3}, s[68:69]")
        self.bf16_round(Z, Z)
        a(f"v_mul_f32 v{Z}, 0x3db8aa3b, v{Z}")
        a(f"v_mov_b32 v{M_}, v{Z}")
        self.row16_reduce("v_max_f32", M_)
        self.swap_reduce("v_max_f32", M_, T_, 32)
        a(f"v_sub_f32 v{P_}, v{Z}, v{M_}")
        a(f"v_exp_f32 v{P_}, v{P_}")
        a(f"v_cvt_pk_bf16_f32 v{T_}, v{P_}, v{P_}")
        a(f"ds_write_b16 v{vPw}, v{T_}")
        P8 = KD
        a(f"ds_read_b128 v[{P8}:{P8+3}], v{vPr}")
        self.row16_reduce("v_add_f32", P_)
        self.swap_reduce("v_add_f32", P_, XS, 32)
        a(f"s_lshl_b32 s77, s{sW}, 3\ns_add_u32 s77, s77, {L_ST}")
        a(f"v_bfe_u32 v164, v0, 4, 1\nv_lshlrev_b32 v164, 6, v164\nv_add_u32 v164, s77, v164")
        self.setexec(0x10001, 0)
        a(f"ds_write_b64 v164, v[{M_}:{M_+1}]")
        a("s_mov_b64 exec, -1")
        a("s_waitcnt lgkmcnt(1)")
        ACC = QA
        AR = [KD + 8, KD + 12]
        for u in range(8):
            ar = AR[u & 1]
            for j in range(4):
                a(f"v_perm_b32 v{ar+j}, v{P8 + u//2}, v{P8 + u//2}, v{SEL + 4*(u&1) + j}")
            a(f"s_waitcnt vmcnt({14 - 2*u})")
            for c in range(2):
                vb = VD + 8 * u + 4 * c
                acc = ACC + 4 * c
                cin = "0" if u == 0 else f"v[{acc}:{acc+3}]"
                a(f"v_mfma_f32_16x16x32_bf16 v[{acc}:{acc+3}], v[{ar}:{ar+3}], v[{vb}:{vb+3}], {cin}")
        self.stamp(4)
        a(f"s_lshl_b32 s77, s{sW}, 8\ns_add_u32 s77, s77, {L_OP}")
        a(f"v_lshlrev_b32 v3, 2, v0\nv_add_u32 v3, s77, v3")
        a(f"s_lshr_b32 s77, s{sW}, 2\ns_lshl_b32 s77, s77, 6\ns_add_u32 s77, s77, {L_ST}")
        a(f"v_mov_b32 v4, s77")
        a(f"v_mov_b32 v33, s{sT8}\nv_mov_b32 v35, s{sT}\nv_lshlrev_b32 v32, 3, v0")
        a(f"s_lshl_b32 s76, s{sKVH}, 3\ns_add_u32 s76, s76, s{sB}")
        a(f"s_lshl_b32 s78, s76, 2\ns_add_u32 s78, s78, s{sS}\ns_lshl_b32 s78, s78, 12")
        a(f"s_lshl_b32 s79, s{sW}, 9\ns_add_u32 s78, s78, s79\ns_add_u32 s78, s78, {WS_OP}")
        a(f"ds_write_b128 v{vOw}, v[{ACC}:{ACC+3}]")
        a(f"ds_write_b128 v{vOw}, v[{ACC+4}:{ACC+7}] offset:512")
        a("s_waitcnt lgkmcnt(0)")
        a("s_barrier")
        self.stamp(5)
        if 'tail' in o.skip:
            a("s_barrier\ns_branch L_fin")
        OW, SW = 8, 16
        for i in range(4):
            a(f"ds_read_b128 v[{SW+4*i}:{SW+4*i+3}], v4 offset:{16*i}")
        for i in range(4):
            a(f"ds_read2st64_b32 v[{OW+2*i}:{OW+2*i+1}], v3 offset0:{16*i} offset1:{16*i+8}")
        a("s_waitcnt lgkmcnt(4)")
        ms_ = [SW + 2 * w for w in range(8)]
        a(f"v_max3_f32 v5, v{ms_[0]}, v{ms_[1]}, v{ms_[2]}")
        a(f"v_max3_f32 v6, v{ms_[3]}, v{ms_[4]}, v{ms_[5]}")
        a(f"v_max3_f32 v5, v5, v{ms_[6]}, v{ms_[7]}")
        a(f"v_max_f32 v5, v5, v6")
        a(f"v_and_b32 v5, s{sFF00}, v5")
        for w in range(8):
            a(f"v_sub_f32 v{ms_[w]}, v{ms_[w]}, v5")
        for w in range(8):
            a(f"v_exp_f32 v{ms_[w]}, v{ms_[w]}")
        a("s_waitcnt lgkmcnt(0)")
        a(f"v_mul_f32 v6, v{ms_[0]}, v{OW}\nv_mul_f32 v7, v{ms_[1]}, v{OW+1}")
        for w in range(2, 8, 2):
            a(f"v_fmac_f32 v6, v{ms_[w]}, v{OW+w}\nv_fmac_f32 v7, v{ms_[w+1]}, v{OW+w+1}")
        a("v_add_f32 v6, v6, v7")
        a(f"v_and_or_b32 v34, v6, s{sFF00}, v33")
        Lf = a.label("fast"); Lf2 = a.label("fastd")
        a(f"s_cmp_eq_u32 s47, 1\ns_cbranch_scc1 {Lf}")
        a(f"buffer_store_dwordx2 v[34:35], v32, {SRD_WS}, s78 offen sc1\ns_branch {Lf2}")
        a(f"{Lf}:\nbuffer_store_dwordx2 v[34:35], v32, {SRD_WS}, s78 offen\n{Lf2}:")
        Ls = a.label("nost")
        a(f"s_and_b32 s78, s{sW}, 3\ns_cmp_lg_u32 s78, 0\ns_cbranch_scc1 {Ls}")
        a(f"v_mul_f32 v7, v{ms_[0]}, v{ms_[0]+1}")
        for w in range(1, 8):
            a(f"v_fmac_f32 v7, v{ms_[w]}, v{ms_[w]+1}")
        a(f"v_or_b32 v36, v5, v33\nv_mov_b32 v37, s{sT}")
        a(f"v_and_or_b32 v38, v7, s{sFF00}, v33\nv_mov_b32 v39, s{sT}")
        a(f"s_lshl_b32 s77, s76, 1\ns_lshr_b32 s78, s{sW}, 2\ns_add_u32 s77, s77, s78\ns_lshl_b32 s77, s77, 2")
        a(f"s_add_u32 s77, s77, s{sS}\ns_lshl_b32 s77, s77, 4\ns_add_u32 s77, s77, {WS_ST}")
        a("v_mov_b32 v32, 0")
        self.setexec(1, 0)
        Lg = a.label("fast"); Lg2 = a.label("fastd")
        a(f"s_cmp_eq_u32 s47, 1\ns_cbranch_scc1 {Lg}")
        a(f"buffer_store_dwordx4 v[36:39], v32, {SRD_WS}, s77 offen sc1\ns_branch {Lg2}")
        a(f"{Lg}:\nbuffer_store_dwordx4 v[36:39], v32, {SRD_WS}, s77 offen\n{Lg2}:")
        a("s_mov_b64 exec, -1")
        a(f"{Ls}:")
        self.stamp(6)
        Lng = a.label("nogather")
        a(f"s_cmp_eq_u32 s{sJJ}, 255\ns_cbranch_scc1 {Lng}")
        a(f"s_lshl_b32 s76, s{sKVH}, 3\ns_add_u32 s76, s76, s{sW}")
        a(f"s_and_b32 s78, s{sJJ}, 3")
        a(f"s_lshl_b32 s77, s76, 14\ns_lshl_b32 s79, s78, 10\ns_add_u32 s77, s77, s79\ns_add_u32 s40, s77, {WS_OP}")
        for s_ in range(1, 4):
            a(f"s_add_u32 s{40+s_}, s40, {4096*s_}")
        a(f"s_lshl_b32 s77, s76, 1\ns_lshr_b32 s79, s78, 1\ns_add_u32 s77, s77, s79\ns_lshl_b32 s77, s77, 6\ns_add_u32 s44, s77, {WS_ST}")
        a("v_lshlrev_b32 v3, 4, v0")
        G = 40
        self.spoll(44, [(16, 52, 0)], [53, 55, 57, 59, 61, 63, 65, 67], 1, name='a', t8regs=[52 + 2 * i for i in range(8)])
        def loads():
            for s_ in range(4):
                a(f"buffer_load_dwordx4 v[{G+4*s_}:{G+4*s_+3}], v3, {SRD_WS}, s{40+s_} offen @POL@")
        loads()
        for i in range(8):
            a(f"s_and_b32 s{52+2*i}, s{52+2*i}, s{sFF00}")
        a("v_mov_b32 v8, s52\nv_mov_b32 v9, s56\nv_mov_b32 v10, s60\nv_mov_b32 v11, s64")
        a("v_max3_f32 v5, v8, v9, v10\nv_max_f32 v5, v5, v11")
        for i in range(4):
            a(f"v_sub_f32 v{8+i}, v{8+i}, v5")
        for i in range(4):
            a(f"v_exp_f32 v{8+i}, v{8+i}")
        a("v_mul_f32 v6, s54, v8\nv_fmac_f32 v6, s58, v9\nv_fmac_f32 v6, s62, v10\nv_fmac_f32 v6, s66, v11")
        a("v_rcp_f32 v6, v6")
        for i in range(4):
            a(f"v_mul_f32 v{8+i}, v{8+i}, v6")
        Lr = a.label("ga"); Ld = a.label("gad")
        a("s_mov_b32 s81, 0")
        a(f"{Lr}:")
        a("s_waitcnt vmcnt(0)")
        for i in range(4):
            self.check(G + 4 * i, 4, True, 5, 6, 7, i == 0)
        a(f"v_cmp_ne_u32 vcc, 0, v5\ns_cbranch_vccz {Ld}")
        a(f"s_add_u32 s81, s81, 1\ns_cmp_ge_u32 s81, {SPIN_LIMIT}\ns_cbranch_scc1 {Ld}")
        loads()
        a(f"s_branch {Lr}\n{Ld}:")
        self.stamp(7)
        for s_ in range(4):
            a(f"v_and_b32 v{G+4*s_}, s{sFF00}, v{G+4*s_}\nv_and_b32 v{G+4*s_+2}, s{sFF00}, v{G+4*s_+2}")
        a(f"v_mul_f32 v12, v8, v{G}\nv_mul_f32 v13, v8, v{G+2}")
        for s_ in range(1, 4):
            a(f"v_fmac_f32 v12, v{8+s_}, v{G+4*s_}\nv_fmac_f32 v13, v{8+s_}, v{G+4*s_+2}")
        a("v_cvt_pk_bf16_f32 v8, v12, v13")
        a(f"s_mul_i32 s77, s{sW}, 272\ns_add_u32 s77, s77, {L_A}")
        a("v_lshlrev_b32 v3, 2, v0\nv_add_u32 v3, s77, v3")
        a("ds_write_b32 v3, v8")
        a("s_waitcnt lgkmcnt(0)")
        a(f"{Lng}:")
        a("s_barrier")
        self.stamp(8)
        a(f"s_cmp_lg_u32 s{sW}, 0\ns_cbranch_scc1 L_fin")
        a(f"s_cmp_eq_u32 s{sJJ}, 255\ns_cbranch_scc1 L_fin")
        a(f"s_mul_i32 s76, s{sKVH}, 28\ns_add_u32 s76, s76, s{sJJ}")
        a(f"s_lshl_b32 s77, s76, 12\ns_add_u32 s40, s77, {WS_BP}")
        for i in range(1, 4):
            a(f"s_add_u32 s{40+i}, s40, {1024*i}")
        a(f"s_lshl_b32 s77, s76, 10\ns_add_u32 s44, s77, {WS_MP}")
        a("v_lshlrev_b32 v3, 4, v0")
        a(f"v_and_b32 v4, 7, v0\nv_lshlrev_b32 v4, 3, v4\nv_add_u32 v4, {L_FIN}, v4")
        a(f"v_mov_b32 v9, {L_FIN+64}")
        a("ds_read_b64 v[10:11], v4")
        a("ds_read_b64 v[14:15], v9")
        srd(a, 60, sOUT, 8 * 448 * 2)
        a(f"s_mul_i32 s46, s{sKVH}, 896\ns_lshl_b32 s78, s{sJJ}, 5\ns_add_u32 s46, s46, s78")
        G2 = 64
        def loads2(g):
            a(f"buffer_load_dwordx4 v[{g+16}:{g+19}], v3, {SRD_WS}, s44 offen sc1")
            for i in range(4):
                a(f"buffer_load_dwordx4 v[{g+4*i}:{g+4*i+3}], v3, {SRD_WS}, s{40+i} offen sc1")
        Lp = a.label("fp"); La = a.label("fpa"); Lb = a.label("fpb"); Lo = a.label("fpo")
        a("s_mov_b32 s81, 0")
        loads2(G)
        a(f"s_sleep {o.fstag}")
        a(f"{Lp}:")
        loads2(G2)
        a("s_waitcnt vmcnt(5)")
        for i, r in enumerate([G+16, G, G+4, G+8, G+12]):
            self.check(r, 4, True, 5, 6, 7, i == 0)
        a(f"v_cmp_ne_u32 vcc, 0, v5\ns_cbranch_vccz {La}")
        loads2(G)
        a("s_waitcnt vmcnt(5)")
        for i, r in enumerate([G2+16, G2, G2+4, G2+8, G2+12]):
            self.check(r, 4, True, 5, 6, 7, i == 0)
        a(f"v_cmp_ne_u32 vcc, 0, v5\ns_cbranch_vccz {Lb}")
        a(f"s_add_u32 s81, s81, 1\ns_cmp_lt_u32 s81, {SPIN_LIMIT}\ns_cbranch_scc1 {Lp}")
        G3 = 96
        a(f"{Lb}:")
        for i in range(0, 20, 2):
            a(f"v_and_b32 v{G3+i}, s{sFF00}, v{G2+i}")
        a(f"s_branch {Lo}")
        a(f"{La}:")
        for i in range(0, 20, 2):
            a(f"v_and_b32 v{G3+i}, s{sFF00}, v{G+i}")
        a(f"{Lo}:")
        G = G3
        self.stamp(9)
        for e in (0, 2):
            a(f"v_add_f32 v{G+e}, v{G+e}, v{G+4+e}\nv_add_f32 v{G+8+e}, v{G+8+e}, v{G+12+e}")
        for e in (0, 2):
            a(f"v_add_f32 v{G+e}, v{G+e}, v{G+8+e}")
        vals = [G, G + 2, G + 16, G + 18]
        for e in vals:
            a(f"v_add_f32_dpp v{e}, v{e}, v{e} row_ror:8 {DPP}")
        tmp = [20, 21, 22, 23]
        for which in (16, 32):
            for e, t in zip(vals, tmp):
                a(f"v_mov_b32 v{t}, v{e}")
            for e, t in zip(vals, tmp):
                a(f"v_permlane{which}_swap_b32 v{e}, v{t}")
            for e, t in zip(vals, tmp):
                a(f"v_add_f32 v{e}, v{e}, v{t}")
        a("s_waitcnt lgkmcnt(0)")
        a(f"v_cvt_pk_bf16_f32 v20, v{G}, v{G+2}\nv_cvt_pk_bf16_f32 v21, v{G+16}, v{G+18}")
        a("v_lshlrev_b32 v22, 16, v20\nv_and_b32 v23, 0xffff0000, v20")
        a("v_lshlrev_b32 v24, 16, v21\nv_and_b32 v25, 0xffff0000, v21")
        a("v_add_f32 v24, v24, v10\nv_add_f32 v25, v25, v11")
        a("v_mul_f32 v22, v22, v14\nv_mul_f32 v23, v23, v14")
        a("v_cvt_pk_bf16_f32 v21, v24, v25\nv_cvt_pk_bf16_f32 v20, v22, v23")
        a("v_lshlrev_b32 v24, 16, v21\nv_and_b32 v25, 0xffff0000, v21")
        a("v_lshlrev_b32 v22, 16, v20\nv_and_b32 v23, 0xffff0000, v20")
        a("v_mul_f32 v24, v24, v15\nv_mul_f32 v25, v25, v15")
        a("v_cvt_pk_bf16_f32 v21, v24, v25")
        a("v_lshlrev_b32 v24, 16, v21\nv_and_b32 v25, 0xffff0000, v21")
        a("v_add_f32 v22, v22, v24\nv_add_f32 v23, v23, v25")
        a("v_cvt_pk_bf16_f32 v8, v22, v23")
        a("v_lshlrev_b32 v3, 2, v0")
        self.setexec(0xff, 0)
        a("buffer_store_dword v8, v3, s[60:63], s46 offen")
        a("s_cmp_lg_u32 s2, 32\ns_cbranch_scc1 L_fin")
        a(f"v_mov_b32 v8, s{sT}\nv_mov_b32 v3, 0")
        self.setexec(1, 0)
        a(f"buffer_store_dword v8, v3, {SRD_WS}, 0 offen sc1")
        a("s_branch L_fin")

    def publish_f32(self, d, s_base, s_stride, tmp, pol="sc1"):
        a = self.a
        va, vb, quad = tmp, tmp + 1, tmp + 2
        assert quad % 2 == 0
        a(f"s_lshl_b32 s80, s{sW}, 9\ns_add_u32 s80, s80, {L_SH}")
        a(f"v_lshrrev_b32 v{va}, 4, v0\nv_lshlrev_b32 v{va}, 8, v{va}\nv_and_b32 v{vb}, 15, v0\nv_lshl_add_u32 v{va}, v{vb}, 2, v{va}\nv_add_u32 v{va}, s80, v{va}")
        self.setexec(0xffffffff, 0)
        for r in range(4):
            a(f"ds_write_b32 v{va}, v{d+r} offset:{64*r}")
        a("s_mov_b64 exec, -1")
        a(f"v_lshlrev_b32 v{vb}, 3, v0\nv_add_u32 v{vb}, s80, v{vb}")
        a(f"ds_read_b64 v[{quad}:{quad+1}], v{vb}")
        a(f"v_lshrrev_b32 v{va}, 3, v0\nv_mul_lo_u32 v{va}, v{va}, s{s_stride}\nv_and_b32 v{vb}, 7, v0\nv_lshl_add_u32 v{va}, v{vb}, 4, v{va}")
        a(f"v_mov_b32 v{vb}, s{sT8}\nv_mov_b32 v{quad+3}, s{sT}")
        a("s_waitcnt lgkmcnt(0)")
        a(f"v_and_or_b32 v{quad+2}, v{quad+1}, s{sFF00}, v{vb}")
        a(f"v_and_or_b32 v{quad}, v{quad}, s{sFF00}, v{vb}")
        a(f"v_mov_b32 v{quad+1}, s{sT}")
        if 'nopub' not in self.o.skip:
            a(f"buffer_store_dwordx4 v[{quad}:{quad+3}], v{va}, {SRD_WS}, s{s_base} offen {pol}")

    def publish_bf16(self, d, s_base, s_stride, tmp):
        a = self.a
        va, vt, pair = tmp, tmp + 1, tmp + 2
        assert pair % 2 == 0
        a(f"v_lshrrev_b32 v{va}, 4, v0\nv_lshlrev_b32 v{va}, 2, v{va}")
        a(f"v_mul_lo_u32 v{va}, v{va}, s{s_stride}")
        a(f"v_and_b32 v{vt}, 14, v0\nv_lshl_add_u32 v{va}, v{vt}, 2, v{va}")
        for r in range(4):
            a(f"v_mov_b32_dpp v{pair+2*r+1}, v{d+r} quad_perm:[1,0,3,2] {DPP}")
        for r in range(4):
            a(f"v_cvt_pk_bf16_f32 v{pair+2*r}, v{d+r}, v{pair+2*r+1}")
        for r in range(4):
            a(f"v_mov_b32 v{pair+2*r+1}, s{sT}")
        self.setexec(0x55555555, 0)
        for r in range(4):
            if 'nopub' in self.o.skip: break
            a(f"buffer_store_dwordx2 v[{pair+2*r}:{pair+2*r+1}], v{va}, {SRD_WS}, s{s_base} offen @POL@")
            if r < 3:
                a(f"s_add_u32 s{s_base}, s{s_base}, s{s_stride}")
        a("s_mov_b64 exec, -1")

    def tile_params_lane(self):
        a = self.a
        a("v_lshrrev_b32 v1, 3, v0\nv_bfe_u32 v3, v0, 4, 1\nv_lshlrev_b32 v3, 1, v3\nv_and_b32 v2, 7, v0\nv_xor_b32 v2, v2, v3\nv_lshlrev_b32 v2, 4, v2")
        a("v_mul_lo_u32 v1, v1, s41")
        a("v_xor_b32 v2, s75, v2\nv_xor_b32 v6, 64, v2\nv_add_u32 v6, v1, v6\nv_add_u32 v1, v1, v2")

    def tile_mfma(self, nchunk):
        a = self.a
        BF, AF = 8, 40
        self.tr_addr(L_TILE)
        a(f"v_and_b32 v2, 7, v0\nv_mul_u32_u24 v2, {XP}, v2\nv_lshrrev_b32 v3, 4, v0\nv_lshl_add_u32 v2, v3, 4, v2\nv_add_u32 v2, s42, v2")
        def rd(m):
            b = BF + 4 * (m % 7); af = AF + 4 * (m % 7)
            a(f"ds_read_b64_tr_b16 v[{b}:{b+1}], v1 offset:{4096*m}")
            a(f"ds_read_b64_tr_b16 v[{b+2}:{b+3}], v1 offset:{4096*m+512}")
            a(f"ds_read_b128 v[{af}:{af+3}], v2 offset:{64*m}")
        def mm(m):
            b = BF + 4 * (m % 7); af = AF + 4 * (m % 7)
            a(f"v_mfma_f32_16x16x32_bf16 v[4:7], v[{af}:{af+3}], v[{b}:{b+3}], {'0' if m == 0 else 'v[4:7]'}")
        for m in range(4):
            rd(m)
        for m in range(nchunk):
            if m + 4 < nchunk:
                a("s_waitcnt lgkmcnt(9)"); mm(m); rd(m + 4)
            else:
                a(f"s_waitcnt lgkmcnt({3*(nchunk-1-m)})"); mm(m)

    def helper(self):
        a = self.a; o = self.o
        a("L_helper:")
        a.c("================= helper wave =================")
        a("s_setprio 3")
        a(f"s_sub_u32 s{sW}, s3, 8")
        a(f"v_mov_b32 v1, {L_CNT}\nv_mov_b32 v2, 0\nv_mov_b32 v3, 0\nv_mov_b32 v4, 0\nv_mov_b32 v5, 0")
        a(f"s_cmp_lg_u32 s{sW}, 0\ns_cbranch_scc1 L_h_noinit")
        self.setexec(1, 0)
        a("ds_write_b128 v1, v[2:5]")
        a("s_mov_b64 exec, -1")
        a("L_h_noinit:")
        cq, c1, c2 = o.cntq, o.cnt1, o.cnt2
        assert sum(cq) == 128 and sum(c1) == 56 and sum(c2) == 56
        for x in range(8):
            assert cq[x] + c1[x] + c2[x] <= 32
        pref = lambda c: [sum(c[:i]) for i in range(8)]
        def table(vals, dst):
            lo, hi = pack8(vals)
            a(f"s_mov_b32 s76, {hex(lo)}\ns_mov_b32 s77, {hex(hi)}")
            a(f"s_lshr_b64 s[76:77], s[76:77], s78\ns_and_b32 s{dst}, s76, 0xff")
        a(f"s_lshl_b32 s78, s{sKVH}, 3")
        table(cq, 40); table([cq[x] + c1[x] for x in range(8)], 41); table([cq[x] + c1[x] + c2[x] for x in range(8)], 42)
        table(pref(cq), 43)
        table([(pref(c1)[x] - cq[x]) & 0xff for x in range(8)], 44)
        table([(pref(c2)[x] - cq[x] - c1[x]) & 0xff for x in range(8)], 46)
        if 'helpers' in o.skip:
            self.after_karg()
            srd(a, 48, sWS, WS_SIZE)
            a("s_barrier\ns_branch L_h_tail")
        a(f"s_cmp_lt_u32 s{sJ}, s40\ns_cbranch_scc1 L_h_q")
        a(f"s_cmp_lt_u32 s{sJ}, s41\ns_cbranch_scc1 L_h_m1")
        a(f"s_cmp_lt_u32 s{sJ}, s42\ns_cselect_b32 s45, 2, 3")
        a(f"s_add_u32 s47, s46, s{sJ}\ns_and_b32 s47, s47, 0xff")
        self.after_karg()
        srd(a, 48, sWS, WS_SIZE)
        a("s_barrier")
        self.tag_setup()
        self.xid_publish()
        a("s_branch L_h_qgather")
        a("L_h_q:")
        a(f"s_add_u32 s47, s43, s{sJ}\ns_and_b32 s47, s47, 0xff")
        a("s_and_b32 s79, s47, 1\ns_lshr_b32 s76, s47, 1")
        a(f"s_mul_i32 s40, s79, {224*8192}\ns_lshl_b32 s77, s76, 7\ns_add_u32 s40, s40, s77")
        a("s_mov_b32 s41, 8192")
        a(f"s_mov_b32 s42, {L_X}")
        a(f"s_lshr_b32 s43, s76, 3\ns_lshl_b32 s43, s43, 16\ns_and_b32 s77, s76, 7\ns_lshl_b32 s77, s77, 9\ns_add_u32 s43, s43, s77\ns_lshl_b32 s77, s79, 12\ns_add_u32 s43, s43, s77\ns_add_u32 s43, s43, {WS_QP}")
        a("s_mov_b32 s44, 8192\ns_mov_b32 s45, 0")
        self.after_karg()
        srd(a, 52, sWQ, 448 * 8192)
        a("s_branch L_h_tile")
        a("L_h_m1:")
        a(f"s_add_u32 s47, s44, s{sJ}\ns_and_b32 s47, s47, 0xff")
        a("s_and_b32 s79, s47, 1\ns_lshr_b32 s76, s47, 1")
        a(f"s_mul_i32 s40, s79, {224*3584}\ns_lshl_b32 s77, s76, 7\ns_add_u32 s40, s40, s77")
        a("s_mov_b32 s41, 3584")
        a(f"s_mul_i32 s42, s79, 448\ns_add_u32 s42, s42, {L_Y}")
        a(f"s_mul_i32 s43, s79, {8*14336}\ns_lshl_b32 s77, s76, 9\ns_add_u32 s43, s43, s77\ns_add_u32 s43, s43, {WS_HP}")
        a("s_mov_b32 s44, 14336\ns_mov_b32 s45, 1")
        self.after_karg()
        srd(a, 52, sW1, 448 * 3584)
        a("L_h_tile:")
        a(f"s_and_b32 s75, s{sW}, 1\ns_lshl_b32 s75, s75, 6")
        self.tile_params_lane()
        a(f"s_mul_i32 s75, s{sW}, 56")
        a("s_lshl_b32 s76, s75, 7")
        a("s_mul_i32 s75, s75, s41\ns_add_u32 s75, s75, s40")
        a("s_lshl_b32 s77, s41, 3")
        def tl(i):
            a(f"s_add_u32 m0, s76, {L_TILE + 1024*i}")
            a(f"buffer_load_dwordx4 v{1 if i % 2 == 0 else 6}, s[52:55], s75 offen {o.tpol} lds")
            a("s_add_u32 s75, s75, s77")
        srd(a, 56, sX, 7168)
        a("v_lshlrev_b32 v3, 4, v0")
        a(f"s_lshl_b32 s78, s{sW}, 1\ns_mul_i32 s80, s78, {XP}\ns_mul_i32 s78, s78, 896")
        a("s_cmp_eq_u32 s45, 0\ns_cbranch_scc0 L_h_xfull")
        a("s_mul_i32 s79, s79, 448\ns_add_u32 s78, s78, s79")
        self.setexec(0x0fffffff, 0)
        a("s_branch L_h_xgo")
        a("L_h_xfull:")
        self.setexec(0xffffffff, 0x00ffffff)
        a("L_h_xgo:")
        a(f"s_add_u32 m0, s80, {L_X}")
        a("buffer_load_dwordx4 v3, s[56:59], s78 offen lds")
        a(f"s_add_u32 s78, s78, 896\ns_add_u32 m0, s80, {L_X + XP}")
        a("buffer_load_dwordx4 v3, s[56:59], s78 offen lds")
        a("s_mov_b64 exec, -1")
        for i in range(min(o.hpre, 7)):
            tl(i)
        srd(a, 48, sWS, WS_SIZE)
        a("s_barrier")
        for i in range(min(o.hpre, 7), 7):
            tl(i)
        self.stamp(1)
        self.tag_setup()
        a("s_waitcnt vmcnt(0)")
        self.lds_signal(C_A0, 3, 4)
        self.lds_wait(C_A0, 4, 3, 4)
        a("s_cmp_eq_u32 s45, 0\ns_cbranch_scc1 L_h_mm")
        self.layernorm()
        a("s_waitcnt lgkmcnt(0)")
        self.lds_signal(C_A1, 3, 4)
        self.lds_wait(C_A1, 4, 3, 4)
        a("L_h_mm:")
        self.stamp(2)
        self.tile_mfma(7)
        a(f"s_lshl_b32 s75, s{sW}, 7\ns_add_u32 s43, s43, s75")
        a("s_nop 7")
        self.stamp(10)
        self.publish_f32(4, 43, 44, 70)
        self.stamp(3)
        self.xid_publish()
        a("L_h_qgather:")
        self.qgather()
        self.stamp(4)
        a("s_cmp_eq_u32 s45, 2\ns_cbranch_scc0 L_h_noh")
        self.hgather()
        a("s_waitcnt lgkmcnt(0)")
        a("L_h_noh:")
        self.stamp(8)
        WB = 100
        a(f"s_cmp_eq_u32 s{sJJ}, 255\ns_cbranch_scc1 L_h_noprep")
        a(f"s_cmp_lg_u32 s{sW}, 3\ns_cbranch_scc1 L_h_noprep")
        self.finalprep()
        a("L_h_noprep:")
        a(f"s_setprio {o.woprio}")
        a("s_cmp_eq_u32 s45, 2\ns_cbranch_scc0 L_h_now2")
        srd(a, 52, sW2, 1792 * 896)
        a("s_and_b32 s76, s47, 7\ns_lshr_b32 s77, s47, 3")
        a(f"s_mul_i32 s40, s76, {224*896}\ns_lshl_b32 s78, s77, 7\ns_add_u32 s40, s40, s78")
        a(f"s_mov_b32 s41, 896\ns_mov_b32 s42, {L_Y}")
        a(f"s_lshl_b32 s43, s77, 12\ns_lshl_b32 s78, s76, 7\ns_add_u32 s43, s43, s78\ns_lshl_b32 s78, s{sW}, 10\ns_add_u32 s43, s43, s78\ns_add_u32 s46, s43, {WS_MP}")
        a(f"s_and_b32 s75, s{sW}, 1\ns_lshl_b32 s75, s75, 6")
        self.tile_params_lane()
        a(f"s_mul_i32 s75, s{sW}, 56\ns_lshl_b32 s76, s75, 7\ns_mul_i32 s75, s75, 896\ns_add_u32 s75, s75, s40")
        for i in range(7):
            a(f"s_add_u32 m0, s76, {L_TILE + 1024*i}")
            a(f"buffer_load_dwordx4 v{1 if i % 2 == 0 else 6}, s[52:55], s75 offen {o.tpol} lds")
            if i < 6:
                a(f"s_add_u32 s75, s75, {8*896}")
        a("L_h_now2:")
        a(f"s_cmp_eq_u32 s{sJJ}, 255\ns_cbranch_scc1 L_h_nowo")
        srd(a, 60, sWO, 4096 * 896)
        a("s_mov_b32 s41, 896\ns_mov_b32 s75, 0")
        self.tile_params_lane()
        a(f"s_and_b32 s75, s{sJJ}, 3\ns_lshl_b32 s75, s75, 7\ns_lshl_b32 s76, s{sKVH}, 9\ns_add_u32 s75, s75, s76")
        a(f"s_lshl_b32 s76, s{sW}, 5\ns_add_u32 s75, s75, s76\ns_mul_i32 s75, s75, 896")
        a(f"s_lshr_b32 s76, s{sJJ}, 2\ns_lshl_b32 s76, s76, 7\ns_add_u32 s75, s75, s76")
        a(f"s_lshl_b32 s76, s{sW}, 12")
        for i in range(4):
            if 'nowo' in o.skip: break
            a(f"s_add_u32 m0, s76, {L_WO + 1024*i}")
            a(f"buffer_load_dwordx4 v{1 if i % 2 == 0 else 6}, s[60:63], s75 offen {o.tpol} lds")
            if i < 3:
                a(f"s_add_u32 s75, s75, {8*896}")
        a("L_h_nowo:")
        a("s_setprio 3")
        self.stamp(5)
        a("s_barrier")
        if 'tail' in o.skip:
            a("s_barrier\ns_branch L_fin")
        a("s_waitcnt vmcnt(0)")
        self.lds_signal(C_WO, 3, 4)
        self.lds_wait(C_WO, 4, 3, 4)
        self.stamp(9)
        a("s_cmp_eq_u32 s45, 2\ns_cbranch_scc0 L_h_nom2")
        self.tile_mfma(7)
        a(f"s_mov_b32 s44, {28*1024}")
        a("s_nop 7")
        self.publish_f32(4, 46, 44, 70)
        a("L_h_nom2:")
        a(f"s_cmp_eq_u32 s{sJJ}, 255\ns_cbranch_scc1 L_h_tail1")
        self.tr_addr(L_WO)
        for m in range(4):
            a(f"ds_read_b64_tr_b16 v[{WB+4*m}:{WB+4*m+1}], v1 offset:{4096*m}")
            a(f"ds_read_b64_tr_b16 v[{WB+4*m+2}:{WB+4*m+3}], v1 offset:{4096*m+512}")
        a(f"s_lshr_b32 s75, s{sJJ}, 2\ns_lshl_b32 s75, s75, 2\ns_add_u32 s75, s75, s{sW}\ns_lshl_b32 s43, s75, 12")
        a(f"s_lshl_b32 s75, s{sKVH}, 2\ns_and_b32 s76, s{sJJ}, 3\ns_add_u32 s75, s75, s76\ns_lshl_b32 s75, s75, 7")
        a(f"s_add_u32 s43, s43, s75\ns_add_u32 s43, s43, {WS_BP}\ns_mov_b32 s44, {28*4096}")
        a(f"v_and_b32 v2, 7, v0\nv_mul_u32_u24 v2, 272, v2\nv_lshrrev_b32 v3, 4, v0\nv_lshl_add_u32 v2, v3, 4, v2\nv_add_u32 v2, {L_A}, v2")
        a("v_lshrrev_b32 v70, 4, v0\nv_lshlrev_b32 v70, 2, v70\nv_mul_lo_u32 v70, v70, s44\nv_and_b32 v71, 15, v0\nv_lshl_add_u32 v70, v71, 3, v70")
        a(f"v_mov_b32 v71, s{sT8}")
        for r in range(4):
            a(f"v_mov_b32 v{73+2*r}, s{sT}\ns_mul_i32 s{76+r}, s44, {r}\ns_add_u32 s{76+r}, s{76+r}, s43")
        a("s_waitcnt lgkmcnt(0)")
        self.stamp(6)
        a("s_barrier")
        for m in range(4):
            a(f"ds_read_b128 v[{40+4*m}:{40+4*m+3}], v2 offset:{64*m}")
        for m in range(4):
            a(f"s_waitcnt lgkmcnt({3-m})")
            a(f"v_mfma_f32_16x16x32_bf16 v[4:7], v[{40+4*m}:{40+4*m+3}], v[{WB+4*m}:{WB+4*m+3}], {'0' if m == 0 else 'v[4:7]'}")
        self.setexec(0xffffffff, 0)
        for r in range(4):
            a(f"v_and_or_b32 v{72+2*r}, v{4+r}, s{sFF00}, v71")
            a(f"buffer_store_dwordx2 v[{72+2*r}:{73+2*r}], v70, {SRD_WS}, s{76+r} offen sc1")
        self.stamp(7)
        a("s_branch L_fin")
        a("L_h_tail:")
        self.stamp(5)
        a("s_barrier")
        a("L_h_tail1:")
        a("s_barrier")
        a("s_branch L_fin")

    def xid_publish(self):
        a = self.a
        if 'noxid' in self.o.skip:
            return
        L = a.label("noxid")
        a(f"s_cmp_lg_u32 s{sW}, 0\ns_cbranch_scc1 {L}")
        a("s_getreg_b32 s75, hwreg(HW_REG_XCC_ID, 0, 4)")
        a("s_and_b32 s75, s75, 7\ns_mul_i32 s75, s75, 6\ns_mov_b32 s76, 1\ns_mov_b32 s77, 0\ns_lshl_b64 s[76:77], s[76:77], s75")
        srd(a, 60, sDBG, 256)
        a(f"v_mov_b32 v8, s76\nv_mov_b32 v9, s77\ns_lshl_b32 s75, s{sKVH}, 5\nv_mov_b32 v3, s75")
        self.setexec(1, 0)
        a("buffer_atomic_add_x2 v[8:9], v3, s[60:63], 0 offen")
        a("s_mov_b64 exec, -1")
        a(f"{L}:")

    def xid_check(self):
        a = self.a
        L = a.label("noxc")
        a(f"s_cmp_lg_u32 s{sW}, 1\ns_cbranch_scc1 {L}")
        a(f"s_lshl_b32 s75, s{sKVH}, 5\ns_add_u32 s78, s{sDBG}, s75\ns_addc_u32 s79, s{sDBG+1}, 0")
        if 'noxid' in self.o.skip:
            a("s_mov_b32 s76, 0\ns_mov_b32 s77, 0")
        else:
            a("s_load_dwordx2 s[76:77], s[78:79], 0 glc")
        a("s_getreg_b32 s75, hwreg(HW_REG_XCC_ID, 0, 4)")
        a("s_and_b32 s75, s75, 7\ns_mul_i32 s75, s75, 6\ns_waitcnt lgkmcnt(0)\ns_lshr_b64 s[76:77], s[76:77], s75\ns_and_b32 s76, s76, 63")
        a("s_cmp_eq_u32 s76, 32\ns_cselect_b32 s75, 1, 0")
        if 'nofast' in self.o.skip:
            a("s_mov_b32 s75, 0")
        a(f"v_mov_b32 v2, {L_FIN+72}\nv_mov_b32 v3, s75")
        self.setexec(1, 0)
        a("ds_write_b32 v2, v3")
        a("s_mov_b64 exec, -1")
        a(f"{L}:")

    def tr_addr(self, lbase):
        a = self.a
        a("v_lshrrev_b32 v1, 4, v0\nv_lshlrev_b32 v1, 3, v1\nv_bfe_u32 v2, v0, 2, 2\nv_add_u32 v1, v1, v2\nv_lshlrev_b32 v1, 7, v1")
        a("v_bfe_u32 v2, v0, 3, 2")
        a(f"v_xor_b32 v2, s{sW}, v2\nv_lshl_add_u32 v1, v2, 5, v1")
        a(f"v_and_b32 v2, 3, v0\nv_lshl_add_u32 v1, v2, 3, v1\nv_add_u32 v1, {lbase}, v1")

    def qgather(self):
        a = self.a
        a(f"s_lshl_b32 s75, s{sKVH}, 3\ns_add_u32 s75, s75, s{sB}\ns_lshl_b32 s75, s75, 13\ns_lshl_b32 s76, s{sW}, 10\ns_add_u32 s75, s75, s76")
        a(f"s_add_u32 s75, s75, {WS_QP}\ns_add_u32 s46, s75, 4096")
        a("v_lshlrev_b32 v1, 4, v0")
        a("s_add_u32 s76, s75, 124")
        self.spoll(76, [(1, 52, 4096 + 7 * 128)], [52], self.o.ssleep1, name='q')
        self.spoll(76, [(1, 52 + i, (i & 7) * 128 + (i >> 3) * 4096) for i in range(16)], [52 + i for i in range(16)], self.o.ssleep, name='q')
        self.stamp(11)
        def lq():
            a(f"buffer_load_dwordx4 v[8:11], v1, {SRD_WS}, s75 offen sc1")
            a(f"buffer_load_dwordx4 v[12:15], v1, {SRD_WS}, s46 offen sc1")
        self.poll(lq, [8, 12], 5, 6, 7, sleep=self.o.qsleep, name='q')
        a("v_add_f32 v8, v8, v12\nv_add_f32 v10, v10, v14\nv_cvt_pk_bf16_f32 v8, v8, v10")
        a(f"s_lshl_b32 s75, s{sW}, 8\ns_add_u32 s75, s75, {L_Q}\nv_lshlrev_b32 v1, 2, v0\nv_add_u32 v1, s75, v1")
        a("ds_write_b32 v1, v8")
        self.xid_check()
        a("s_waitcnt lgkmcnt(0)")
        self.lds_signal(C_Q, 3, 4)

    def layernorm(self):
        a = self.a
        X = 8; F = 16
        a(f"s_lshl_b32 s75, s{sW}, 1\ns_mul_i32 s75, s75, {XP}")
        a(f"v_lshrrev_b32 v1, 5, v0\nv_mul_u32_u24 v1, {XP}, v1\nv_and_b32 v2, 31, v0\nv_mul_u32_u24 v2, 28, v2\nv_add_u32 v1, v1, v2\nv_add_u32 v1, s75, v1")
        a(f"v_add_u32 v2, {L_X}, v1")
        for i in range(3):
            a(f"ds_read2_b32 v[{X+2*i}:{X+2*i+1}], v2 offset0:{2*i} offset1:{2*i+1}")
        a(f"ds_read_b32 v{X+6}, v2 offset:24")
        a("s_waitcnt lgkmcnt(0)")
        for i in range(7):
            a(f"v_lshlrev_b32 v{F+2*i}, 16, v{X+i}\nv_and_b32 v{F+2*i+1}, 0xffff0000, v{X+i}")
        a(f"v_add_f32 v3, v{F}, v{F+1}")
        for i in range(2, 14):
            a(f"v_add_f32 v3, v3, v{F+i}")
        self.row16_reduce("v_add_f32", 3)
        self.swap_reduce("v_add_f32", 3, 4, 16)
        a("v_mul_f32 v3, 0x3b124925, v3")
        a(f"v_sub_f32 v5, v{F}, v3\nv_mul_f32 v4, v5, v5")
        for i in range(1, 14):
            a(f"v_sub_f32 v5, v{F+i}, v3\nv_fmac_f32 v4, v5, v5")
        self.row16_reduce("v_add_f32", 4)
        self.swap_reduce("v_add_f32", 4, 5, 16)
        a("v_mul_f32 v4, 0x3b124925, v4")
        self.bf16_round(3, 3)
        self.bf16_round(4, 4)
        a("v_add_f32 v4, 0x3727c5ac, v4")
        self.bf16_round(4, 4)
        a("v_sqrt_f32 v4, v4")
        self.bf16_round(4, 4)
        a("v_rcp_f32 v4, v4")
        a(f"v_add_u32 v2, {L_Y}, v1")
        for i in range(7):
            a(f"v_sub_f32 v{F+2*i}, v{F+2*i}, v3\nv_sub_f32 v{F+2*i+1}, v{F+2*i+1}, v3")
            a(f"v_cvt_pk_bf16_f32 v5, v{F+2*i}, v{F+2*i+1}")
            a(f"v_lshlrev_b32 v6, 16, v5\nv_and_b32 v5, 0xffff0000, v5")
            a(f"v_mul_f32 v6, v6, v4\nv_mul_f32 v5, v5, v4")
            a(f"v_cvt_pk_bf16_f32 v{X+i}, v6, v5")
            a(f"ds_write_b32 v2, v{X+i} offset:{4*i}")

    def gelu(self, x, t0, t1):
        a = self.a
        a(f"v_mul_f32 v{t0}, v{x}, v{x}")
        a(f"v_mov_b32 v{t1}, 0xc0135761")
        a(f"v_fmac_f32 v{t1}, 0xbdd2d3e2, v{t0}")
        a(f"v_mul_f32 v{t1}, v{t1}, v{x}")
        a(f"v_exp_f32 v{t1}, v{t1}")
        a(f"v_add_f32 v{t1}, 1.0, v{t1}")
        a(f"v_rcp_f32 v{t1}, v{t1}")
        a(f"v_mul_f32 v{x}, v{x}, v{t1}")

    def hgather(self):
        a = self.a
        a(f"s_lshl_b32 s75, s{sW}, 1\ns_mul_i32 s76, s75, 14336\ns_mul_i32 s77, s75, {XP}")
        a(f"s_and_b32 s78, s47, 7\ns_mul_i32 s79, s78, 1792\ns_add_u32 s76, s76, s79\ns_add_u32 s40, s76, {WS_HP}\ns_add_u32 s41, s40, {8*14336}")
        a(f"s_add_u32 s46, s77, {L_Y}\ns_mul_i32 s44, s78, 448")
        a("v_mov_b32 v56, v0")
        a("v_cmp_gt_u32 vcc, 48, v0\nv_add_u32 v57, 64, v0\nv_subrev_u32 v58, 48, v0\nv_cndmask_b32 v57, v58, v57, vcc")
        a("v_cndmask_b32 v59, 1, 0, vcc")
        a("v_add_u32 v58, 16, v0")
        a("v_and_b32 v72, 31, v0\nv_add_u32 v72, 80, v72")
        cps = [56, 57, 58, 72]
        for i in range(4):
            cp = cps[i]
            a(f"v_lshlrev_b32 v{60+i}, 4, v{cp}\nv_lshlrev_b32 v{68+i}, 2, v{cp}\nv_add_u32 v{64+i}, s46, v{68+i}")
            if i == 1:
                a(f"v_mul_u32_u24 v73, 14336, v59\nv_add_u32 v{60+i}, v{60+i}, v73\nv_mul_u32_u24 v73, {XP}, v59\nv_add_u32 v{64+i}, v{64+i}, v73")
            elif i >= 2:
                a(f"v_add_u32 v{60+i}, 14336, v{60+i}\nv_add_u32 v{64+i}, {XP}, v{64+i}")
        srd(a, 56, sB1, 3584)
        for i in range(4):
            a(f"buffer_load_dword v{48+i}, v{68+i}, s[56:59], s44 offen")
        a(f"s_add_u32 s75, s41, {14336 + 124}")
        self.spoll(75, [(1, 52, 13 * 128)], [52], self.o.ssleep1 * 2, name='h')
        for base in (40, 41):
            a(f"s_add_u32 s75, s{base}, {14336 + 124}")
            self.spoll(75, [(1, 52 + i, i * 128) for i in range(14)], [52 + i for i in range(14)], self.o.ssleep * 2, name='h')
        def lh():
            for i in range(4):
                a(f"buffer_load_dwordx4 v[{8+8*i}:{8+8*i+3}], v{60+i}, {SRD_WS}, s40 offen sc1")
                a(f"buffer_load_dwordx4 v[{12+8*i}:{12+8*i+3}], v{60+i}, {SRD_WS}, s41 offen sc1")
        self.poll(lh, [8 + 4 * i for i in range(8)], 5, 6, 7, sleep=8, name='h')
        for i in range(4):
            r = 8 + 8 * i
            a(f"v_add_f32 v{r}, v{r}, v{r+4}\nv_add_f32 v{r+2}, v{r+2}, v{r+6}")
            a(f"v_cvt_pk_bf16_f32 v{r}, v{r}, v{r+2}")
            a(f"v_lshlrev_b32 v{r+1}, 16, v{r}\nv_and_b32 v{r+2}, 0xffff0000, v{r}")
            a(f"v_lshlrev_b32 v{r+3}, 16, v{48+i}\nv_and_b32 v{r+4}, 0xffff0000, v{48+i}")
            a(f"v_add_f32 v{r+1}, v{r+1}, v{r+3}\nv_add_f32 v{r+2}, v{r+2}, v{r+4}")
            a(f"v_cvt_pk_bf16_f32 v{r}, v{r+1}, v{r+2}")
            a(f"v_lshlrev_b32 v{r+1}, 16, v{r}\nv_and_b32 v{r+2}, 0xffff0000, v{r}")
            self.gelu(r + 1, r + 3, r + 4)
            self.gelu(r + 2, r + 5, r + 6)
            a(f"v_cvt_pk_bf16_f32 v{r}, v{r+1}, v{r+2}")
            a(f"ds_write_b32 v{64+i}, v{r}")

    def finalprep(self):
        a = self.a
        srd(a, 56, sX, 7168)
        a(f"s_mul_i32 s75, s{sKVH}, 896")
        a("v_lshlrev_b32 v3, 4, v0")
        a("v_mov_b32 v8, 0\nv_mov_b32 v9, 0\nv_mov_b32 v10, 0\nv_mov_b32 v11, 0")
        self.setexec(0xffffffff, 0x00ffffff)
        a("buffer_load_dwordx4 v[8:11], v3, s[56:59], s75 offen")
        a("s_mov_b64 exec, -1")
        srd(a, 56, sGW, 896)
        a("buffer_load_dwordx4 v[12:15], v3, s[56:59], 0 offen")
        srd(a, 56, sB2, 896)
        a(f"s_lshl_b32 s75, s{sJJ}, 5")
        a("v_and_b32 v4, 7, v0\nv_lshlrev_b32 v4, 2, v4")
        a("buffer_load_dword v16, v4, s[56:59], s75 offen")
        a("s_waitcnt vmcnt(0)")
        a("v_mov_b32 v24, 0")
        for i in range(4):
            a(f"v_lshlrev_b32 v25, 16, v{8+i}\nv_lshlrev_b32 v26, 16, v{12+i}\nv_mul_f32 v25, v25, v26")
            a(f"v_and_b32 v26, 0xffff0000, v{8+i}\nv_and_b32 v27, 0xffff0000, v{12+i}\nv_mul_f32 v26, v26, v27")
            a("v_cvt_pk_bf16_f32 v25, v25, v26")
            a("v_lshlrev_b32 v26, 16, v25\nv_and_b32 v25, 0xffff0000, v25\nv_add_f32 v24, v24, v26\nv_add_f32 v24, v24, v25")
        self.row16_reduce("v_add_f32", 24)
        self.swap_reduce("v_add_f32", 24, 25, 16)
        self.swap_reduce("v_add_f32", 24, 25, 32)
        self.bf16_round(24, 24)
        a("v_mul_f32 v24, 0xbfb8aa3b, v24\nv_exp_f32 v24, v24\nv_add_f32 v24, 1.0, v24\nv_rcp_f32 v24, v24")
        self.bf16_round(24, 24)
        a("v_sub_f32 v25, 1.0, v24")
        self.bf16_round(25, 25)
        a("v_lshlrev_b32 v28, 16, v16\nv_and_b32 v29, 0xffff0000, v16")
        a(f"v_lshlrev_b32 v4, 1, v4\nv_add_u32 v4, {L_FIN}, v4\nv_mov_b32 v5, {L_FIN+64}")
        self.setexec(0xff, 0)
        a("ds_write_b64 v4, v[28:29]")
        self.setexec(1, 0)
        a("ds_write_b64 v5, v[24:25]")
        a("s_mov_b64 exec, -1")
        a("s_waitcnt lgkmcnt(0)")

    def build(self):
        a = self.a
        self.prologue()
        self.streaming()
        self.helper()
        a("L_fin:")
        self.dump_stamps()
        a("L_end:")
        a("s_endpgm")
        body = a.text()
        body = "\n".join((l.replace("@POL@", self.o.stpol) if "buffer_store" in l else l.replace("@POL@", self.o.ldpol)) for l in body.split("\n"))
        hdr = open("cdna_kernels/" + NAME + ".s.ref").read().split("; Override launch geometry")[0]
        out = hdr
        out += "; Override launch geometry by editing the next line (default: block=256,\n"
        out += f"; @launch grid=(256,1,1) block=(768,1,1) lds={LDS_BYTES}\n"
        out += '.amdgcn_target "amdgcn-amd-amdhsa--gfx950"\n.text\n'
        out += f".globl {KNAME}\n.p2align 8\n.type {KNAME},@function\n{KNAME}:\n"
        out += body
        out += f""".section .rodata,"a"
.p2align 6
.amdhsa_kernel {KNAME}
  .amdhsa_next_free_vgpr 168
  .amdhsa_next_free_sgpr 102
  .amdhsa_accum_offset 168
  .amdhsa_group_segment_fixed_size 0
  .amdhsa_kernarg_size 112
  .amdhsa_user_sgpr_count 2
  .amdhsa_user_sgpr_kernarg_segment_ptr 1
  .amdhsa_system_sgpr_workgroup_id_x 1
.end_amdhsa_kernel
"""
        return out

def parse(argv):
    p = argparse.ArgumentParser()
    p.add_argument("-o", default="cdna_kernels/" + NAME + ".s")
    p.add_argument("--stamps", action="store_true")
    p.add_argument("--dbgtime", action="store_true")
    p.add_argument("--rot", default="1,1,1,0")
    p.add_argument("--skip", default="")
    p.add_argument("--ldpol", default="sc1")
    p.add_argument("--stpol", default="sc1")
    p.add_argument("--npre", type=int, default=2)
    p.add_argument("--kmap", default="contig")
    p.add_argument("--kwin", type=int, default=0)
    p.add_argument("--vwin_n", type=int, default=0)
    p.add_argument("--order", default="kv")
    p.add_argument("--sprio", default="")
    p.add_argument("--hpre", type=int, default=4)
    p.add_argument("--woprio", type=int, default=0)
    p.add_argument("--qsleep", type=int, default=8)
    p.add_argument("--ssleep", type=int, default=2)
    p.add_argument("--fstag", type=int, default=4)
    p.add_argument("--ssleep1", type=int, default=8)
    p.add_argument("--tpol", default="nt")
    p.add_argument("--kvpol", default="nt")
    p.add_argument("--cntq", default="16,16,16,16,16,16,16,16")
    p.add_argument("--cnt1", default="7,7,7,7,7,7,7,7")
    p.add_argument("--cnt2", default="7,7,7,7,7,7,7,7")
    o = p.parse_args(argv)
    o.rot = tuple(int(x) for x in o.rot.split(","))
    o.skip = set(x for x in o.skip.split(",") if x)
    for k in ("cntq", "cnt1", "cnt2"):
        setattr(o, k, [int(x) for x in getattr(o, k).split(",")])
    return o

if __name__ == "__main__":
    o = parse(sys.argv[1:])
    open(o.o, "w").write(Gen(o).build())
    print("wrote", o.o)
```

```python
import sys, argparse
from emit import Asm

NAME = "gated_mix__sliding_block_cached__mixer_channel_mlp__decode"
KNAME = NAME + "_kernel"

WS_QP = 0x100000
WS_HP = 0x180000
WS_OP = 0x200000
WS_ST = 0x300000
WS_BP = 0x400000
WS_MP = 0x500000
WS_XI = 0x5c0000
WS_DBG = 0x600000
WS_SIZE = 0x800000

L_TILE = 0
XP = 928
L_X = 57344
L_Y = 64768
L_WO = 72192
L_Q = 88576
L_P = 89600
L_OP = 90624
L_ST = 107008
L_A = 107136
L_FIN = 109312
L_CNT = 109440
L_SH = 109568
LDS_BYTES = 111616
C_A0, C_A1, C_WO, C_Q = 0, 4, 8, 12

SPIN_LIMIT = 20000

sX, sK, sV, sWQ, sWO, sW1, sB1, sW2, sB2, sGW, sOUT, sDBG, sWS = 4, 6, 8, 10, 12, 16, 18, 20, 22, 24, 26, 28, 30
sT, sT8, sT88 = 32, 33, 34
sKVH, sJ, sB, sS, sJJ = 35, 36, 37, 38, 39
SRD_WS = "s[48:51]"
sFF00 = 72
sPSEL = 73
sPSEL2 = 14
sW = 74
STAMP0 = 84
DPP = "row_mask:0xf bank_mask:0xf"

def srd(a, base, ptr, nbytes):
    a(f"s_mov_b32 s{base}, s{ptr}")
    a(f"s_and_b32 s{base+1}, s{ptr+1}, 0xffff")
    a(f"s_mov_b32 s{base+2}, {nbytes}")
    a(f"s_mov_b32 s{base+3}, 0x20000")

def pack8(vals):
    v = 0
    for i, x in enumerate(vals):
        assert 0 <= x < 256
        v |= x << (8 * i)
    return v & 0xffffffff, v >> 32

class Gen:
    def __init__(self, opt):
        self.o = opt
        self.a = Asm()

    def stamp(self, idx):
        if self.o.stamps:
            self.a("s_memrealtime s[100:101]")
            self.a("s_waitcnt lgkmcnt(0)")
            self.a(f"s_mov_b32 s{STAMP0+idx}, s100")

    def dump_stamps(self):
        if not self.o.stamps:
            return
        a = self.a
        if self.o.dbgtime:
            a("s_mov_b64 exec, -1")
            srd(a, 60, sDBG, 256)
            a(f"s_not_b32 s{STAMP0}, s{STAMP0}")
            a("v_mov_b32 v1, 0")
            for i in range(16):
                a(f"v_writelane_b32 v1, s{STAMP0+i}, {i}")
            a("s_memrealtime s[100:101]\ns_waitcnt lgkmcnt(0)")
            a("v_writelane_b32 v1, s100, 15")
            a("v_mbcnt_lo_u32_b32 v2, -1, 0\nv_mbcnt_hi_u32_b32 v2, -1, v2\nv_lshlrev_b32 v2, 2, v2")
            a("s_cmp_ge_u32 s3, 8\ns_cselect_b32 s80, 64, 0")
            a("s_mov_b32 exec_lo, 0xffff\ns_mov_b32 exec_hi, 0")
            a("buffer_atomic_umax v1, v2, s[60:63], s80 offen")
            a("s_waitcnt vmcnt(0)")
            return
        a("s_mov_b64 exec, -1")
        a("s_lshl_b32 s80, s2, 4\ns_add_u32 s80, s80, s3\ns_lshl_b32 s80, s80, 6")
        a(f"s_add_u32 s80, s80, {WS_DBG}")
        a("v_mov_b32 v1, 0")
        for i in range(16):
            a(f"v_writelane_b32 v1, s{STAMP0+i}, {i}")
        a("v_mbcnt_lo_u32_b32 v2, -1, 0\nv_mbcnt_hi_u32_b32 v2, -1, v2\nv_lshlrev_b32 v2, 2, v2")
        a("s_mov_b32 exec_lo, 0xffff\ns_mov_b32 exec_hi, 0")
        a(f"buffer_store_dword v1, v2, {SRD_WS}, s80 offen")
        a("s_waitcnt vmcnt(0)")

    def setexec(self, lo, hi):
        self.a(f"s_mov_b32 exec_lo, {hex(lo)}\ns_mov_b32 exec_hi, {hex(hi)}")

    def lds_signal(self, cnt_off, v0, v1):
        a = self.a
        a(f"v_mov_b32 v{v0}, {L_CNT + cnt_off}")
        a(f"v_mov_b32 v{v1}, 1")
        self.setexec(1, 0)
        a(f"ds_add_u32 v{v0}, v{v1}")
        a("s_mov_b64 exec, -1")

    def lds_wait(self, cnt_off, target, v0, v1, sleep=1):
        a = self.a
        L = a.label("lw"); Ld = a.label("lwd")
        a(f"v_mov_b32 v{v0}, {L_CNT + cnt_off}")
        a(f"s_mov_b32 s81, 0")
        a(f"{L}:")
        a(f"ds_read_b32 v{v1}, v{v0}")
        a("s_waitcnt lgkmcnt(0)")
        a(f"v_readfirstlane_b32 s80, v{v1}")
        a(f"s_cmp_ge_u32 s80, {target}")
        a(f"s_cbranch_scc1 {Ld}")
        a(f"s_add_u32 s81, s81, 1")
        a(f"s_cmp_ge_u32 s81, {SPIN_LIMIT*8}")
        a(f"s_cbranch_scc1 {Ld}")
        a(f"s_sleep {sleep}")
        a(f"s_branch {L}")
        a(f"{Ld}:")

    def check4w(self, r, vbad, vt, vu, first):
        a = self.a
        a(f"v_perm_b32 v{vt}, v{r}, v{r+1}, s{sPSEL}")
        a(f"v_perm_b32 v{vu}, v{r+2}, v{r+3}, s{sPSEL2}")
        a(f"v_or_b32 v{vt}, v{vt}, v{vu}")
        if first:
            a(f"v_xor_b32 v{vbad}, s{sT88}, v{vt}")
        else:
            a(f"v_xor_b32 v{vt}, s{sT88}, v{vt}\nv_or_b32 v{vbad}, v{vbad}, v{vt}")

    def unmask(self, r, n=4, dst=None):
        for i in range(n):
            self.a(f"v_and_b32 v{(dst if dst is not None else r)+i}, s{sFF00}, v{r+i}")

    def vpoll(self, loads, regs, vbad, vt, vu, sleep, name="", issued=False, wait="vmcnt(0)"):
        a = self.a
        if name and ('no_' + name) in self.o.skip:
            return
        L = a.label("vp"); Ld = a.label("vpd")
        a("s_mov_b32 s81, 0")
        if issued:
            a(f"s_waitcnt {wait}")
            for i, r in enumerate(regs):
                self.check4w(r, vbad, vt, vu, i == 0)
            a(f"v_cmp_ne_u32 vcc, 0, v{vbad}\ns_cbranch_vccz {Ld}")
        a(f"{L}:")
        loads()
        a("s_waitcnt vmcnt(0)")
        for i, r in enumerate(regs):
            self.check4w(r, vbad, vt, vu, i == 0)
        a(f"v_cmp_ne_u32 vcc, 0, v{vbad}\ns_cbranch_vccz {Ld}")
        a(f"s_add_u32 s81, s81, 1\ns_cmp_ge_u32 s81, {SPIN_LIMIT}\ns_cbranch_scc1 {Ld}")
        a(f"s_sleep {sleep}\ns_branch {L}")
        a(f"{Ld}:")

    def spoll(self, off_expr, loads, words, sleep, name=""):
        a = self.a
        if name and ('no_' + name) in self.o.skip:
            return
        P = a.label("sp"); Pd = a.label("spd")
        a(f"s_add_u32 s78, s{sWS}, s{off_expr}\ns_addc_u32 s79, s{sWS+1}, 0")
        a("s_mov_b32 s81, 0")
        a(f"{P}:")
        for ndw, dst, imm in loads:
            rng = f"s[{dst}:{dst+ndw-1}]" if ndw > 1 else f"s{dst}"
            a(f"s_load_dword{'x'+str(ndw) if ndw > 1 else ''} {rng}, s[78:79], {imm} glc")
        a("s_waitcnt lgkmcnt(0)")
        a(f"s_xor_b32 s80, s{words[0]}, s{sT8}")
        for t in words[1:]:
            a(f"s_xor_b32 s82, s{t}, s{sT8}\ns_or_b32 s80, s80, s82")
        a(f"s_and_b32 s80, s80, 0xff\ns_cbranch_scc0 {Pd}")
        a(f"s_add_u32 s81, s81, 1\ns_cmp_ge_u32 s81, {SPIN_LIMIT}\ns_cbranch_scc1 {Pd}")
        a(f"s_sleep {sleep}\ns_branch {P}")
        a(f"{Pd}:")

    def bf16_round(self, dst, src):
        a = self.a
        a(f"v_cvt_pk_bf16_f32 v{dst}, v{src}, v{src}")
        a(f"v_and_b32 v{dst}, 0xffff0000, v{dst}")

    def row16_reduce(self, op, v):
        for r in (8, 4, 2, 1):
            self.a(f"{op}_dpp v{v}, v{v}, v{v} row_ror:{r} {DPP}")

    def swap_reduce(self, op, v, t, which):
        a = self.a
        a(f"v_mov_b32 v{t}, v{v}")
        a(f"v_permlane{which}_swap_b32 v{v}, v{t}")
        a(f"{op} v{v}, v{v}, v{t}")

    def prologue(self):
        a = self.a
        a("s_cmp_ge_u32 s2, 256")
        a("s_cbranch_scc1 L_end")
        a("s_load_dwordx16 s[4:19], s[0:1], 0")
        a("s_load_dwordx8 s[20:27], s[0:1], 64")
        a("s_load_dwordx4 s[28:31], s[0:1], 96")
        if self.o.stamps:
            for i in range(16):
                a(f"s_mov_b32 s{STAMP0+i}, 0")
            a("s_memrealtime s[100:101]")
        a("v_lshrrev_b32 v1, 6, v0")
        a("v_and_b32 v0, 63, v0")
        a("v_readfirstlane_b32 s3, v1")
        a(f"s_and_b32 s{sKVH}, s2, 7")
        a(f"s_lshr_b32 s{sJ}, s2, 3")
        a(f"s_and_b32 s{sB}, s{sJ}, 7")
        a(f"s_lshr_b32 s{sS}, s{sJ}, 3")
        a(f"s_sub_u32 s40, s{sJ}, 4")
        a(f"s_cmp_lt_u32 s{sJ}, 4")
        a(f"s_cselect_b32 s{sJJ}, 255, s40")
        a(f"s_mov_b32 s{sFF00}, 0xffffff00")
        a(f"s_mov_b32 s{sPSEL}, 0x0c0c0400")
        a("s_cmp_ge_u32 s3, 8")
        a("s_cbranch_scc1 L_helper")

    def after_karg(self):
        a = self.a
        a("s_waitcnt lgkmcnt(0)")
        if self.o.stamps:
            a(f"s_mov_b32 s{STAMP0}, s100")
        a(f"s_load_dword s{sT}, s[{sWS}:{sWS+1}], 0")
        a(f"s_mov_b32 s{sPSEL2}, 0x04000c0c")

    def tag_setup(self):
        a = self.a
        a("s_waitcnt lgkmcnt(0)")
        a(f"s_add_u32 s{sT}, s{sT}, 1")
        a(f"s_and_b32 s{sT8}, s{sT}, 0xff")
        a(f"s_mul_i32 s{sT88}, s{sT8}, 0x01010101")

    def streaming(self):
        a = self.a; o = self.o
        KD, VD = 8, 72
        QA = 136
        D0 = 144
        XS = 148
        SEL = 156
        vKo, vVo = 1, 2
        a.c("================= streaming wave =================")
        a(f"s_mov_b32 s{sW}, s3")
        a(f"s_lshl_b32 s75, s{sB}, 3\ns_add_u32 s75, s75, s{sKVH}\ns_lshl_b32 s75, s75, 21")
        a(f"s_lshl_b32 s76, s{sS}, 17\ns_add_u32 s75, s75, s76")
        a(f"s_add_u32 s75, s75, 0x180000")
        mb, mk, mw, ms = o.rot
        terms = [(sB, mb), (sKVH, mk), (sW, mw), (sS, ms)]
        a("s_mov_b32 s76, 0")
        for reg, m in terms:
            if m == 1:
                a(f"s_add_u32 s76, s76, s{reg}")
            elif m:
                a(f"s_mul_i32 s77, s{reg}, {m}\ns_add_u32 s76, s76, s77")
        if o.kmap == 'contig':
            a(f"s_lshl_b32 s77, s{sW}, 14\ns_add_u32 s75, s75, s77")
            a("s_and_b32 s76, s76, 7\ns_lshl_b32 s76, s76, 11")
            for t in range(8):
                if t:
                    a(f"s_add_u32 s76, s76, 0x800\ns_and_b32 s76, s76, 0x3fff")
                a(f"s_add_u32 s{40+t}, s76, s75")
        elif o.kmap == 'inter':
            a(f"s_lshl_b32 s77, s{sW}, 11\ns_add_u32 s75, s75, s77")
            a("s_and_b32 s76, s76, 7\ns_lshl_b32 s76, s76, 14")
            for t in range(8):
                if t:
                    a(f"s_add_u32 s76, s76, 0x4000\ns_and_b32 s76, s76, 0x1ffff")
                a(f"s_add_u32 s{40+t}, s76, s75")
        elif o.kmap == 'rot64':
            a(f"s_lshl_b32 s77, s{sW}, 3\ns_add_u32 s76, s76, s77\ns_and_b32 s76, s76, 63\ns_lshl_b32 s76, s76, 11")
            for t in range(8):
                if t:
                    a(f"s_add_u32 s76, s76, 0x800\ns_and_b32 s76, s76, 0x1ffff")
                a(f"s_add_u32 s{40+t}, s76, s75")
        a(f"v_lshrrev_b32 v3, 4, v0\nv_lshlrev_b32 v{vKo}, 6, v3")
        a(f"v_bfe_u32 v4, v0, 2, 2\nv_lshl_add_u32 v{vKo}, v4, 9, v{vKo}")
        a(f"v_and_b32 v4, 3, v0\nv_lshl_add_u32 v{vKo}, v4, 4, v{vKo}")
        a(f"v_and_b32 v4, 15, v0\nv_lshlrev_b32 v4, 4, v4\nv_lshl_add_u32 v{vVo}, v3, 9, v4")
        self.after_karg()
        srd(a, 52, sK, 0x8000000)
        def ld(m, isv):
            t, c = m // 2, m % 2
            r = (VD if isv else KD) + 4 * m
            a(f"buffer_load_dwordx4 v[{r}:{r+3}], v{vVo if isv else vKo}, {'s[56:59]' if isv else 's[52:55]'}, s{40+t} offen offset:{c*256} {o.kvpol}")
        npre = o.npre
        if o.sprio == 'kfirst':
            a("s_setprio 1")
        for m in range(npre):
            ld(m, False)
        a("s_barrier")
        srd(a, 56, sV, 0x8000000)
        srd(a, 48, sWS, WS_SIZE)
        if o.sprio == 'young':
            a(f"s_cmp_ge_u32 s{sW}, 4\ns_cbranch_scc0 L_noprio\ns_setprio 1\nL_noprio:")
        for m in range(npre, 16):
            if o.kwin and m >= o.kwin:
                a(f"s_waitcnt vmcnt({o.kwin - 1})")
            ld(m, False)
        if o.sprio == 'kfirst':
            a("s_setprio 0")
        for m in range(16):
            if o.kwin and m < o.vwin_n:
                a(f"s_waitcnt vmcnt({o.kwin - 1})")
            ld(m, True)
        self.stamp(1)
        self.tag_setup()
        for base, val in ((64, 0x22222222), (66, 0x44444444), (68, 0x88888888)):
            a(f"s_mov_b32 s{base}, {hex(val)}\ns_mov_b32 s{base+1}, {hex(val)}")
        a("s_mov_b32 s70, 0\ns_mov_b32 s71, -1")
        vQ, vPw, vPr, vOw = 3, 4, 5, 6
        a(f"v_lshrrev_b32 v7, 4, v0\nv_lshlrev_b32 v{vQ}, 6, v7")
        a(f"v_bfe_u32 v164, v0, 2, 1\nv_lshl_add_u32 v{vQ}, v164, 9, v{vQ}")
        a(f"v_and_b32 v164, 3, v0\nv_lshl_add_u32 v{vQ}, v164, 4, v{vQ}")
        a(f"v_add_u32 v{vQ}, {L_Q}, v{vQ}")
        a(f"s_lshl_b32 s77, s{sW}, 7\ns_add_u32 s77, s77, {L_P}")
        a(f"v_bfe_u32 v164, v0, 2, 3\nv_lshlrev_b32 v{vPw}, 4, v164")
        a(f"v_lshrrev_b32 v164, 5, v0\nv_lshl_add_u32 v{vPw}, v164, 3, v{vPw}")
        a(f"v_and_b32 v164, 3, v0\nv_lshl_add_u32 v{vPw}, v164, 1, v{vPw}")
        a(f"v_add_u32 v{vPw}, s77, v{vPw}")
        a(f"v_bfe_u32 v164, v0, 3, 1\nv_lshlrev_b32 v{vPr}, 6, v164")
        a(f"v_lshl_add_u32 v{vPr}, v7, 4, v{vPr}\nv_add_u32 v{vPr}, s77, v{vPr}")
        a(f"s_lshl_b32 s77, s{sW}, 11\ns_add_u32 s77, s77, {L_OP}")
        a(f"v_lshrrev_b32 v164, 5, v0\nv_lshlrev_b32 v{vOw}, 10, v164")
        a(f"v_and_b32 v164, 15, v0\nv_lshl_add_u32 v{vOw}, v164, 5, v{vOw}")
        a(f"v_bfe_u32 v164, v0, 4, 1\nv_lshl_add_u32 v{vOw}, v164, 4, v{vOw}")
        a(f"v_add_u32 v{vOw}, s77, v{vOw}")
        a("v_and_b32 v164, 1, v0\nv_cmp_eq_u32 vcc, 1, v164")
        a("v_mov_b32 v165, 0x0c0c0100\nv_mov_b32 v166, 0x01000c0c\nv_cndmask_b32 v165, v165, v166, vcc")
        a("v_mov_b32 v166, 0x0c0c0302\nv_mov_b32 v167, 0x03020c0c\nv_cndmask_b32 v166, v166, v167, vcc")
        a("v_bfe_u32 v164, v0, 1, 2\nv_mov_b32 v167, 0x0c0c0c0c")
        for j in range(4):
            a(f"v_cmp_eq_u32 vcc, {j}, v164")
            a(f"v_cndmask_b32 v{SEL+j}, v167, v165, vcc")
            a(f"v_cndmask_b32 v{SEL+4+j}, v167, v166, vcc")
        if 'qwait' not in o.skip:
            self.lds_wait(C_Q, 4, 164, 165, sleep=2)
        self.stamp(2)
        a(f"ds_read_b128 v[{QA}:{QA+3}], v{vQ}")
        a(f"ds_read_b128 v[{QA+4}:{QA+7}], v{vQ} offset:256")
        a(f"v_mov_b32 v164, {L_FIN+72}\nds_read_b32 v165, v164")
        a("s_waitcnt lgkmcnt(0)")
        a("v_readfirstlane_b32 s47, v165")
        Dreg = [D0] + [KD + 8 * (t - 1) for t in range(1, 8)]
        for t in range(8):
            a(f"s_waitcnt vmcnt({30 - 2*t})")
            k0, k1 = KD + 8 * t, KD + 8 * t + 4
            d = Dreg[t]
            a(f"v_mfma_f32_16x16x32_bf16 v[{d}:{d+3}], v[{QA}:{QA+3}], v[{k0}:{k0+3}], 0")
            a(f"v_mfma_f32_16x16x32_bf16 v[{d}:{d+3}], v[{QA+4}:{QA+7}], v[{k1}:{k1+3}], v[{d}:{d+3}]")
        self.stamp(3)
        for t in range(8):
            d = Dreg[t]; x = XS + t
            a(f"v_cndmask_b32 v{x}, v{d}, v{d+1}, s[64:65]")
            a(f"v_cndmask_b32 v{x}, v{x}, v{d+2}, s[66:67]")
            a(f"v_cndmask_b32 v{x}, v{x}, v{d+3}, s[68:69]")
        for i in range(4):
            a(f"v_cndmask_b32 v{XS+i}, v{XS+i}, v{XS+4+i}, s[70:71]")
        for i in range(4):
            a(f"v_add_f32_dpp v{XS+i}, v{XS+i}, v{XS+i} quad_perm:[1,0,3,2] {DPP}")
        for i in range(4):
            a(f"v_add_f32_dpp v{XS+i}, v{XS+i}, v{XS+i} quad_perm:[2,3,0,1] {DPP}")
        Z, M_, P_, T_ = XS + 4, XS + 6, XS + 7, XS + 5
        a(f"v_cndmask_b32 v{Z}, v{XS}, v{XS+1}, s[64:65]")
        a(f"v_cndmask_b32 v{Z}, v{Z}, v{XS+2}, s[66:67]")
        a(f"v_cndmask_b32 v{Z}, v{Z}, v{XS+3}, s[68:69]")
        self.bf16_round(Z, Z)
        a(f"v_mul_f32 v{Z}, 0x3db8aa3b, v{Z}")
        a(f"v_mov_b32 v{M_}, v{Z}")
        self.row16_reduce("v_max_f32", M_)
        self.swap_reduce("v_max_f32", M_, T_, 32)
        a(f"v_sub_f32 v{P_}, v{Z}, v{M_}")
        a(f"v_exp_f32 v{P_}, v{P_}")
        a(f"v_cvt_pk_bf16_f32 v{T_}, v{P_}, v{P_}")
        a(f"ds_write_b16 v{vPw}, v{T_}")
        P8 = KD
        a(f"ds_read_b128 v[{P8}:{P8+3}], v{vPr}")
        self.row16_reduce("v_add_f32", P_)
        self.swap_reduce("v_add_f32", P_, XS, 32)
        a(f"s_lshl_b32 s77, s{sW}, 3\ns_add_u32 s77, s77, {L_ST}")
        a(f"v_bfe_u32 v164, v0, 4, 1\nv_lshlrev_b32 v164, 6, v164\nv_add_u32 v164, s77, v164")
        self.setexec(0x10001, 0)
        a(f"ds_write_b64 v164, v[{M_}:{M_+1}]")
        a("s_mov_b64 exec, -1")
        a("s_waitcnt lgkmcnt(1)")
        ACC = QA
        AR = [KD + 8, KD + 12]
        for u in range(8):
            ar = AR[u & 1]
            for j in range(4):
                a(f"v_perm_b32 v{ar+j}, v{P8 + u//2}, v{P8 + u//2}, v{SEL + 4*(u&1) + j}")
            a(f"s_waitcnt vmcnt({14 - 2*u})")
            for c in range(2):
                vb = VD + 8 * u + 4 * c
                acc = ACC + 4 * c
                cin = "0" if u == 0 else f"v[{acc}:{acc+3}]"
                a(f"v_mfma_f32_16x16x32_bf16 v[{acc}:{acc+3}], v[{ar}:{ar+3}], v[{vb}:{vb+3}], {cin}")
        self.stamp(4)
        a(f"s_lshl_b32 s77, s{sW}, 8\ns_add_u32 s77, s77, {L_OP}")
        a(f"v_lshlrev_b32 v32, 2, v0\nv_add_u32 v3, s77, v32")
        a(f"s_lshr_b32 s77, s{sW}, 2\ns_lshl_b32 s77, s77, 6\ns_add_u32 s77, s77, {L_ST}")
        a(f"v_mov_b32 v4, s77")
        a(f"v_mov_b32 v33, s{sT8}")
        a(f"s_lshl_b32 s76, s{sKVH}, 3\ns_add_u32 s76, s76, s{sB}")
        a(f"s_lshl_b32 s78, s76, 2\ns_add_u32 s78, s78, s{sS}\ns_lshl_b32 s78, s78, 11")
        a(f"s_lshl_b32 s79, s{sW}, 8\ns_add_u32 s78, s78, s79\ns_add_u32 s46, s78, {WS_OP}")
        a(f"s_lshl_b32 s77, s76, 1\ns_lshr_b32 s78, s{sW}, 2\ns_add_u32 s77, s77, s78\ns_lshl_b32 s77, s77, 2")
        a(f"s_add_u32 s77, s77, s{sS}\ns_lshl_b32 s77, s77, 4\ns_add_u32 s45, s77, {WS_ST}")
        a(f"ds_write_b128 v{vOw}, v[{ACC}:{ACC+3}]")
        a(f"ds_write_b128 v{vOw}, v[{ACC+4}:{ACC+7}] offset:512")
        a(f"s_lshl_b32 s76, s{sKVH}, 3\ns_add_u32 s76, s76, s{sW}")
        a(f"s_and_b32 s78, s{sJJ}, 3")
        a(f"s_lshl_b32 s77, s76, 13\ns_lshl_b32 s79, s78, 9\ns_add_u32 s77, s77, s79\ns_add_u32 s40, s77, {WS_OP}\ns_add_u32 s41, s40, 4096")
        a(f"s_lshl_b32 s77, s76, 1\ns_lshr_b32 s79, s78, 1\ns_add_u32 s77, s77, s79\ns_lshl_b32 s77, s77, 6\ns_add_u32 s44, s77, {WS_ST}")
        a("v_lshrrev_b32 v34, 5, v0\nv_lshlrev_b32 v34, 11, v34\nv_and_b32 v35, 31, v0\nv_lshl_add_u32 v34, v35, 4, v34")
        a(f"s_mul_i32 s77, s{sW}, 272\ns_add_u32 s77, s77, {L_A}\nv_lshlrev_b32 v35, 3, v35\nv_add_u32 v35, s77, v35")
        a("s_waitcnt lgkmcnt(0)")
        a("s_barrier")
        self.stamp(5)
        if 'tail' in o.skip:
            a("s_barrier\ns_branch L_fin")
        OW, SW = 8, 16
        for i in range(4):
            a(f"ds_read_b128 v[{SW+4*i}:{SW+4*i+3}], v4 offset:{16*i}")
        for i in range(4):
            a(f"ds_read2st64_b32 v[{OW+2*i}:{OW+2*i+1}], v3 offset0:{16*i} offset1:{16*i+8}")
        a("s_waitcnt lgkmcnt(4)")
        ms_ = [SW + 2 * w for w in range(8)]
        a(f"v_max3_f32 v5, v{ms_[0]}, v{ms_[1]}, v{ms_[2]}")
        a(f"v_max3_f32 v6, v{ms_[3]}, v{ms_[4]}, v{ms_[5]}")
        a(f"v_max3_f32 v5, v5, v{ms_[6]}, v{ms_[7]}")
        a(f"v_max_f32 v5, v5, v6")
        a(f"v_and_b32 v5, s{sFF00}, v5")
        for w in range(8):
            a(f"v_sub_f32 v{ms_[w]}, v{ms_[w]}, v5")
        for w in range(8):
            a(f"v_exp_f32 v{ms_[w]}, v{ms_[w]}")
        a("s_waitcnt lgkmcnt(0)")
        a(f"v_mul_f32 v6, v{ms_[0]}, v{OW}\nv_mul_f32 v7, v{ms_[1]}, v{OW+1}")
        for w in range(2, 8, 2):
            a(f"v_fmac_f32 v6, v{ms_[w]}, v{OW+w}\nv_fmac_f32 v7, v{ms_[w+1]}, v{OW+w+1}")
        a("v_add_f32 v6, v6, v7")
        a(f"v_and_or_b32 v6, v6, s{sFF00}, v33")
        Lf = a.label("fast"); Lf2 = a.label("fastd")
        a(f"s_cmp_eq_u32 s47, 1\ns_cbranch_scc1 {Lf}")
        a(f"buffer_store_dword v6, v32, {SRD_WS}, s46 offen sc1\ns_branch {Lf2}")
        a(f"{Lf}:\nbuffer_store_dword v6, v32, {SRD_WS}, s46 offen\n{Lf2}:")
        Ls = a.label("nost")
        a(f"s_and_b32 s78, s{sW}, 3\ns_cmp_lg_u32 s78, 0\ns_cbranch_scc1 {Ls}")
        a(f"v_mul_f32 v7, v{ms_[0]}, v{ms_[0]+1}")
        for w in range(1, 8):
            a(f"v_fmac_f32 v7, v{ms_[w]}, v{ms_[w]+1}")
        a(f"v_or_b32 v36, v5, v33\nv_and_or_b32 v37, v7, s{sFF00}, v33\nv_mov_b32 v38, v33\nv_mov_b32 v39, v33\nv_mov_b32 v32, 0")
        self.setexec(1, 0)
        Lg = a.label("fast"); Lg2 = a.label("fastd")
        a(f"s_cmp_eq_u32 s47, 1\ns_cbranch_scc1 {Lg}")
        a(f"buffer_store_dwordx4 v[36:39], v32, {SRD_WS}, s45 offen sc1\ns_branch {Lg2}")
        a(f"{Lg}:\nbuffer_store_dwordx4 v[36:39], v32, {SRD_WS}, s45 offen\n{Lg2}:")
        a("s_mov_b64 exec, -1")
        a(f"{Ls}:")
        self.stamp(6)
        Lng = a.label("nogather")
        a(f"s_cmp_eq_u32 s{sJJ}, 255\ns_cbranch_scc1 {Lng}")
        G = 40
        def loads():
            a(f"buffer_load_dwordx4 v[{G}:{G+3}], v34, {SRD_WS}, s40 offen sc1")
            a(f"buffer_load_dwordx4 v[{G+4}:{G+7}], v34, {SRD_WS}, s41 offen sc1")
        self.spoll(44, [(16, 52, 0)], [52 + i for i in range(16)], 1, name='a')
        loads()
        for i in range(4):
            a(f"s_and_b32 s{52+4*i}, s{52+4*i}, s{sFF00}\ns_and_b32 s{53+4*i}, s{53+4*i}, s{sFF00}")
        a("v_mov_b32 v8, s52\nv_mov_b32 v9, s56\nv_mov_b32 v10, s60\nv_mov_b32 v11, s64")
        a("v_max3_f32 v5, v8, v9, v10\nv_max_f32 v5, v5, v11")
        for i in range(4):
            a(f"v_sub_f32 v{8+i}, v{8+i}, v5")
        for i in range(4):
            a(f"v_exp_f32 v{8+i}, v{8+i}")
        a("v_mul_f32 v6, s53, v8\nv_fmac_f32 v6, s57, v9\nv_fmac_f32 v6, s61, v10\nv_fmac_f32 v6, s65, v11")
        a("v_rcp_f32 v6, v6")
        a("v_cndmask_b32 v8, v8, v9, s[70:71]\nv_cndmask_b32 v9, v10, v11, s[70:71]")
        a("v_mul_f32 v8, v8, v6\nv_mul_f32 v9, v9, v6")
        self.vpoll(loads, [G, G + 4], 5, 6, 7, 1, name='a', issued=True)
        self.stamp(7)
        self.unmask(G, 8)
        for k in range(4):
            a(f"v_mul_f32 v{12+k}, v8, v{G+k}")
        for k in range(4):
            a(f"v_fmac_f32 v{12+k}, v9, v{G+4+k}")
        for k in range(4):
            a(f"v_mov_b32 v{16+k}, v{12+k}")
        for k in range(4):
            a(f"v_permlane32_swap_b32 v{12+k}, v{16+k}")
        for k in range(4):
            a(f"v_add_f32 v{12+k}, v{12+k}, v{16+k}")
        a("v_cvt_pk_bf16_f32 v12, v12, v13\nv_cvt_pk_bf16_f32 v13, v14, v15")
        self.setexec(0xffffffff, 0)
        a("ds_write_b64 v35, v[12:13]")
        a("s_mov_b64 exec, -1")
        a("s_waitcnt lgkmcnt(0)")
        a(f"{Lng}:")
        a("s_barrier")
        self.stamp(8)
        a(f"s_cmp_lg_u32 s{sW}, 0\ns_cbranch_scc1 L_fin")
        a(f"s_cmp_eq_u32 s{sJJ}, 255\ns_cbranch_scc1 L_fin")
        a(f"s_mul_i32 s76, s{sKVH}, 28\ns_add_u32 s76, s76, s{sJJ}")
        a(f"s_lshl_b32 s77, s76, 11\ns_add_u32 s40, s77, {WS_BP}\ns_add_u32 s41, s40, 1024")
        a(f"s_lshl_b32 s77, s76, 9\ns_add_u32 s44, s77, {WS_MP}")
        a("v_lshlrev_b32 v3, 4, v0")
        a("v_and_b32 v2, 31, v0\nv_lshlrev_b32 v2, 4, v2")
        a(f"v_and_b32 v4, 3, v0\nv_lshlrev_b32 v4, 4, v4\nv_add_u32 v4, {L_FIN}, v4")
        a(f"v_mov_b32 v9, {L_FIN+64}")
        a("ds_read_b128 v[24:27], v4")
        a("ds_read_b64 v[14:15], v9")
        srd(a, 60, sOUT, 8 * 448 * 2)
        a(f"s_mul_i32 s46, s{sKVH}, 896\ns_lshl_b32 s78, s{sJJ}, 5\ns_add_u32 s46, s46, s78")
        G, G2, G3 = 40, 64, 96
        def loads2(g):
            a(f"buffer_load_dwordx4 v[{g+8}:{g+11}], v2, {SRD_WS}, s44 offen sc1")
            a(f"buffer_load_dwordx4 v[{g}:{g+3}], v3, {SRD_WS}, s40 offen sc1")
            a(f"buffer_load_dwordx4 v[{g+4}:{g+7}], v3, {SRD_WS}, s41 offen sc1")
        Lp = a.label("fp"); La = a.label("fpa"); Lb = a.label("fpb"); Lo = a.label("fpo")
        a("s_mov_b32 s81, 0")
        loads2(G)
        a(f"s_sleep {o.fstag}")
        a(f"{Lp}:")
        loads2(G2)
        a("s_waitcnt vmcnt(3)")
        for i, r in enumerate([G+8, G, G+4]):
            self.check4w(r, 5, 6, 7, i == 0)
        a(f"v_cmp_ne_u32 vcc, 0, v5\ns_cbranch_vccz {La}")
        loads2(G)
        a("s_waitcnt vmcnt(3)")
        for i, r in enumerate([G2+8, G2, G2+4]):
            self.check4w(r, 5, 6, 7, i == 0)
        a(f"v_cmp_ne_u32 vcc, 0, v5\ns_cbranch_vccz {Lb}")
        a(f"s_add_u32 s81, s81, 1\ns_cmp_lt_u32 s81, {SPIN_LIMIT}\ns_cbranch_scc1 {Lp}")
        a(f"{Lb}:")
        self.unmask(G2, 12, G3)
        a(f"s_branch {Lo}")
        a(f"{La}:")
        self.unmask(G, 12, G3)
        a(f"{Lo}:")
        self.stamp(9)
        G = G3
        for k in range(4):
            a(f"v_add_f32 v{G+k}, v{G+k}, v{G+4+k}")
        for k in range(4):
            a(f"v_cndmask_b32 v{G+4+k}, v{G+8+k}, 0, s[70:71]")
        vals = [G + k for k in range(8)]
        for ror in (8, 4):
            for e in vals:
                a(f"v_add_f32_dpp v{e}, v{e}, v{e} row_ror:{ror} {DPP}")
        tmp = [112 + k for k in range(8)]
        for which in (16, 32):
            for e, t in zip(vals, tmp):
                a(f"v_mov_b32 v{t}, v{e}")
            for e, t in zip(vals, tmp):
                a(f"v_permlane{which}_swap_b32 v{e}, v{t}")
            for e, t in zip(vals, tmp):
                a(f"v_add_f32 v{e}, v{e}, v{t}")
        a("s_waitcnt lgkmcnt(0)")
        outs = []
        for h2 in range(2):
            A0, A1, M0, M1 = G + 2*h2, G + 2*h2 + 1, G + 4 + 2*h2, G + 5 + 2*h2
            t = 120 + 4 * h2
            a(f"v_cvt_pk_bf16_f32 v{t}, v{A0}, v{A1}\nv_cvt_pk_bf16_f32 v{t+1}, v{M0}, v{M1}")
            a(f"v_lshlrev_b32 v{A0}, 16, v{t}\nv_and_b32 v{A1}, 0xffff0000, v{t}")
            a(f"v_lshlrev_b32 v{M0}, 16, v{t+1}\nv_and_b32 v{M1}, 0xffff0000, v{t+1}")
            a(f"v_add_f32 v{M0}, v{M0}, v{24+2*h2}\nv_add_f32 v{M1}, v{M1}, v{25+2*h2}")
            a(f"v_mul_f32 v{A0}, v{A0}, v14\nv_mul_f32 v{A1}, v{A1}, v14")
            a(f"v_cvt_pk_bf16_f32 v{t+1}, v{M0}, v{M1}\nv_cvt_pk_bf16_f32 v{t}, v{A0}, v{A1}")
            a(f"v_lshlrev_b32 v{M0}, 16, v{t+1}\nv_and_b32 v{M1}, 0xffff0000, v{t+1}")
            a(f"v_lshlrev_b32 v{A0}, 16, v{t}\nv_and_b32 v{A1}, 0xffff0000, v{t}")
            a(f"v_mul_f32 v{M0}, v{M0}, v15\nv_mul_f32 v{M1}, v{M1}, v15")
            a(f"v_cvt_pk_bf16_f32 v{t+1}, v{M0}, v{M1}")
            a(f"v_lshlrev_b32 v{M0}, 16, v{t+1}\nv_and_b32 v{M1}, 0xffff0000, v{t+1}")
            a(f"v_add_f32 v{A0}, v{A0}, v{M0}\nv_add_f32 v{A1}, v{A1}, v{M1}")
            a(f"v_cvt_pk_bf16_f32 v{8+h2}, v{A0}, v{A1}")
        a("v_lshlrev_b32 v3, 3, v0")
        self.setexec(0xf, 0)
        a("buffer_store_dwordx2 v[8:9], v3, s[60:63], s46 offen")
        a("s_cmp_lg_u32 s2, 32\ns_cbranch_scc1 L_fin")
        a(f"v_mov_b32 v8, s{sT}\nv_mov_b32 v3, 0")
        self.setexec(1, 0)
        a(f"buffer_store_dword v8, v3, {SRD_WS}, 0 offen sc1")
        a("s_branch L_fin")

    def publish_f32(self, d, s_base, s_stride, tmp, pol="sc1"):
        a = self.a
        va, vb, quad = tmp, tmp + 1, tmp + 2
        assert quad % 2 == 0
        a(f"s_lshl_b32 s80, s{sW}, 9\ns_add_u32 s80, s80, {L_SH}")
        a(f"v_lshrrev_b32 v{va}, 4, v0\nv_lshlrev_b32 v{va}, 8, v{va}\nv_and_b32 v{vb}, 15, v0\nv_lshl_add_u32 v{va}, v{vb}, 2, v{va}\nv_add_u32 v{va}, s80, v{va}")
        self.setexec(0xffffffff, 0)
        for r in range(4):
            a(f"ds_write_b32 v{va}, v{d+r} offset:{64*r}")
        a(f"v_lshlrev_b32 v{vb}, 4, v0\nv_add_u32 v{vb}, s80, v{vb}")
        a(f"ds_read_b128 v[{quad}:{quad+3}], v{vb}")
        a(f"v_lshrrev_b32 v{va}, 2, v0\nv_mul_lo_u32 v{va}, v{va}, s{s_stride}\nv_and_b32 v{vb}, 3, v0\nv_lshl_add_u32 v{va}, v{vb}, 4, v{va}")
        a(f"v_mov_b32 v{vb}, s{sT8}")
        a("s_waitcnt lgkmcnt(0)")
        for k in range(4):
            a(f"v_and_or_b32 v{quad+k}, v{quad+k}, s{sFF00}, v{vb}")
        if 'nopub' not in self.o.skip:
            a(f"buffer_store_dwordx4 v[{quad}:{quad+3}], v{va}, {SRD_WS}, s{s_base} offen {pol}")
        a("s_mov_b64 exec, -1")

    def tile_params_lane(self):
        a = self.a
        a("v_lshrrev_b32 v1, 3, v0\nv_bfe_u32 v3, v0, 4, 1\nv_lshlrev_b32 v3, 1, v3\nv_and_b32 v2, 7, v0\nv_xor_b32 v2, v2, v3\nv_lshlrev_b32 v2, 4, v2")
        a("v_mul_lo_u32 v1, v1, s41")
        a("v_xor_b32 v2, s75, v2\nv_xor_b32 v6, 64, v2\nv_add_u32 v6, v1, v6\nv_add_u32 v1, v1, v2")

    def tile_mfma(self, nchunk):
        a = self.a
        BF, AF = 8, 40
        self.tr_addr(L_TILE)
        a(f"v_and_b32 v2, 7, v0\nv_mul_u32_u24 v2, {XP}, v2\nv_lshrrev_b32 v3, 4, v0\nv_lshl_add_u32 v2, v3, 4, v2\nv_add_u32 v2, s42, v2")
        def rd(m):
            b = BF + 4 * (m % 7); af = AF + 4 * (m % 7)
            a(f"ds_read_b64_tr_b16 v[{b}:{b+1}], v1 offset:{4096*m}")
            a(f"ds_read_b64_tr_b16 v[{b+2}:{b+3}], v1 offset:{4096*m+512}")
            a(f"ds_read_b128 v[{af}:{af+3}], v2 offset:{64*m}")
        def mm(m):
            b = BF + 4 * (m % 7); af = AF + 4 * (m % 7)
            a(f"v_mfma_f32_16x16x32_bf16 v[4:7], v[{af}:{af+3}], v[{b}:{b+3}], {'0' if m == 0 else 'v[4:7]'}")
        for m in range(4):
            rd(m)
        for m in range(nchunk):
            if m + 4 < nchunk:
                a("s_waitcnt lgkmcnt(9)"); mm(m); rd(m + 4)
            else:
                a(f"s_waitcnt lgkmcnt({3*(nchunk-1-m)})"); mm(m)

    def helper(self):
        a = self.a; o = self.o
        a("L_helper:")
        a.c("================= helper wave =================")
        a("s_setprio 3")
        a(f"s_sub_u32 s{sW}, s3, 8")
        a(f"v_mov_b32 v1, {L_CNT}\nv_mov_b32 v2, 0\nv_mov_b32 v3, 0\nv_mov_b32 v4, 0\nv_mov_b32 v5, 0")
        a(f"s_cmp_lg_u32 s{sW}, 0\ns_cbranch_scc1 L_h_noinit")
        self.setexec(1, 0)
        a("ds_write_b128 v1, v[2:5]")
        a("s_mov_b64 exec, -1")
        a("L_h_noinit:")
        cq, c1, c2 = o.cntq, o.cnt1, o.cnt2
        assert sum(cq) == 128 and sum(c1) == 56 and sum(c2) == 56
        for x in range(8):
            assert cq[x] + c1[x] + c2[x] <= 32
        pref = lambda c: [sum(c[:i]) for i in range(8)]
        def table(vals, dst):
            lo, hi = pack8(vals)
            a(f"s_mov_b32 s76, {hex(lo)}\ns_mov_b32 s77, {hex(hi)}")
            a(f"s_lshr_b64 s[76:77], s[76:77], s78\ns_and_b32 s{dst}, s76, 0xff")
        a(f"s_lshl_b32 s78, s{sKVH}, 3")
        table(cq, 40); table([cq[x] + c1[x] for x in range(8)], 41); table([cq[x] + c1[x] + c2[x] for x in range(8)], 42)
        table(pref(cq), 43)
        table([(pref(c1)[x] - cq[x]) & 0xff for x in range(8)], 44)
        table([(pref(c2)[x] - cq[x] - c1[x]) & 0xff for x in range(8)], 46)
        if 'helpers' in o.skip:
            self.after_karg()
            srd(a, 48, sWS, WS_SIZE)
            a("s_barrier\ns_branch L_h_tail")
        a(f"s_cmp_lt_u32 s{sJ}, s40\ns_cbranch_scc1 L_h_q")
        a(f"s_cmp_lt_u32 s{sJ}, s41\ns_cbranch_scc1 L_h_m1")
        a(f"s_cmp_lt_u32 s{sJ}, s42\ns_cselect_b32 s45, 2, 3")
        a(f"s_add_u32 s47, s46, s{sJ}\ns_and_b32 s47, s47, 0xff")
        self.after_karg()
        srd(a, 48, sWS, WS_SIZE)
        a("s_barrier")
        self.tag_setup()
        self.xid_publish()
        a("s_branch L_h_qgather")
        a("L_h_q:")
        a(f"s_add_u32 s47, s43, s{sJ}\ns_and_b32 s47, s47, 0xff")
        a("s_and_b32 s79, s47, 1\ns_lshr_b32 s76, s47, 1")
        a(f"s_mul_i32 s40, s79, {224*8192}\ns_lshl_b32 s77, s76, 7\ns_add_u32 s40, s40, s77")
        a("s_mov_b32 s41, 8192")
        a(f"s_mov_b32 s42, {L_X}")
        a(f"s_lshr_b32 s43, s76, 3\ns_lshl_b32 s43, s43, 15\ns_and_b32 s77, s76, 7\ns_lshl_b32 s77, s77, 8\ns_add_u32 s43, s43, s77\ns_lshl_b32 s77, s79, 11\ns_add_u32 s43, s43, s77\ns_add_u32 s43, s43, {WS_QP}")
        a("s_mov_b32 s44, 4096\ns_mov_b32 s45, 0")
        self.after_karg()
        srd(a, 52, sWQ, 448 * 8192)
        a("s_branch L_h_tile")
        a("L_h_m1:")
        a(f"s_add_u32 s47, s44, s{sJ}\ns_and_b32 s47, s47, 0xff")
        a("s_and_b32 s79, s47, 1\ns_lshr_b32 s76, s47, 1")
        a(f"s_mul_i32 s40, s79, {224*3584}\ns_lshl_b32 s77, s76, 7\ns_add_u32 s40, s40, s77")
        a("s_mov_b32 s41, 3584")
        a(f"s_mul_i32 s42, s79, 448\ns_add_u32 s42, s42, {L_Y}")
        a(f"s_mul_i32 s43, s79, {8*7168}\ns_lshl_b32 s77, s76, 8\ns_add_u32 s43, s43, s77\ns_add_u32 s43, s43, {WS_HP}")
        a("s_mov_b32 s44, 7168\ns_mov_b32 s45, 1")
        self.after_karg()
        srd(a, 52, sW1, 448 * 3584)
        a("L_h_tile:")
        a(f"s_and_b32 s75, s{sW}, 1\ns_lshl_b32 s75, s75, 6")
        self.tile_params_lane()
        a(f"s_mul_i32 s75, s{sW}, 56")
        a("s_lshl_b32 s76, s75, 7")
        a("s_mul_i32 s75, s75, s41\ns_add_u32 s75, s75, s40")
        a("s_lshl_b32 s77, s41, 3")
        def tl(i):
            a(f"s_add_u32 m0, s76, {L_TILE + 1024*i}")
            a(f"buffer_load_dwordx4 v{1 if i % 2 == 0 else 6}, s[52:55], s75 offen {o.tpol} lds")
            a("s_add_u32 s75, s75, s77")
        srd(a, 56, sX, 7168)
        a("v_lshlrev_b32 v3, 4, v0")
        a(f"s_lshl_b32 s78, s{sW}, 1\ns_mul_i32 s80, s78, {XP}\ns_mul_i32 s78, s78, 896")
        a("s_cmp_eq_u32 s45, 0\ns_cbranch_scc0 L_h_xfull")
        a("s_mul_i32 s79, s79, 448\ns_add_u32 s78, s78, s79")
        self.setexec(0x0fffffff, 0)
        a("s_branch L_h_xgo")
        a("L_h_xfull:")
        self.setexec(0xffffffff, 0x00ffffff)
        a("L_h_xgo:")
        a(f"s_add_u32 m0, s80, {L_X}")
        a("buffer_load_dwordx4 v3, s[56:59], s78 offen lds")
        a(f"s_add_u32 s78, s78, 896\ns_add_u32 m0, s80, {L_X + XP}")
        a("buffer_load_dwordx4 v3, s[56:59], s78 offen lds")
        a("s_mov_b64 exec, -1")
        for i in range(min(o.hpre, 7)):
            tl(i)
        srd(a, 48, sWS, WS_SIZE)
        a("s_barrier")
        for i in range(min(o.hpre, 7), 7):
            tl(i)
        self.stamp(1)
        self.tag_setup()
        a("s_waitcnt vmcnt(0)")
        self.lds_signal(C_A0, 3, 4)
        self.lds_wait(C_A0, 4, 3, 4)
        a("s_cmp_eq_u32 s45, 0\ns_cbranch_scc1 L_h_mm")
        self.layernorm()
        a("s_waitcnt lgkmcnt(0)")
        self.lds_signal(C_A1, 3, 4)
        self.lds_wait(C_A1, 4, 3, 4)
        a("L_h_mm:")
        self.stamp(2)
        self.tile_mfma(7)
        a(f"s_lshl_b32 s75, s{sW}, 6\ns_add_u32 s43, s43, s75")
        a("s_nop 7")
        self.stamp(10)
        self.publish_f32(4, 43, 44, 70)
        self.stamp(3)
        self.xid_publish()
        a("L_h_qgather:")
        self.q_issue()
        a("s_cmp_eq_u32 s45, 2\ns_cbranch_scc1 L_h_qh")
        self.q_finish("vmcnt(0)")
        self.stamp(4)
        a("s_branch L_h_noh")
        a("L_h_qh:")
        self.h_issue()
        self.q_finish("vmcnt(5)")
        self.stamp(4)
        self.h_finish()
        a("s_waitcnt lgkmcnt(0)")
        a("L_h_noh:")
        self.stamp(8)
        WB = 100
        a(f"s_cmp_eq_u32 s{sJJ}, 255\ns_cbranch_scc1 L_h_noprep")
        a(f"s_cmp_lg_u32 s{sW}, 3\ns_cbranch_scc1 L_h_noprep")
        self.finalprep()
        a("L_h_noprep:")
        a(f"s_setprio {o.woprio}")
        a("s_cmp_eq_u32 s45, 2\ns_cbranch_scc0 L_h_now2")
        srd(a, 52, sW2, 1792 * 896)
        a("s_and_b32 s76, s47, 7\ns_lshr_b32 s77, s47, 3")
        a(f"s_mul_i32 s40, s76, {224*896}\ns_lshl_b32 s78, s77, 7\ns_add_u32 s40, s40, s78")
        a(f"s_mov_b32 s41, 896\ns_mov_b32 s42, {L_Y}")
        a(f"s_lshl_b32 s43, s77, 11\ns_lshl_b32 s78, s76, 6\ns_add_u32 s43, s43, s78\ns_lshl_b32 s78, s{sW}, 9\ns_add_u32 s43, s43, s78\ns_add_u32 s46, s43, {WS_MP}")
        a(f"s_and_b32 s75, s{sW}, 1\ns_lshl_b32 s75, s75, 6")
        self.tile_params_lane()
        a(f"s_mul_i32 s75, s{sW}, 56\ns_lshl_b32 s76, s75, 7\ns_mul_i32 s75, s75, 896\ns_add_u32 s75, s75, s40")
        for i in range(7):
            a(f"s_add_u32 m0, s76, {L_TILE + 1024*i}")
            a(f"buffer_load_dwordx4 v{1 if i % 2 == 0 else 6}, s[52:55], s75 offen {o.tpol} lds")
            if i < 6:
                a(f"s_add_u32 s75, s75, {8*896}")
        a("L_h_now2:")
        a(f"s_cmp_eq_u32 s{sJJ}, 255\ns_cbranch_scc1 L_h_nowo")
        srd(a, 60, sWO, 4096 * 896)
        a("s_mov_b32 s41, 896\ns_mov_b32 s75, 0")
        self.tile_params_lane()
        a(f"s_and_b32 s75, s{sJJ}, 3\ns_lshl_b32 s75, s75, 7\ns_lshl_b32 s76, s{sKVH}, 9\ns_add_u32 s75, s75, s76")
        a(f"s_lshl_b32 s76, s{sW}, 5\ns_add_u32 s75, s75, s76\ns_mul_i32 s75, s75, 896")
        a(f"s_lshr_b32 s76, s{sJJ}, 2\ns_lshl_b32 s76, s76, 7\ns_add_u32 s75, s75, s76")
        a(f"s_lshl_b32 s76, s{sW}, 12")
        for i in range(4):
            if 'nowo' in o.skip: break
            a(f"s_add_u32 m0, s76, {L_WO + 1024*i}")
            a(f"buffer_load_dwordx4 v{1 if i % 2 == 0 else 6}, s[60:63], s75 offen {o.tpol} lds")
            if i < 3:
                a(f"s_add_u32 s75, s75, {8*896}")
        a("L_h_nowo:")
        a("s_setprio 3")
        self.stamp(5)
        a("s_barrier")
        if 'tail' in o.skip:
            a("s_barrier\ns_branch L_fin")
        a("s_waitcnt vmcnt(0)")
        self.lds_signal(C_WO, 3, 4)
        self.lds_wait(C_WO, 4, 3, 4)
        self.stamp(9)
        a("s_cmp_eq_u32 s45, 2\ns_cbranch_scc0 L_h_nom2")
        self.tile_mfma(7)
        a(f"s_mov_b32 s44, {28*512}")
        a("s_nop 7")
        self.publish_f32(4, 46, 44, 70)
        a("L_h_nom2:")
        a(f"s_cmp_eq_u32 s{sJJ}, 255\ns_cbranch_scc1 L_h_tail1")
        self.tr_addr(L_WO)
        for m in range(4):
            a(f"ds_read_b64_tr_b16 v[{WB+4*m}:{WB+4*m+1}], v1 offset:{4096*m}")
            a(f"ds_read_b64_tr_b16 v[{WB+4*m+2}:{WB+4*m+3}], v1 offset:{4096*m+512}")
        a(f"s_lshr_b32 s75, s{sJJ}, 2\ns_lshl_b32 s75, s75, 2\ns_add_u32 s75, s75, s{sW}\ns_lshl_b32 s43, s75, 11")
        a(f"s_lshl_b32 s75, s{sKVH}, 2\ns_and_b32 s76, s{sJJ}, 3\ns_add_u32 s75, s75, s76\ns_lshl_b32 s75, s75, 6")
        a(f"s_add_u32 s43, s43, s75\ns_add_u32 s43, s43, {WS_BP}\ns_mov_b32 s44, {28*2048}")
        a(f"v_and_b32 v2, 7, v0\nv_mul_u32_u24 v2, 272, v2\nv_lshrrev_b32 v3, 4, v0\nv_lshl_add_u32 v2, v3, 4, v2\nv_add_u32 v2, {L_A}, v2")
        a("v_lshrrev_b32 v70, 4, v0\nv_lshlrev_b32 v70, 2, v70\nv_mul_lo_u32 v70, v70, s44\nv_and_b32 v71, 15, v0\nv_lshl_add_u32 v70, v71, 2, v70")
        a(f"v_mov_b32 v71, s{sT8}")
        for r in range(4):
            a(f"s_mul_i32 s{76+r}, s44, {r}\ns_add_u32 s{76+r}, s{76+r}, s43")
        a("s_waitcnt lgkmcnt(0)")
        self.stamp(6)
        a("s_barrier")
        for m in range(4):
            a(f"ds_read_b128 v[{40+4*m}:{40+4*m+3}], v2 offset:{64*m}")
        for m in range(4):
            a(f"s_waitcnt lgkmcnt({3-m})")
            a(f"v_mfma_f32_16x16x32_bf16 v[4:7], v[{40+4*m}:{40+4*m+3}], v[{WB+4*m}:{WB+4*m+3}], {'0' if m == 0 else 'v[4:7]'}")
        self.setexec(0xffffffff, 0)
        for r in range(4):
            a(f"v_and_or_b32 v{72+r}, v{4+r}, s{sFF00}, v71")
        for r in range(4):
            a(f"buffer_store_dword v{72+r}, v70, {SRD_WS}, s{76+r} offen sc1")
        self.stamp(7)
        a("s_branch L_fin")
        a("L_h_tail:")
        self.stamp(5)
        a("s_barrier")
        a("L_h_tail1:")
        a("s_barrier")
        a("s_branch L_fin")

    def xid_publish(self):
        a = self.a
        if 'noxid' in self.o.skip:
            return
        L = a.label("noxid")
        a(f"s_cmp_lg_u32 s{sW}, 0\ns_cbranch_scc1 {L}")
        a("s_getreg_b32 s75, hwreg(HW_REG_XCC_ID, 0, 4)")
        a("s_and_b32 s75, s75, 7\ns_mul_i32 s75, s75, 6\ns_mov_b32 s76, 1\ns_mov_b32 s77, 0\ns_lshl_b64 s[76:77], s[76:77], s75")
        srd(a, 60, sDBG, 256)
        a(f"v_mov_b32 v8, s76\nv_mov_b32 v9, s77\ns_lshl_b32 s75, s{sKVH}, 5\nv_mov_b32 v3, s75")
        self.setexec(1, 0)
        a("buffer_atomic_add_x2 v[8:9], v3, s[60:63], 0 offen")
        a("s_mov_b64 exec, -1")
        a(f"{L}:")

    def xid_check(self):
        a = self.a
        L = a.label("noxc")
        a(f"s_cmp_lg_u32 s{sW}, 1\ns_cbranch_scc1 {L}")
        a(f"s_lshl_b32 s75, s{sKVH}, 5\ns_add_u32 s78, s{sDBG}, s75\ns_addc_u32 s79, s{sDBG+1}, 0")
        if 'noxid' in self.o.skip:
            a("s_mov_b32 s76, 0\ns_mov_b32 s77, 0")
        else:
            a("s_load_dwordx2 s[76:77], s[78:79], 0 glc")
        a("s_getreg_b32 s75, hwreg(HW_REG_XCC_ID, 0, 4)")
        a("s_and_b32 s75, s75, 7\ns_mul_i32 s75, s75, 6\ns_waitcnt lgkmcnt(0)\ns_lshr_b64 s[76:77], s[76:77], s75\ns_and_b32 s76, s76, 63")
        a("s_cmp_eq_u32 s76, 32\ns_cselect_b32 s75, 1, 0")
        if 'nofast' in self.o.skip:
            a("s_mov_b32 s75, 0")
        a(f"v_mov_b32 v2, {L_FIN+72}\nv_mov_b32 v3, s75")
        self.setexec(1, 0)
        a("ds_write_b32 v2, v3")
        a("s_mov_b64 exec, -1")
        a(f"{L}:")

    def tr_addr(self, lbase):
        a = self.a
        a("v_lshrrev_b32 v1, 4, v0\nv_lshlrev_b32 v1, 3, v1\nv_bfe_u32 v2, v0, 2, 2\nv_add_u32 v1, v1, v2\nv_lshlrev_b32 v1, 7, v1")
        a("v_bfe_u32 v2, v0, 3, 2")
        a(f"v_xor_b32 v2, s{sW}, v2\nv_lshl_add_u32 v1, v2, 5, v1")
        a(f"v_and_b32 v2, 3, v0\nv_lshl_add_u32 v1, v2, 3, v1\nv_add_u32 v1, {lbase}, v1")

    def q_issue(self):
        a = self.a
        a(f"s_lshl_b32 s75, s{sKVH}, 3\ns_add_u32 s75, s75, s{sB}\ns_lshl_b32 s75, s75, 12\ns_lshl_b32 s76, s{sW}, 9\ns_add_u32 s75, s75, s76")
        a(f"s_add_u32 s43, s75, {WS_QP}")
        a("v_lshrrev_b32 v1, 5, v0\nv_lshlrev_b32 v1, 11, v1\nv_and_b32 v2, 31, v0\nv_lshl_add_u32 v1, v2, 4, v1")
        a("s_add_u32 s76, s43, 60")
        self.spoll(76, [(1, 52, 2048 + 7 * 64)], [52], self.o.ssleep1, name='q')
        self.spoll(76, [(1, 52 + i, (i & 7) * 64 + (i >> 3) * 2048) for i in range(16)], [52 + i for i in range(16)], self.o.ssleep, name='q')
        self.stamp(11)
        self.q_load()

    def q_load(self):
        if 'no_q' not in self.o.skip:
            self.a(f"buffer_load_dwordx4 v[8:11], v1, {SRD_WS}, s43 offen sc1")

    def q_finish(self, wait):
        a = self.a
        self.vpoll(self.q_load, [8], 5, 6, 7, self.o.qsleep, name='q', issued=True, wait=wait)
        self.unmask(8, 4)
        for k in range(4):
            a(f"v_mov_b32 v{12+k}, v{8+k}")
        for k in range(4):
            a(f"v_permlane32_swap_b32 v{8+k}, v{12+k}")
        for k in range(4):
            a(f"v_add_f32 v{8+k}, v{8+k}, v{12+k}")
        a("v_cvt_pk_bf16_f32 v8, v8, v9\nv_cvt_pk_bf16_f32 v9, v10, v11")
        a(f"s_lshl_b32 s75, s{sW}, 8\ns_add_u32 s75, s75, {L_Q}\nv_and_b32 v2, 31, v0\nv_lshlrev_b32 v2, 3, v2\nv_add_u32 v2, s75, v2")
        self.setexec(0xffffffff, 0)
        a("ds_write_b64 v2, v[8:9]")
        a("s_mov_b64 exec, -1")
        self.xid_check()
        a("s_waitcnt lgkmcnt(0)")
        self.lds_signal(C_Q, 3, 4)

    def layernorm(self):
        a = self.a
        X = 8; F = 16
        a(f"s_lshl_b32 s75, s{sW}, 1\ns_mul_i32 s75, s75, {XP}")
        a(f"v_lshrrev_b32 v1, 5, v0\nv_mul_u32_u24 v1, {XP}, v1\nv_and_b32 v2, 31, v0\nv_mul_u32_u24 v2, 28, v2\nv_add_u32 v1, v1, v2\nv_add_u32 v1, s75, v1")
        a(f"v_add_u32 v2, {L_X}, v1")
        for i in range(3):
            a(f"ds_read2_b32 v[{X+2*i}:{X+2*i+1}], v2 offset0:{2*i} offset1:{2*i+1}")
        a(f"ds_read_b32 v{X+6}, v2 offset:24")
        a("s_waitcnt lgkmcnt(0)")
        for i in range(7):
            a(f"v_lshlrev_b32 v{F+2*i}, 16, v{X+i}\nv_and_b32 v{F+2*i+1}, 0xffff0000, v{X+i}")
        a(f"v_add_f32 v3, v{F}, v{F+1}")
        for i in range(2, 14):
            a(f"v_add_f32 v3, v3, v{F+i}")
        self.row16_reduce("v_add_f32", 3)
        self.swap_reduce("v_add_f32", 3, 4, 16)
        a("v_mul_f32 v3, 0x3b124925, v3")
        a(f"v_sub_f32 v5, v{F}, v3\nv_mul_f32 v4, v5, v5")
        for i in range(1, 14):
            a(f"v_sub_f32 v5, v{F+i}, v3\nv_fmac_f32 v4, v5, v5")
        self.row16_reduce("v_add_f32", 4)
        self.swap_reduce("v_add_f32", 4, 5, 16)
        a("v_mul_f32 v4, 0x3b124925, v4")
        self.bf16_round(3, 3)
        self.bf16_round(4, 4)
        a("v_add_f32 v4, 0x3727c5ac, v4")
        self.bf16_round(4, 4)
        a("v_sqrt_f32 v4, v4")
        self.bf16_round(4, 4)
        a("v_rcp_f32 v4, v4")
        a(f"v_add_u32 v2, {L_Y}, v1")
        for i in range(7):
            a(f"v_sub_f32 v{F+2*i}, v{F+2*i}, v3\nv_sub_f32 v{F+2*i+1}, v{F+2*i+1}, v3")
            a(f"v_cvt_pk_bf16_f32 v5, v{F+2*i}, v{F+2*i+1}")
            a(f"v_lshlrev_b32 v6, 16, v5\nv_and_b32 v5, 0xffff0000, v5")
            a(f"v_mul_f32 v6, v6, v4\nv_mul_f32 v5, v5, v4")
            a(f"v_cvt_pk_bf16_f32 v{X+i}, v6, v5")
            a(f"ds_write_b32 v2, v{X+i} offset:{4*i}")

    def gelu(self, x, t0, t1):
        a = self.a
        a(f"v_mul_f32 v{t0}, v{x}, v{x}")
        a(f"v_mov_b32 v{t1}, 0xc0135761")
        a(f"v_fmac_f32 v{t1}, 0xbdd2d3e2, v{t0}")
        a(f"v_mul_f32 v{t1}, v{t1}, v{x}")
        a(f"v_exp_f32 v{t1}, v{t1}")
        a(f"v_add_f32 v{t1}, 1.0, v{t1}")
        a(f"v_rcp_f32 v{t1}, v{t1}")
        a(f"v_mul_f32 v{x}, v{x}, v{t1}")

    def h_loads(self):
        a = self.a
        for i in range(4):
            a(f"buffer_load_dwordx4 v[{16+4*i}:{16+4*i+3}], v60, {SRD_WS}, s{64+i} offen sc1")

    def h_issue(self):
        a = self.a
        a(f"s_lshl_b32 s75, s{sW}, 1\ns_mul_i32 s76, s75, 7168\ns_mul_i32 s77, s75, {XP}")
        a(f"s_and_b32 s78, s47, 7\ns_mul_i32 s79, s78, 896\ns_add_u32 s76, s76, s79\ns_add_u32 s40, s76, {WS_HP}")
        a(f"s_add_u32 s46, s77, {L_Y}\ns_mul_i32 s44, s78, 448")
        a("v_min_u32 v61, 55, v0\nv_lshlrev_b32 v60, 4, v61\nv_lshlrev_b32 v61, 3, v61\nv_add_u32 v62, s46, v61")
        a(f"s_add_u32 s75, s40, {7168 + 60}")
        self.spoll(75, [(1, 52, 8 * 7168 + 13 * 64)], [52], self.o.ssleep1, name='h')
        for kh in range(2):
            self.spoll(75, [(1, 52 + i, kh * 8 * 7168 + i * 64) for i in range(14)], [52 + i for i in range(14)], self.o.ssleep, name='h')
        a(f"s_mov_b32 s64, s40\ns_add_u32 s65, s40, {8*7168}\ns_add_u32 s66, s40, 7168\ns_add_u32 s67, s65, 7168")
        srd(a, 56, sB1, 3584)
        a("buffer_load_dwordx2 v[48:49], v61, s[56:59], s44 offen")
        if 'no_h' not in self.o.skip:
            self.h_loads()

    def h_finish(self):
        a = self.a
        self.vpoll(self.h_loads, [16, 20, 24, 28], 5, 6, 7, 8, name='h', issued=True)
        self.unmask(16, 16)
        a("v_lshlrev_b32 v50, 16, v48\nv_and_b32 v51, 0xffff0000, v48\nv_lshlrev_b32 v52, 16, v49\nv_and_b32 v53, 0xffff0000, v49")
        for bl in range(2):
            r = 16 + 8 * bl
            for k in range(4):
                a(f"v_add_f32 v{r+k}, v{r+k}, v{r+4+k}")
            for k2 in range(2):
                x0, x1 = r + 2 * k2, r + 2 * k2 + 1
                a(f"v_cvt_pk_bf16_f32 v{r+4}, v{x0}, v{x1}")
                a(f"v_lshlrev_b32 v{x0}, 16, v{r+4}\nv_and_b32 v{x1}, 0xffff0000, v{r+4}")
                a(f"v_add_f32 v{x0}, v{x0}, v{50+2*k2}\nv_add_f32 v{x1}, v{x1}, v{51+2*k2}")
                a(f"v_cvt_pk_bf16_f32 v{r+4}, v{x0}, v{x1}")
                a(f"v_lshlrev_b32 v{x0}, 16, v{r+4}\nv_and_b32 v{x1}, 0xffff0000, v{r+4}")
            for k in range(4):
                self.gelu(r + k, 36 + 2 * k, 37 + 2 * k)
            a(f"v_cvt_pk_bf16_f32 v{r}, v{r}, v{r+1}\nv_cvt_pk_bf16_f32 v{r+1}, v{r+2}, v{r+3}")
            a(f"ds_write_b64 v62, v[{r}:{r+1}] offset:{XP*bl}")

    def finalprep(self):
        a = self.a
        srd(a, 56, sX, 7168)
        a(f"s_mul_i32 s75, s{sKVH}, 896")
        a("v_lshlrev_b32 v3, 4, v0")
        a("v_mov_b32 v8, 0\nv_mov_b32 v9, 0\nv_mov_b32 v10, 0\nv_mov_b32 v11, 0")
        self.setexec(0xffffffff, 0x00ffffff)
        a("buffer_load_dwordx4 v[8:11], v3, s[56:59], s75 offen")
        a("s_mov_b64 exec, -1")
        srd(a, 56, sGW, 896)
        a("buffer_load_dwordx4 v[12:15], v3, s[56:59], 0 offen")
        srd(a, 56, sB2, 896)
        a(f"s_lshl_b32 s75, s{sJJ}, 5")
        a("v_and_b32 v4, 3, v0\nv_lshlrev_b32 v4, 3, v4")
        a("buffer_load_dwordx2 v[16:17], v4, s[56:59], s75 offen")
        a("s_waitcnt vmcnt(0)")
        a("v_mov_b32 v24, 0")
        for i in range(4):
            a(f"v_lshlrev_b32 v25, 16, v{8+i}\nv_lshlrev_b32 v26, 16, v{12+i}\nv_mul_f32 v25, v25, v26")
            a(f"v_and_b32 v26, 0xffff0000, v{8+i}\nv_and_b32 v27, 0xffff0000, v{12+i}\nv_mul_f32 v26, v26, v27")
            a("v_cvt_pk_bf16_f32 v25, v25, v26")
            a("v_lshlrev_b32 v26, 16, v25\nv_and_b32 v25, 0xffff0000, v25\nv_add_f32 v24, v24, v26\nv_add_f32 v24, v24, v25")
        self.row16_reduce("v_add_f32", 24)
        self.swap_reduce("v_add_f32", 24, 25, 16)
        self.swap_reduce("v_add_f32", 24, 25, 32)
        self.bf16_round(24, 24)
        a("v_mul_f32 v24, 0xbfb8aa3b, v24\nv_exp_f32 v24, v24\nv_add_f32 v24, 1.0, v24\nv_rcp_f32 v24, v24")
        self.bf16_round(24, 24)
        a("v_sub_f32 v25, 1.0, v24")
        self.bf16_round(25, 25)
        a("v_lshlrev_b32 v28, 16, v16\nv_and_b32 v29, 0xffff0000, v16\nv_lshlrev_b32 v30, 16, v17\nv_and_b32 v31, 0xffff0000, v17")
        a(f"v_lshlrev_b32 v4, 1, v4\nv_add_u32 v4, {L_FIN}, v4\nv_mov_b32 v5, {L_FIN+64}")
        self.setexec(0xf, 0)
        a("ds_write_b128 v4, v[28:31]")
        self.setexec(1, 0)
        a("ds_write_b64 v5, v[24:25]")
        a("s_mov_b64 exec, -1")
        a("s_waitcnt lgkmcnt(0)")

    def build(self):
        a = self.a
        self.prologue()
        self.streaming()
        self.helper()
        a("L_fin:")
        self.dump_stamps()
        a("L_end:")
        a("s_endpgm")
        body = a.text()
        body = "\n".join((l.replace("@POL@", self.o.stpol) if "buffer_store" in l else l.replace("@POL@", self.o.ldpol)) for l in body.split("\n"))
        hdr = open("cdna_kernels/" + NAME + ".s.ref").read().split("; Override launch geometry")[0]
        out = hdr
        out += "; Override launch geometry by editing the next line (default: block=256,\n"
        out += f"; @launch grid=(256,1,1) block=(768,1,1) lds={LDS_BYTES}\n"
        out += '.amdgcn_target "amdgcn-amd-amdhsa--gfx950"\n.text\n'
        out += f".globl {KNAME}\n.p2align 8\n.type {KNAME},@function\n{KNAME}:\n"
        out += body
        out += f""".section .rodata,"a"
.p2align 6
.amdhsa_kernel {KNAME}
  .amdhsa_next_free_vgpr 168
  .amdhsa_next_free_sgpr 102
  .amdhsa_accum_offset 168
  .amdhsa_group_segment_fixed_size 0
  .amdhsa_kernarg_size 112
  .amdhsa_user_sgpr_count 2
  .amdhsa_user_sgpr_kernarg_segment_ptr 1
  .amdhsa_system_sgpr_workgroup_id_x 1
.end_amdhsa_kernel
"""
        return out

def parse(argv):
    p = argparse.ArgumentParser()
    p.add_argument("-o", default="cdna_kernels/" + NAME + ".s")
    p.add_argument("--stamps", action="store_true")
    p.add_argument("--dbgtime", action="store_true")
    p.add_argument("--rot", default="1,1,1,0")
    p.add_argument("--skip", default="")
    p.add_argument("--ldpol", default="sc1")
    p.add_argument("--stpol", default="sc1")
    p.add_argument("--npre", type=int, default=2)
    p.add_argument("--kmap", default="contig")
    p.add_argument("--kwin", type=int, default=0)
    p.add_argument("--vwin_n", type=int, default=0)
    p.add_argument("--order", default="kv")
    p.add_argument("--sprio", default="")
    p.add_argument("--hpre", type=int, default=4)
    p.add_argument("--woprio", type=int, default=0)
    p.add_argument("--qsleep", type=int, default=8)
    p.add_argument("--ssleep", type=int, default=2)
    p.add_argument("--fstag", type=int, default=4)
    p.add_argument("--ssleep1", type=int, default=8)
    p.add_argument("--tpol", default="nt")
    p.add_argument("--kvpol", default="nt")
    p.add_argument("--cntq", default="16,16,16,16,16,16,16,16")
    p.add_argument("--cnt1", default="7,7,7,7,7,7,7,7")
    p.add_argument("--cnt2", default="7,7,7,7,7,7,7,7")
    o = p.parse_args(argv)
    o.rot = tuple(int(x) for x in o.rot.split(","))
    o.skip = set(x for x in o.skip.split(",") if x)
    for k in ("cntq", "cnt1", "cnt2"):
        setattr(o, k, [int(x) for x in getattr(o, k).split(",")])
    return o

if __name__ == "__main__":
    o = parse(sys.argv[1:])
    open(o.o, "w").write(Gen(o).build())
    print("wrote", o.o)
```

```python
import sys, argparse
from emit import Asm

NAME = "gated_mix__sliding_block_cached__mixer_channel_mlp__decode"
KNAME = NAME + "_kernel"

WS_QP = 0x010000
WS_HP = 0x050000
WS_OP = 0x070000
WS_ST = 0x0f0000
WS_BP = 0x100000
WS_MP = 0x180000
WS_DBG = 0x600000
WS_SIZE = 0x800000

L_TILE = 0
XP = 928
L_X = 57344
L_Y = 64768
L_WO = 72192
L_Q = 88576
L_P = 89600
L_OP = 90624
L_ST = 107008
L_A = 107136
L_FIN = 109312
L_CNT = 109440
L_SH = 109568
LDS_BYTES = 111616
C_A0, C_A1, C_WO, C_Q, C_S = 0, 4, 8, 12, 16

SPIN_LIMIT = 100000

sX, sK, sV, sWQ, sWO, sW1, sB1, sW2, sB2, sGW, sOUT, sDBG, sWS = 4, 6, 8, 10, 12, 16, 18, 20, 22, 24, 26, 28, 30
sT, sT8, sT88 = 32, 33, 34
sKVH, sJ, sB, sS, sJJ = 35, 36, 37, 38, 39
SRD_WS = "s[48:51]"
sFF00 = 72
sPSEL = 73
sPSEL2 = 14
sW = 74
STAMP0 = 84
DPP = "row_mask:0xf bank_mask:0xf"

def srd(a, base, ptr, nbytes):
    a(f"s_mov_b32 s{base}, s{ptr}")
    a(f"s_and_b32 s{base+1}, s{ptr+1}, 0xffff")
    a(f"s_mov_b32 s{base+2}, {nbytes}")
    a(f"s_mov_b32 s{base+3}, 0x20000")

def pack8(vals):
    v = 0
    for i, x in enumerate(vals):
        assert 0 <= x < 256
        v |= x << (8 * i)
    return v & 0xffffffff, v >> 32

class Gen:
    def __init__(self, opt):
        self.o = opt
        self.a = Asm()

    def stamp(self, idx):
        if self.o.stamps:
            self.a("s_memrealtime s[100:101]")
            self.a("s_waitcnt lgkmcnt(0)")
            self.a(f"s_mov_b32 s{STAMP0+idx}, s100")

    def dump_stamps(self):
        if not self.o.stamps:
            return
        a = self.a
        if self.o.dbgtime:
            a("s_mov_b64 exec, -1")
            srd(a, 60, sDBG, 256)
            a(f"s_not_b32 s{STAMP0}, s{STAMP0}")
            a("v_mov_b32 v1, 0")
            for i in range(16):
                a(f"v_writelane_b32 v1, s{STAMP0+i}, {i}")
            a("s_memrealtime s[100:101]\ns_waitcnt lgkmcnt(0)")
            a("v_writelane_b32 v1, s100, 15")
            a("v_mbcnt_lo_u32_b32 v2, -1, 0\nv_mbcnt_hi_u32_b32 v2, -1, v2\nv_lshlrev_b32 v2, 2, v2")
            a("s_cmp_ge_u32 s3, 8\ns_cselect_b32 s80, 64, 0")
            a("s_mov_b32 exec_lo, 0xffff\ns_mov_b32 exec_hi, 0")
            a("buffer_atomic_umax v1, v2, s[60:63], s80 offen")
            a("s_waitcnt vmcnt(0)")
            return
        a("s_mov_b64 exec, -1")
        a("s_lshl_b32 s80, s2, 4\ns_add_u32 s80, s80, s3\ns_lshl_b32 s80, s80, 6")
        a(f"s_add_u32 s80, s80, {WS_DBG}")
        a("v_mov_b32 v1, 0")
        for i in range(16):
            a(f"v_writelane_b32 v1, s{STAMP0+i}, {i}")
        a("v_mbcnt_lo_u32_b32 v2, -1, 0\nv_mbcnt_hi_u32_b32 v2, -1, v2\nv_lshlrev_b32 v2, 2, v2")
        a("s_mov_b32 exec_lo, 0xffff\ns_mov_b32 exec_hi, 0")
        a(f"buffer_store_dword v1, v2, {SRD_WS}, s80 offen")
        a("s_waitcnt vmcnt(0)")

    def setexec(self, lo, hi):
        self.a(f"s_mov_b32 exec_lo, {hex(lo)}\ns_mov_b32 exec_hi, {hex(hi)}")

    def lds_signal(self, cnt_off, v0, v1):
        a = self.a
        a(f"v_mov_b32 v{v0}, {L_CNT + cnt_off}")
        a(f"v_mov_b32 v{v1}, 1")
        self.setexec(1, 0)
        a(f"ds_add_u32 v{v0}, v{v1}")
        a("s_mov_b64 exec, -1")

    def lds_wait(self, cnt_off, target, v0, v1, sleep=1):
        a = self.a
        L = a.label("lw"); Ld = a.label("lwd")
        a(f"v_mov_b32 v{v0}, {L_CNT + cnt_off}")
        a(f"s_mov_b32 s81, 0")
        a(f"{L}:")
        a(f"ds_read_b32 v{v1}, v{v0}")
        a("s_waitcnt lgkmcnt(0)")
        a(f"v_readfirstlane_b32 s80, v{v1}")
        a(f"s_cmp_ge_u32 s80, {target}")
        a(f"s_cbranch_scc1 {Ld}")
        a(f"s_add_u32 s81, s81, 1")
        a(f"s_cmp_ge_u32 s81, {SPIN_LIMIT*8}")
        a(f"s_cbranch_scc1 {Ld}")
        a(f"s_sleep {sleep}")
        a(f"s_branch {L}")
        a(f"{Ld}:")

    def check4w(self, r, vbad, vt, vu, first):
        a = self.a
        a(f"v_perm_b32 v{vt}, v{r}, v{r+1}, s{sPSEL}")
        a(f"v_perm_b32 v{vu}, v{r+2}, v{r+3}, s{sPSEL2}")
        a(f"v_or_b32 v{vt}, v{vt}, v{vu}")
        if first:
            a(f"v_xor_b32 v{vbad}, s{sT88}, v{vt}")
        else:
            a(f"v_xor_b32 v{vt}, s{sT88}, v{vt}\nv_or_b32 v{vbad}, v{vbad}, v{vt}")

    def unmask(self, r, n=4, dst=None):
        for i in range(n):
            self.a(f"v_and_b32 v{(dst if dst is not None else r)+i}, s{sFF00}, v{r+i}")

    def vpoll(self, loads, regs, vbad, vt, vu, sleep, name="", issued=False, wait="vmcnt(0)"):
        a = self.a
        if name and ('no_' + name) in self.o.skip:
            return
        L = a.label("vp"); Ld = a.label("vpd")
        a("s_mov_b32 s81, 0")
        if issued:
            a(f"s_waitcnt {wait}")
            for i, r in enumerate(regs):
                self.check4w(r, vbad, vt, vu, i == 0)
            a(f"v_cmp_ne_u32 vcc, 0, v{vbad}\ns_cbranch_vccz {Ld}")
        a(f"{L}:")
        loads()
        a("s_waitcnt vmcnt(0)")
        for i, r in enumerate(regs):
            self.check4w(r, vbad, vt, vu, i == 0)
        a(f"v_cmp_ne_u32 vcc, 0, v{vbad}\ns_cbranch_vccz {Ld}")
        a(f"s_add_u32 s81, s81, 1\ns_cmp_ge_u32 s81, {SPIN_LIMIT}\ns_cbranch_scc1 {Ld}")
        a(f"s_sleep {sleep}\ns_branch {L}")
        a(f"{Ld}:")

    def spoll(self, off_expr, loads, words, sleep, name=""):
        a = self.a
        if name and ('no_' + name) in self.o.skip:
            return
        P = a.label("sp"); Pd = a.label("spd")
        a(f"s_add_u32 s78, s{sWS}, s{off_expr}\ns_addc_u32 s79, s{sWS+1}, 0")
        a("s_mov_b32 s81, 0")
        a(f"{P}:")
        for ndw, dst, imm in loads:
            rng = f"s[{dst}:{dst+ndw-1}]" if ndw > 1 else f"s{dst}"
            a(f"s_load_dword{'x'+str(ndw) if ndw > 1 else ''} {rng}, s[78:79], {imm} glc")
        a("s_waitcnt lgkmcnt(0)")
        a(f"s_xor_b32 s80, s{words[0]}, s{sT8}")
        for t in words[1:]:
            a(f"s_xor_b32 s82, s{t}, s{sT8}\ns_or_b32 s80, s80, s82")
        a(f"s_and_b32 s80, s80, 0xff\ns_cbranch_scc0 {Pd}")
        a(f"s_add_u32 s81, s81, 1\ns_cmp_ge_u32 s81, {SPIN_LIMIT}\ns_cbranch_scc1 {Pd}")
        a(f"s_sleep {sleep}\ns_branch {P}")
        a(f"{Pd}:")

    def bf16_round(self, dst, src):
        a = self.a
        a(f"v_cvt_pk_bf16_f32 v{dst}, v{src}, v{src}")
        a(f"v_and_b32 v{dst}, 0xffff0000, v{dst}")

    def row16_reduce(self, op, v):
        for r in (8, 4, 2, 1):
            self.a(f"{op}_dpp v{v}, v{v}, v{v} row_ror:{r} {DPP}")

    def swap_reduce(self, op, v, t, which):
        a = self.a
        a(f"v_mov_b32 v{t}, v{v}")
        a(f"v_permlane{which}_swap_b32 v{v}, v{t}")
        a(f"{op} v{v}, v{v}, v{t}")

    def prologue(self):
        a = self.a
        a("s_cmp_ge_u32 s2, 256")
        a("s_cbranch_scc1 L_end")
        if self.o.earlybar:
            a("v_lshrrev_b32 v1, 6, v0")
            a("v_and_b32 v0, 63, v0")
            a("v_readfirstlane_b32 s3, v1")
            a(f"v_mov_b32 v1, {L_CNT}\nv_mov_b32 v2, 0\nv_mov_b32 v3, 0\nv_mov_b32 v4, 0\nv_mov_b32 v5, 0")
            a("s_cmp_lg_u32 s3, 8\ns_cbranch_scc1 L_noinit")
            self.setexec(1, 0)
            a("ds_write_b128 v1, v[2:5]\nds_write_b128 v1, v[2:5] offset:16")
            a("s_mov_b64 exec, -1")
            a("s_waitcnt lgkmcnt(0)")
            a("L_noinit:")
        a("s_load_dwordx16 s[4:19], s[0:1], 0")
        a("s_load_dwordx8 s[20:27], s[0:1], 64")
        a("s_load_dwordx4 s[28:31], s[0:1], 96")
        if self.o.stamps:
            for i in range(16):
                a(f"s_mov_b32 s{STAMP0+i}, 0")
            a("s_memrealtime s[100:101]")
        if self.o.earlybar:
            a("s_barrier")
        else:
            a("v_lshrrev_b32 v1, 6, v0")
            a("v_and_b32 v0, 63, v0")
            a("v_readfirstlane_b32 s3, v1")
        a(f"s_and_b32 s{sKVH}, s2, 7")
        a(f"s_lshr_b32 s{sJ}, s2, 3")
        a(f"s_and_b32 s{sB}, s{sJ}, 7")
        a(f"s_lshr_b32 s{sS}, s{sJ}, 3")
        a(f"s_sub_u32 s40, s{sJ}, 4")
        a(f"s_cmp_lt_u32 s{sJ}, 4")
        a(f"s_cselect_b32 s{sJJ}, 255, s40")
        a(f"s_mov_b32 s{sFF00}, 0xffffff00")
        a(f"s_mov_b32 s{sPSEL}, 0x0c0c0400")
        a("s_cmp_ge_u32 s3, 8")
        a("s_cbranch_scc1 L_helper")

    def after_karg(self):
        a = self.a
        a("s_waitcnt lgkmcnt(0)")
        if self.o.stamps:
            a(f"s_mov_b32 s{STAMP0}, s100")
        a(f"s_load_dword s{sT}, s[{sWS}:{sWS+1}], 0")
        a(f"s_mov_b32 s{sPSEL2}, 0x04000c0c")

    def tag_setup(self):
        a = self.a
        a("s_waitcnt lgkmcnt(0)")
        a(f"s_add_u32 s{sT}, s{sT}, 1")
        a(f"s_and_b32 s{sT8}, s{sT}, 0xff")
        a(f"s_mul_i32 s{sT88}, s{sT8}, 0x01010101")

    def streaming(self):
        a = self.a; o = self.o
        KD, VD = 8, 72
        QA = 136
        D0 = 144
        XS = 148
        SEL = 156
        vKo, vVo = 1, 2
        a.c("================= streaming wave =================")
        a(f"s_mov_b32 s{sW}, s3")
        a(f"s_lshl_b32 s75, s{sB}, 3\ns_add_u32 s75, s75, s{sKVH}\ns_lshl_b32 s75, s75, 21")
        a(f"s_lshl_b32 s76, s{sS}, 17\ns_add_u32 s75, s75, s76")
        a(f"s_add_u32 s75, s75, 0x180000")
        mb, mk, mw, ms = o.rot
        terms = [(sB, mb), (sKVH, mk), (sW, mw), (sS, ms)]
        a("s_mov_b32 s76, 0")
        for reg, m in terms:
            if m == 1:
                a(f"s_add_u32 s76, s76, s{reg}")
            elif m:
                a(f"s_mul_i32 s77, s{reg}, {m}\ns_add_u32 s76, s76, s77")
        if o.kmap == 'contig':
            a(f"s_lshl_b32 s77, s{sW}, 14\ns_add_u32 s75, s75, s77")
            a("s_and_b32 s76, s76, 7\ns_lshl_b32 s76, s76, 11")
            for t in range(8):
                if t:
                    a(f"s_add_u32 s76, s76, 0x800\ns_and_b32 s76, s76, 0x3fff")
                a(f"s_add_u32 s{40+t}, s76, s75")
        elif o.kmap == 'inter':
            a(f"s_lshl_b32 s77, s{sW}, 11\ns_add_u32 s75, s75, s77")
            a("s_and_b32 s76, s76, 7\ns_lshl_b32 s76, s76, 14")
            for t in range(8):
                if t:
                    a(f"s_add_u32 s76, s76, 0x4000\ns_and_b32 s76, s76, 0x1ffff")
                a(f"s_add_u32 s{40+t}, s76, s75")
        elif o.kmap == 'rot64':
            a(f"s_lshl_b32 s77, s{sW}, 3\ns_add_u32 s76, s76, s77\ns_and_b32 s76, s76, 63\ns_lshl_b32 s76, s76, 11")
            for t in range(8):
                if t:
                    a(f"s_add_u32 s76, s76, 0x800\ns_and_b32 s76, s76, 0x1ffff")
                a(f"s_add_u32 s{40+t}, s76, s75")
        a(f"v_lshrrev_b32 v3, 4, v0\nv_lshlrev_b32 v{vKo}, 6, v3")
        a(f"v_bfe_u32 v4, v0, 2, 2\nv_lshl_add_u32 v{vKo}, v4, 9, v{vKo}")
        a(f"v_and_b32 v4, 3, v0\nv_lshl_add_u32 v{vKo}, v4, 4, v{vKo}")
        a(f"v_and_b32 v4, 15, v0\nv_lshlrev_b32 v4, 4, v4\nv_lshl_add_u32 v{vVo}, v3, 9, v4")
        self.after_karg()
        self.stamp(10)
        srd(a, 52, sK, 0x8000000)
        def ld(m, isv):
            t, c = m // 2, m % 2
            r = (VD if isv else KD) + 4 * m
            a(f"buffer_load_dwordx4 v[{r}:{r+3}], v{vVo if isv else vKo}, {'s[56:59]' if isv else 's[52:55]'}, s{40+t} offen offset:{c*256} {o.kvpol}")
        npre = o.npre
        if o.sprio == 'kfirst':
            a("s_setprio 1")
        for m in range(npre):
            ld(m, False)
        self.stamp(11)
        if not o.earlybar:
            a("s_barrier")
        self.stamp(12)
        srd(a, 56, sV, 0x8000000)
        srd(a, 48, sWS, WS_SIZE)
        if o.sprio == 'young':
            a(f"s_cmp_ge_u32 s{sW}, 4\ns_cbranch_scc0 L_noprio\ns_setprio 1\nL_noprio:")
        for m in range(npre, 16):
            if o.kwin and m >= o.kwin:
                a(f"s_waitcnt vmcnt({o.kwin - 1})")
            ld(m, False)
        if o.sprio == 'kfirst':
            a("s_setprio 0")
        for m in range(16):
            if o.kwin and m < o.vwin_n:
                a(f"s_waitcnt vmcnt({o.kwin - 1})")
            ld(m, True)
        self.stamp(1)
        self.tag_setup()
        for base, val in ((64, 0x22222222), (66, 0x44444444), (68, 0x88888888)):
            a(f"s_mov_b32 s{base}, {hex(val)}\ns_mov_b32 s{base+1}, {hex(val)}")
        a("s_mov_b32 s70, 0\ns_mov_b32 s71, -1")
        vQ, vPw, vPr, vOw = 3, 4, 5, 6
        a(f"v_lshrrev_b32 v7, 4, v0\nv_lshlrev_b32 v{vQ}, 6, v7")
        a(f"v_bfe_u32 v164, v0, 2, 1\nv_lshl_add_u32 v{vQ}, v164, 9, v{vQ}")
        a(f"v_and_b32 v164, 3, v0\nv_lshl_add_u32 v{vQ}, v164, 4, v{vQ}")
        a(f"v_add_u32 v{vQ}, {L_Q}, v{vQ}")
        a(f"s_lshl_b32 s77, s{sW}, 7\ns_add_u32 s77, s77, {L_P}")
        a(f"v_bfe_u32 v164, v0, 2, 3\nv_lshlrev_b32 v{vPw}, 4, v164")
        a(f"v_lshrrev_b32 v164, 5, v0\nv_lshl_add_u32 v{vPw}, v164, 3, v{vPw}")
        a(f"v_and_b32 v164, 3, v0\nv_lshl_add_u32 v{vPw}, v164, 1, v{vPw}")
        a(f"v_add_u32 v{vPw}, s77, v{vPw}")
        a(f"v_bfe_u32 v164, v0, 3, 1\nv_lshlrev_b32 v{vPr}, 6, v164")
        a(f"v_lshl_add_u32 v{vPr}, v7, 4, v{vPr}\nv_add_u32 v{vPr}, s77, v{vPr}")
        a(f"s_lshl_b32 s77, s{sW}, 11\ns_add_u32 s77, s77, {L_OP}")
        a(f"v_lshrrev_b32 v164, 5, v0\nv_lshlrev_b32 v{vOw}, 10, v164")
        a(f"v_and_b32 v164, 15, v0\nv_lshl_add_u32 v{vOw}, v164, 5, v{vOw}")
        a(f"v_bfe_u32 v164, v0, 4, 1\nv_lshl_add_u32 v{vOw}, v164, 4, v{vOw}")
        a(f"v_add_u32 v{vOw}, s77, v{vOw}")
        a("v_and_b32 v164, 1, v0\nv_cmp_eq_u32 vcc, 1, v164")
        a("v_mov_b32 v165, 0x0c0c0100\nv_mov_b32 v166, 0x01000c0c\nv_cndmask_b32 v165, v165, v166, vcc")
        a("v_mov_b32 v166, 0x0c0c0302\nv_mov_b32 v167, 0x03020c0c\nv_cndmask_b32 v166, v166, v167, vcc")
        a("v_bfe_u32 v164, v0, 1, 2\nv_mov_b32 v167, 0x0c0c0c0c")
        for j in range(4):
            a(f"v_cmp_eq_u32 vcc, {j}, v164")
            a(f"v_cndmask_b32 v{SEL+j}, v167, v165, vcc")
            a(f"v_cndmask_b32 v{SEL+4+j}, v167, v166, vcc")
        if 'qwait' not in o.skip:
            self.lds_wait(C_Q, 4, 164, 165, sleep=2)
        self.stamp(2)
        a(f"ds_read_b128 v[{QA}:{QA+3}], v{vQ}")
        a(f"ds_read_b128 v[{QA+4}:{QA+7}], v{vQ} offset:256")
        a(f"v_mov_b32 v164, {L_FIN+72}\nds_read_b32 v165, v164")
        a("s_waitcnt lgkmcnt(0)")
        a("v_readfirstlane_b32 s47, v165")
        Dreg = [D0] + [KD + 8 * (t - 1) for t in range(1, 8)]
        for t in range(8):
            a(f"s_waitcnt vmcnt({30 - 2*t})")
            k0, k1 = KD + 8 * t, KD + 8 * t + 4
            d = Dreg[t]
            a(f"v_mfma_f32_16x16x32_bf16 v[{d}:{d+3}], v[{QA}:{QA+3}], v[{k0}:{k0+3}], 0")
            a(f"v_mfma_f32_16x16x32_bf16 v[{d}:{d+3}], v[{QA+4}:{QA+7}], v[{k1}:{k1+3}], v[{d}:{d+3}]")
        self.stamp(3)
        for t in range(8):
            d = Dreg[t]; x = XS + t
            a(f"v_cndmask_b32 v{x}, v{d}, v{d+1}, s[64:65]")
            a(f"v_cndmask_b32 v{x}, v{x}, v{d+2}, s[66:67]")
            a(f"v_cndmask_b32 v{x}, v{x}, v{d+3}, s[68:69]")
        for i in range(4):
            a(f"v_cndmask_b32 v{XS+i}, v{XS+i}, v{XS+4+i}, s[70:71]")
        for i in range(4):
            a(f"v_add_f32_dpp v{XS+i}, v{XS+i}, v{XS+i} quad_perm:[1,0,3,2] {DPP}")
        for i in range(4):
            a(f"v_add_f32_dpp v{XS+i}, v{XS+i}, v{XS+i} quad_perm:[2,3,0,1] {DPP}")
        Z, M_, P_, T_ = XS + 4, XS + 6, XS + 7, XS + 5
        a(f"v_cndmask_b32 v{Z}, v{XS}, v{XS+1}, s[64:65]")
        a(f"v_cndmask_b32 v{Z}, v{Z}, v{XS+2}, s[66:67]")
        a(f"v_cndmask_b32 v{Z}, v{Z}, v{XS+3}, s[68:69]")
        self.bf16_round(Z, Z)
        a(f"v_mul_f32 v{Z}, 0x3db8aa3b, v{Z}")
        a(f"v_mov_b32 v{M_}, v{Z}")
        self.row16_reduce("v_max_f32", M_)
        self.swap_reduce("v_max_f32", M_, T_, 32)
        a(f"v_sub_f32 v{P_}, v{Z}, v{M_}")
        a(f"v_exp_f32 v{P_}, v{P_}")
        a(f"v_cvt_pk_bf16_f32 v{T_}, v{P_}, v{P_}")
        a(f"ds_write_b16 v{vPw}, v{T_}")
        P8 = KD
        a(f"ds_read_b128 v[{P8}:{P8+3}], v{vPr}")
        self.row16_reduce("v_add_f32", P_)
        self.swap_reduce("v_add_f32", P_, XS, 32)
        a(f"s_lshl_b32 s77, s{sW}, 3\ns_add_u32 s77, s77, {L_ST}")
        a(f"v_bfe_u32 v164, v0, 4, 1\nv_lshlrev_b32 v164, 6, v164\nv_add_u32 v164, s77, v164")
        self.setexec(0x10001, 0)
        a(f"ds_write_b64 v164, v[{M_}:{M_+1}]")
        a(f"v_mov_b32 v164, {L_CNT + C_S}\nv_mov_b32 v165, 1")
        self.setexec(1, 0)
        a("ds_add_u32 v164, v165")
        a("s_mov_b64 exec, -1")
        a("s_waitcnt lgkmcnt(2)")
        ACC = QA
        AR = [KD + 8, KD + 12]
        for u in range(8):
            ar = AR[u & 1]
            for j in range(4):
                a(f"v_perm_b32 v{ar+j}, v{P8 + u//2}, v{P8 + u//2}, v{SEL + 4*(u&1) + j}")
            a(f"s_waitcnt vmcnt({14 - 2*u})")
            for c in range(2):
                vb = VD + 8 * u + 4 * c
                acc = ACC + 4 * c
                cin = "0" if u == 0 else f"v[{acc}:{acc+3}]"
                a(f"v_mfma_f32_16x16x32_bf16 v[{acc}:{acc+3}], v[{ar}:{ar+3}], v[{vb}:{vb+3}], {cin}")
        self.stamp(4)
        a(f"s_lshl_b32 s77, s{sW}, 8\ns_add_u32 s77, s77, {L_OP}")
        a(f"v_lshlrev_b32 v32, 2, v0\nv_add_u32 v3, s77, v32")
        a(f"s_lshr_b32 s77, s{sW}, 2\ns_lshl_b32 s77, s77, 6\ns_add_u32 s77, s77, {L_ST}")
        a(f"v_mov_b32 v4, s77")
        a(f"v_mov_b32 v33, s{sT8}")
        a(f"s_lshl_b32 s76, s{sKVH}, 3\ns_add_u32 s76, s76, s{sB}")
        a(f"s_lshl_b32 s78, s76, 2\ns_add_u32 s78, s78, s{sS}\ns_lshl_b32 s78, s78, 11")
        a(f"s_lshl_b32 s79, s{sW}, 8\ns_add_u32 s78, s78, s79\ns_add_u32 s46, s78, {WS_OP}")
        a(f"s_lshl_b32 s77, s76, 1\ns_lshr_b32 s78, s{sW}, 2\ns_add_u32 s77, s77, s78\ns_lshl_b32 s77, s77, 2")
        a(f"s_add_u32 s77, s77, s{sS}\ns_lshl_b32 s77, s77, 4\ns_add_u32 s45, s77, {WS_ST}")
        self.lds_wait(C_S, 8, 164, 165, sleep=2)
        SW, OW = 40, 8
        for i in range(4):
            a(f"ds_read_b128 v[{SW+4*i}:{SW+4*i+3}], v4 offset:{16*i}")
        a(f"s_lshl_b32 s76, s{sKVH}, 3\ns_add_u32 s76, s76, s{sW}")
        a(f"s_and_b32 s78, s{sJJ}, 3")
        a(f"s_lshl_b32 s77, s76, 13\ns_lshl_b32 s79, s78, 9\ns_add_u32 s77, s77, s79\ns_add_u32 s40, s77, {WS_OP}\ns_add_u32 s41, s40, 4096")
        a(f"s_lshl_b32 s77, s76, 1\ns_lshr_b32 s79, s78, 1\ns_add_u32 s77, s77, s79\ns_lshl_b32 s77, s77, 6\ns_add_u32 s44, s77, {WS_ST}")
        a("v_lshrrev_b32 v34, 5, v0\nv_lshlrev_b32 v34, 11, v34\nv_and_b32 v35, 31, v0\nv_lshl_add_u32 v34, v35, 4, v34")
        a(f"s_mul_i32 s77, s{sW}, 272\ns_add_u32 s77, s77, {L_A}\nv_lshlrev_b32 v35, 3, v35\nv_add_u32 v35, s77, v35")
        a("s_waitcnt lgkmcnt(0)")
        ms_ = [SW + 2 * w for w in range(8)]
        a(f"v_max3_f32 v5, v{ms_[0]}, v{ms_[1]}, v{ms_[2]}")
        a(f"v_max3_f32 v30, v{ms_[3]}, v{ms_[4]}, v{ms_[5]}")
        a(f"v_max3_f32 v5, v5, v{ms_[6]}, v{ms_[7]}")
        a(f"v_max_f32 v5, v5, v30")
        a(f"v_and_b32 v5, s{sFF00}, v5")
        for w in range(8):
            a(f"v_sub_f32 v{ms_[w]}, v{ms_[w]}, v5")
        for w in range(8):
            a(f"v_exp_f32 v{ms_[w]}, v{ms_[w]}")
        a(f"ds_write_b128 v{vOw}, v[{ACC}:{ACC+3}]")
        a(f"ds_write_b128 v{vOw}, v[{ACC+4}:{ACC+7}] offset:512")
        Ls = a.label("nost")
        a(f"s_and_b32 s78, s{sW}, 3\ns_cmp_lg_u32 s78, 0\ns_cbranch_scc1 {Ls}")
        a(f"v_mul_f32 v7, v{ms_[0]}, v{ms_[0]+1}")
        for w in range(1, 8):
            a(f"v_fmac_f32 v7, v{ms_[w]}, v{ms_[w]+1}")
        a(f"v_or_b32 v36, v5, v33\nv_and_or_b32 v37, v7, s{sFF00}, v33\nv_mov_b32 v38, v33\nv_mov_b32 v39, v33\nv_mov_b32 v31, 0")
        a(f"{Ls}:")
        a("s_waitcnt lgkmcnt(0)")
        a("s_barrier")
        self.stamp(5)
        if 'tail' in o.skip:
            a("s_barrier\ns_branch L_fin")
        for i in range(4):
            a(f"ds_read2st64_b32 v[{OW+2*i}:{OW+2*i+1}], v3 offset0:{16*i} offset1:{16*i+8}")
        a("s_waitcnt lgkmcnt(2)")
        a(f"v_mul_f32 v6, v{ms_[0]}, v{OW}\nv_mul_f32 v7, v{ms_[1]}, v{OW+1}")
        a(f"v_fmac_f32 v6, v{ms_[2]}, v{OW+2}\nv_fmac_f32 v7, v{ms_[3]}, v{OW+3}")
        a("s_waitcnt lgkmcnt(0)")
        a(f"v_fmac_f32 v6, v{ms_[4]}, v{OW+4}\nv_fmac_f32 v7, v{ms_[5]}, v{OW+5}")
        a(f"v_fmac_f32 v6, v{ms_[6]}, v{OW+6}\nv_fmac_f32 v7, v{ms_[7]}, v{OW+7}")
        a("v_add_f32 v6, v6, v7")
        a(f"v_and_or_b32 v6, v6, s{sFF00}, v33")
        a(f"buffer_store_dword v6, v32, {SRD_WS}, s46 offen sc1")
        Ls2 = a.label("nost2")
        a(f"s_and_b32 s78, s{sW}, 3\ns_cmp_lg_u32 s78, 0\ns_cbranch_scc1 {Ls2}")
        self.setexec(1, 0)
        a(f"buffer_store_dwordx4 v[36:39], v31, {SRD_WS}, s45 offen sc1")
        a("s_mov_b64 exec, -1")
        a(f"{Ls2}:")
        self.stamp(6)
        Lng = a.label("nogather")
        a(f"s_cmp_eq_u32 s{sJJ}, 255\ns_cbranch_scc1 {Lng}")
        G = G3 = 56
        def loads():
            a(f"buffer_load_dwordx4 v[{G}:{G+3}], v34, {SRD_WS}, s40 offen sc1")
            a(f"buffer_load_dwordx4 v[{G+4}:{G+7}], v34, {SRD_WS}, s41 offen sc1")
        self.spoll(44, [(16, 52, 0)], [52 + i for i in range(16)], o.asleep, name='a')
        loads()
        for i in range(4):
            a(f"s_and_b32 s{52+4*i}, s{52+4*i}, s{sFF00}\ns_and_b32 s{53+4*i}, s{53+4*i}, s{sFF00}")
        a("v_mov_b32 v8, s52\nv_mov_b32 v9, s56\nv_mov_b32 v10, s60\nv_mov_b32 v11, s64")
        a("v_max3_f32 v5, v8, v9, v10\nv_max_f32 v5, v5, v11")
        for i in range(4):
            a(f"v_sub_f32 v{8+i}, v{8+i}, v5")
        for i in range(4):
            a(f"v_exp_f32 v{8+i}, v{8+i}")
        a("v_mul_f32 v6, s53, v8\nv_fmac_f32 v6, s57, v9\nv_fmac_f32 v6, s61, v10\nv_fmac_f32 v6, s65, v11")
        a("v_rcp_f32 v6, v6")
        a("v_cndmask_b32 v8, v8, v9, s[70:71]\nv_cndmask_b32 v9, v10, v11, s[70:71]")
        a("v_mul_f32 v8, v8, v6\nv_mul_f32 v9, v9, v6")
        self.vpoll(loads, [G, G + 4], 5, 6, 7, 1, name='a', issued=True)
        self.unmask(G, 8)
        self.stamp(7)
        for k in range(4):
            a(f"v_mul_f32 v{12+k}, v8, v{G3+k}")
        for k in range(4):
            a(f"v_fmac_f32 v{12+k}, v9, v{G3+4+k}")
        for k in range(4):
            a(f"v_mov_b32 v{16+k}, v{12+k}")
        for k in range(4):
            a(f"v_permlane32_swap_b32 v{12+k}, v{16+k}")
        for k in range(4):
            a(f"v_add_f32 v{12+k}, v{12+k}, v{16+k}")
        a("v_cvt_pk_bf16_f32 v12, v12, v13\nv_cvt_pk_bf16_f32 v13, v14, v15")
        self.setexec(0xffffffff, 0)
        a("ds_write_b64 v35, v[12:13]")
        a("s_mov_b64 exec, -1")
        a("s_waitcnt lgkmcnt(0)")
        a(f"{Lng}:")
        a("s_barrier")
        self.stamp(8)
        a(f"s_cmp_lg_u32 s{sW}, 0\ns_cbranch_scc1 L_fin")
        a(f"s_cmp_eq_u32 s{sJJ}, 255\ns_cbranch_scc1 L_fin")
        a(f"s_mul_i32 s76, s{sKVH}, 28\ns_add_u32 s76, s76, s{sJJ}")
        a(f"s_lshl_b32 s77, s76, 11\ns_add_u32 s40, s77, {WS_BP}\ns_add_u32 s41, s40, 1024")
        a(f"s_lshl_b32 s77, s76, 9\ns_add_u32 s44, s77, {WS_MP}")
        a("v_lshlrev_b32 v3, 4, v0")
        a("v_and_b32 v2, 31, v0\nv_lshlrev_b32 v2, 4, v2")
        a(f"v_and_b32 v4, 3, v0\nv_lshlrev_b32 v4, 4, v4\nv_add_u32 v4, {L_FIN}, v4")
        a(f"v_mov_b32 v9, {L_FIN+64}")
        a("ds_read_b128 v[24:27], v4")
        a("ds_read_b64 v[14:15], v9")
        srd(a, 60, sOUT, 8 * 448 * 2)
        a(f"s_mul_i32 s46, s{sKVH}, 896\ns_lshl_b32 s78, s{sJJ}, 5\ns_add_u32 s46, s46, s78")
        def reduce_q(vals, tmp):
            for ror in (8, 4):
                for e in vals:
                    a(f"v_add_f32_dpp v{e}, v{e}, v{e} row_ror:{ror} {DPP}")
            for which in (16, 32):
                for e, t in zip(vals, tmp):
                    a(f"v_mov_b32 v{t}, v{e}")
                for e, t in zip(vals, tmp):
                    a(f"v_permlane{which}_swap_b32 v{e}, v{t}")
                for e, t in zip(vals, tmp):
                    a(f"v_add_f32 v{e}, v{e}, v{t}")
        G, G2, G3 = 40, 64, 96
        MV = 28
        def lm():
            a(f"buffer_load_dwordx4 v[{MV}:{MV+3}], v2, {SRD_WS}, s44 offen sc1")
        def loads2(g):
            a(f"buffer_load_dwordx4 v[{g}:{g+3}], v3, {SRD_WS}, s40 offen sc1")
            a(f"buffer_load_dwordx4 v[{g+4}:{g+7}], v3, {SRD_WS}, s41 offen sc1")
        self.vpoll(lm, [MV], 5, 6, 7, 1, name='m')
        loads2(G)
        self.unmask(MV, 4)
        for k in range(4):
            a(f"v_cndmask_b32 v{MV+k}, v{MV+k}, 0, s[70:71]")
        reduce_q([MV + k for k in range(4)], [112 + k for k in range(4)])
        a("s_waitcnt lgkmcnt(0)")
        for h2 in range(2):
            M0, M1 = MV + 2 * h2, MV + 2 * h2 + 1
            a(f"v_cvt_pk_bf16_f32 v16, v{M0}, v{M1}")
            a(f"v_lshlrev_b32 v{M0}, 16, v16\nv_and_b32 v{M1}, 0xffff0000, v16")
            a(f"v_add_f32 v{M0}, v{M0}, v{24+2*h2}\nv_add_f32 v{M1}, v{M1}, v{25+2*h2}")
            a(f"v_cvt_pk_bf16_f32 v16, v{M0}, v{M1}")
            a(f"v_lshlrev_b32 v{M0}, 16, v16\nv_and_b32 v{M1}, 0xffff0000, v16")
            a(f"v_mul_f32 v{M0}, v{M0}, v15\nv_mul_f32 v{M1}, v{M1}, v15")
            a(f"v_cvt_pk_bf16_f32 v16, v{M0}, v{M1}")
            a(f"v_lshlrev_b32 v{M0}, 16, v16\nv_and_b32 v{M1}, 0xffff0000, v16")
        Lp = a.label("fp"); La = a.label("fpa"); Lb = a.label("fpb"); Lo = a.label("fpo")
        a("s_mov_b32 s81, 0")
        a(f"{Lp}:")
        loads2(G2)
        a("s_waitcnt vmcnt(2)")
        self.check4w(G, 5, 6, 7, True); self.check4w(G + 4, 5, 6, 7, False)
        a(f"v_cmp_ne_u32 vcc, 0, v5\ns_cbranch_vccz {La}")
        loads2(G)
        a("s_waitcnt vmcnt(2)")
        self.check4w(G2, 5, 6, 7, True); self.check4w(G2 + 4, 5, 6, 7, False)
        a(f"v_cmp_ne_u32 vcc, 0, v5\ns_cbranch_vccz {Lb}")
        a(f"s_add_u32 s81, s81, 1\ns_cmp_lt_u32 s81, {SPIN_LIMIT}\ns_cbranch_scc1 {Lp}")
        a(f"{Lb}:")
        self.unmask(G2, 8, G3)
        a(f"s_branch {Lo}")
        a(f"{La}:")
        self.unmask(G, 8, G3)
        a(f"{Lo}:")
        self.stamp(9)
        G = G3
        for k in range(4):
            a(f"v_add_f32 v{G+k}, v{G+k}, v{G+4+k}")
        reduce_q([G + k for k in range(4)], [112 + k for k in range(4)])
        for h2 in range(2):
            A0, A1 = G + 2 * h2, G + 2 * h2 + 1
            a(f"v_cvt_pk_bf16_f32 v16, v{A0}, v{A1}")
            a(f"v_lshlrev_b32 v{A0}, 16, v16\nv_and_b32 v{A1}, 0xffff0000, v16")
            a(f"v_mul_f32 v{A0}, v{A0}, v14\nv_mul_f32 v{A1}, v{A1}, v14")
            a(f"v_cvt_pk_bf16_f32 v16, v{A0}, v{A1}")
            a(f"v_lshlrev_b32 v{A0}, 16, v16\nv_and_b32 v{A1}, 0xffff0000, v16")
            a(f"v_add_f32 v{A0}, v{A0}, v{MV+2*h2}\nv_add_f32 v{A1}, v{A1}, v{MV+2*h2+1}")
            a(f"v_cvt_pk_bf16_f32 v{8+h2}, v{A0}, v{A1}")
        a("v_lshlrev_b32 v3, 3, v0")
        self.setexec(0xf, 0)
        a("buffer_store_dwordx2 v[8:9], v3, s[60:63], s46 offen")
        a("s_cmp_lg_u32 s2, 32\ns_cbranch_scc1 L_fin")
        a(f"v_mov_b32 v8, s{sT}\nv_mov_b32 v3, 0")
        self.setexec(1, 0)
        a(f"buffer_store_dword v8, v3, {SRD_WS}, 0 offen sc1")
        a("s_branch L_fin")

    def publish_f32(self, d, s_base, s_stride, tmp, pol="sc1"):
        a = self.a
        va, vb, quad = tmp, tmp + 1, tmp + 2
        assert quad % 2 == 0
        a(f"s_lshl_b32 s80, s{sW}, 9\ns_add_u32 s80, s80, {L_SH}")
        a(f"v_lshrrev_b32 v{va}, 4, v0\nv_lshlrev_b32 v{va}, 8, v{va}\nv_and_b32 v{vb}, 15, v0\nv_lshl_add_u32 v{va}, v{vb}, 2, v{va}\nv_add_u32 v{va}, s80, v{va}")
        self.setexec(0xffffffff, 0)
        for r in range(4):
            a(f"ds_write_b32 v{va}, v{d+r} offset:{64*r}")
        a(f"v_lshlrev_b32 v{vb}, 4, v0\nv_add_u32 v{vb}, s80, v{vb}")
        a(f"ds_read_b128 v[{quad}:{quad+3}], v{vb}")
        a(f"v_lshrrev_b32 v{va}, 2, v0\nv_mul_lo_u32 v{va}, v{va}, s{s_stride}\nv_and_b32 v{vb}, 3, v0\nv_lshl_add_u32 v{va}, v{vb}, 4, v{va}")
        a(f"v_mov_b32 v{vb}, s{sT8}")
        a("s_waitcnt lgkmcnt(0)")
        for k in range(4):
            a(f"v_and_or_b32 v{quad+k}, v{quad+k}, s{sFF00}, v{vb}")
        if 'nopub' not in self.o.skip:
            a(f"buffer_store_dwordx4 v[{quad}:{quad+3}], v{va}, {SRD_WS}, s{s_base} offen {pol}")
        a("s_mov_b64 exec, -1")

    def tile_params_lane(self):
        a = self.a
        a("v_lshrrev_b32 v1, 3, v0\nv_bfe_u32 v3, v0, 4, 1\nv_lshlrev_b32 v3, 1, v3\nv_and_b32 v2, 7, v0\nv_xor_b32 v2, v2, v3\nv_lshlrev_b32 v2, 4, v2")
        a("v_mul_lo_u32 v1, v1, s41")
        a("v_xor_b32 v2, s75, v2\nv_xor_b32 v6, 64, v2\nv_add_u32 v6, v1, v6\nv_add_u32 v1, v1, v2")

    def tile_mfma(self, nchunk):
        a = self.a
        BF, AF = 8, 40
        self.tr_addr(L_TILE)
        a(f"v_and_b32 v2, 7, v0\nv_mul_u32_u24 v2, {XP}, v2\nv_lshrrev_b32 v3, 4, v0\nv_lshl_add_u32 v2, v3, 4, v2\nv_add_u32 v2, s42, v2")
        def rd(m):
            b = BF + 4 * (m % 7); af = AF + 4 * (m % 7)
            a(f"ds_read_b64_tr_b16 v[{b}:{b+1}], v1 offset:{4096*m}")
            a(f"ds_read_b64_tr_b16 v[{b+2}:{b+3}], v1 offset:{4096*m+512}")
            a(f"ds_read_b128 v[{af}:{af+3}], v2 offset:{64*m}")
        def mm(m):
            b = BF + 4 * (m % 7); af = AF + 4 * (m % 7)
            a(f"v_mfma_f32_16x16x32_bf16 v[4:7], v[{af}:{af+3}], v[{b}:{b+3}], {'0' if m == 0 else 'v[4:7]'}")
        for m in range(4):
            rd(m)
        for m in range(nchunk):
            if m + 4 < nchunk:
                a("s_waitcnt lgkmcnt(9)"); mm(m); rd(m + 4)
            else:
                a(f"s_waitcnt lgkmcnt({3*(nchunk-1-m)})"); mm(m)

    def helper(self):
        a = self.a; o = self.o
        a("L_helper:")
        a.c("================= helper wave =================")
        a("s_setprio 3")
        a(f"s_sub_u32 s{sW}, s3, 8")
        if not o.earlybar:
            a(f"v_mov_b32 v1, {L_CNT}\nv_mov_b32 v2, 0\nv_mov_b32 v3, 0\nv_mov_b32 v4, 0\nv_mov_b32 v5, 0")
            a(f"s_cmp_lg_u32 s{sW}, 0\ns_cbranch_scc1 L_h_noinit")
            self.setexec(1, 0)
            a("ds_write_b128 v1, v[2:5]\nds_write_b128 v1, v[2:5] offset:16")
            a("s_mov_b64 exec, -1")
            a("L_h_noinit:")
        cq, c1, c2 = o.cntq, o.cnt1, o.cnt2
        assert sum(cq) == 128 and sum(c1) == 56 and sum(c2) == 56
        for x in range(8):
            assert cq[x] + c1[x] + c2[x] <= 32
        pref = lambda c: [sum(c[:i]) for i in range(8)]
        def table(vals, dst):
            lo, hi = pack8(vals)
            a(f"s_mov_b32 s76, {hex(lo)}\ns_mov_b32 s77, {hex(hi)}")
            a(f"s_lshr_b64 s[76:77], s[76:77], s78\ns_and_b32 s{dst}, s76, 0xff")
        a(f"s_lshl_b32 s78, s{sKVH}, 3")
        table(cq, 40); table([cq[x] + c1[x] for x in range(8)], 41); table([cq[x] + c1[x] + c2[x] for x in range(8)], 42)
        table(pref(cq), 43)
        table([(pref(c1)[x] - cq[x]) & 0xff for x in range(8)], 44)
        table([(pref(c2)[x] - cq[x] - c1[x]) & 0xff for x in range(8)], 46)
        if 'helpers' in o.skip:
            self.after_karg()
            srd(a, 48, sWS, WS_SIZE)
            a("s_branch L_h_tail" if o.earlybar else "s_barrier\ns_branch L_h_tail")
        a(f"s_cmp_lt_u32 s{sJ}, s40\ns_cbranch_scc1 L_h_q")
        a(f"s_cmp_lt_u32 s{sJ}, s41\ns_cbranch_scc1 L_h_m1")
        a(f"s_cmp_lt_u32 s{sJ}, s42\ns_cselect_b32 s45, 2, 3")
        a(f"s_add_u32 s47, s46, s{sJ}\ns_and_b32 s47, s47, 0xff")
        self.after_karg()
        srd(a, 48, sWS, WS_SIZE)
        if not o.earlybar:
            a("s_barrier")
        self.tag_setup()
        self.xid_publish()
        a("s_branch L_h_qgather")
        a("L_h_q:")
        a(f"s_add_u32 s47, s43, s{sJ}\ns_and_b32 s47, s47, 0xff")
        a("s_and_b32 s79, s47, 1\ns_lshr_b32 s76, s47, 1")
        a(f"s_mul_i32 s40, s79, {224*8192}\ns_lshl_b32 s77, s76, 7\ns_add_u32 s40, s40, s77")
        a("s_mov_b32 s41, 8192")
        a(f"s_mov_b32 s42, {L_X}")
        a(f"s_lshr_b32 s43, s76, 3\ns_lshl_b32 s43, s43, 15\ns_and_b32 s77, s76, 7\ns_lshl_b32 s77, s77, 8\ns_add_u32 s43, s43, s77\ns_lshl_b32 s77, s79, 11\ns_add_u32 s43, s43, s77\ns_add_u32 s43, s43, {WS_QP}")
        a("s_mov_b32 s44, 4096\ns_mov_b32 s45, 0")
        self.after_karg()
        srd(a, 52, sWQ, 448 * 8192)
        a("s_branch L_h_tile")
        a("L_h_m1:")
        a(f"s_add_u32 s47, s44, s{sJ}\ns_and_b32 s47, s47, 0xff")
        a("s_and_b32 s79, s47, 1\ns_lshr_b32 s76, s47, 1")
        a(f"s_mul_i32 s40, s79, {224*3584}\ns_lshl_b32 s77, s76, 7\ns_add_u32 s40, s40, s77")
        a("s_mov_b32 s41, 3584")
        a(f"s_mul_i32 s42, s79, 448\ns_add_u32 s42, s42, {L_Y}")
        a(f"s_mul_i32 s43, s79, {8*7168}\ns_lshl_b32 s77, s76, 8\ns_add_u32 s43, s43, s77\ns_add_u32 s43, s43, {WS_HP}")
        a("s_mov_b32 s44, 7168\ns_mov_b32 s45, 1")
        self.after_karg()
        srd(a, 52, sW1, 448 * 3584)
        a("L_h_tile:")
        a(f"s_and_b32 s75, s{sW}, 1\ns_lshl_b32 s75, s75, 6")
        self.tile_params_lane()
        a(f"s_mul_i32 s75, s{sW}, 56")
        a("s_lshl_b32 s76, s75, 7")
        a("s_mul_i32 s75, s75, s41\ns_add_u32 s75, s75, s40")
        a("s_lshl_b32 s77, s41, 3")
        def tl(i):
            a(f"s_add_u32 m0, s76, {L_TILE + 1024*i}")
            a(f"buffer_load_dwordx4 v{1 if i % 2 == 0 else 6}, s[52:55], s75 offen {o.tpol} lds")
            a("s_add_u32 s75, s75, s77")
        srd(a, 56, sX, 7168)
        a("v_lshlrev_b32 v3, 4, v0")
        a(f"s_lshl_b32 s78, s{sW}, 1\ns_mul_i32 s80, s78, {XP}\ns_mul_i32 s78, s78, 896")
        a("s_cmp_eq_u32 s45, 0\ns_cbranch_scc0 L_h_xfull")
        a("s_mul_i32 s79, s79, 448\ns_add_u32 s78, s78, s79")
        self.setexec(0x0fffffff, 0)
        a("s_branch L_h_xgo")
        a("L_h_xfull:")
        self.setexec(0xffffffff, 0x00ffffff)
        a("L_h_xgo:")
        a(f"s_add_u32 m0, s80, {L_X}")
        a("buffer_load_dwordx4 v3, s[56:59], s78 offen lds")
        a(f"s_add_u32 s78, s78, 896\ns_add_u32 m0, s80, {L_X + XP}")
        a("buffer_load_dwordx4 v3, s[56:59], s78 offen lds")
        a("s_mov_b64 exec, -1")
        for i in range(min(o.hpre, 7)):
            tl(i)
        srd(a, 48, sWS, WS_SIZE)
        if not o.earlybar:
            a("s_barrier")
        for i in range(min(o.hpre, 7), 7):
            tl(i)
        self.stamp(1)
        self.tag_setup()
        a("s_waitcnt vmcnt(0)")
        self.lds_signal(C_A0, 3, 4)
        self.lds_wait(C_A0, 4, 3, 4)
        a("s_cmp_eq_u32 s45, 0\ns_cbranch_scc1 L_h_mm")
        self.layernorm()
        a("s_waitcnt lgkmcnt(0)")
        self.lds_signal(C_A1, 3, 4)
        self.lds_wait(C_A1, 4, 3, 4)
        a("L_h_mm:")
        self.stamp(2)
        self.tile_mfma(7)
        a(f"s_lshl_b32 s75, s{sW}, 6\ns_add_u32 s43, s43, s75")
        a("s_nop 7")
        self.stamp(10)
        self.publish_f32(4, 43, 44, 70)
        self.stamp(3)
        self.xid_publish()
        a("L_h_qgather:")
        self.q_issue()
        a("s_cmp_eq_u32 s45, 2\ns_cbranch_scc1 L_h_qh")
        self.q_finish("vmcnt(0)")
        self.stamp(4)
        a("s_branch L_h_noh")
        a("L_h_qh:")
        self.h_issue()
        self.q_finish("vmcnt(5)")
        self.stamp(4)
        self.h_finish()
        a("s_waitcnt lgkmcnt(0)")
        a("L_h_noh:")
        self.stamp(8)
        WB = 100
        a(f"s_cmp_eq_u32 s{sJJ}, 255\ns_cbranch_scc1 L_h_noprep")
        a(f"s_cmp_lg_u32 s{sW}, 3\ns_cbranch_scc1 L_h_noprep")
        self.finalprep()
        a("L_h_noprep:")
        a(f"s_setprio {o.woprio}")
        a("s_cmp_eq_u32 s45, 2\ns_cbranch_scc0 L_h_now2")
        srd(a, 52, sW2, 1792 * 896)
        a("s_and_b32 s76, s47, 7\ns_lshr_b32 s77, s47, 3")
        a(f"s_mul_i32 s40, s76, {224*896}\ns_lshl_b32 s78, s77, 7\ns_add_u32 s40, s40, s78")
        a(f"s_mov_b32 s41, 896\ns_mov_b32 s42, {L_Y}")
        a(f"s_lshl_b32 s43, s77, 11\ns_lshl_b32 s78, s76, 6\ns_add_u32 s43, s43, s78\ns_lshl_b32 s78, s{sW}, 9\ns_add_u32 s43, s43, s78\ns_add_u32 s46, s43, {WS_MP}")
        a(f"s_and_b32 s75, s{sW}, 1\ns_lshl_b32 s75, s75, 6")
        self.tile_params_lane()
        a(f"s_mul_i32 s75, s{sW}, 56\ns_lshl_b32 s76, s75, 7\ns_mul_i32 s75, s75, 896\ns_add_u32 s75, s75, s40")
        for i in range(7):
            a(f"s_add_u32 m0, s76, {L_TILE + 1024*i}")
            a(f"buffer_load_dwordx4 v{1 if i % 2 == 0 else 6}, s[52:55], s75 offen {o.tpol} lds")
            if i < 6:
                a(f"s_add_u32 s75, s75, {8*896}")
        a("L_h_now2:")
        a(f"s_cmp_eq_u32 s{sJJ}, 255\ns_cbranch_scc1 L_h_nowo")
        srd(a, 60, sWO, 4096 * 896)
        a("s_mov_b32 s41, 896\ns_mov_b32 s75, 0")
        self.tile_params_lane()
        a(f"s_and_b32 s75, s{sJJ}, 3\ns_lshl_b32 s75, s75, 7\ns_lshl_b32 s76, s{sKVH}, 9\ns_add_u32 s75, s75, s76")
        a(f"s_lshl_b32 s76, s{sW}, 5\ns_add_u32 s75, s75, s76\ns_mul_i32 s75, s75, 896")
        a(f"s_lshr_b32 s76, s{sJJ}, 2\ns_lshl_b32 s76, s76, 7\ns_add_u32 s75, s75, s76")
        a(f"s_lshl_b32 s76, s{sW}, 12")
        for i in range(4):
            if 'nowo' in o.skip: break
            a(f"s_add_u32 m0, s76, {L_WO + 1024*i}")
            a(f"buffer_load_dwordx4 v{1 if i % 2 == 0 else 6}, s[60:63], s75 offen {o.tpol} lds")
            if i < 3:
                a(f"s_add_u32 s75, s75, {8*896}")
        a("L_h_nowo:")
        a("s_setprio 3")
        self.stamp(5)
        a("s_barrier")
        if 'tail' in o.skip:
            a("s_barrier\ns_branch L_fin")
        a("s_waitcnt vmcnt(0)")
        self.lds_signal(C_WO, 3, 4)
        self.lds_wait(C_WO, 4, 3, 4)
        self.stamp(9)
        a("s_cmp_eq_u32 s45, 2\ns_cbranch_scc0 L_h_nom2")
        self.tile_mfma(7)
        a(f"s_mov_b32 s44, {28*512}")
        a("s_nop 7")
        self.publish_f32(4, 46, 44, 70)
        a("L_h_nom2:")
        a(f"s_cmp_eq_u32 s{sJJ}, 255\ns_cbranch_scc1 L_h_tail1")
        self.tr_addr(L_WO)
        for m in range(4):
            a(f"ds_read_b64_tr_b16 v[{WB+4*m}:{WB+4*m+1}], v1 offset:{4096*m}")
            a(f"ds_read_b64_tr_b16 v[{WB+4*m+2}:{WB+4*m+3}], v1 offset:{4096*m+512}")
        a(f"s_lshr_b32 s75, s{sJJ}, 2\ns_lshl_b32 s75, s75, 2\ns_add_u32 s75, s75, s{sW}\ns_lshl_b32 s43, s75, 11")
        a(f"s_lshl_b32 s75, s{sKVH}, 2\ns_and_b32 s76, s{sJJ}, 3\ns_add_u32 s75, s75, s76\ns_lshl_b32 s75, s75, 6")
        a(f"s_add_u32 s43, s43, s75\ns_add_u32 s43, s43, {WS_BP}\ns_mov_b32 s44, {28*2048}")
        a(f"v_and_b32 v2, 7, v0\nv_mul_u32_u24 v2, 272, v2\nv_lshrrev_b32 v3, 4, v0\nv_lshl_add_u32 v2, v3, 4, v2\nv_add_u32 v2, {L_A}, v2")
        a("v_lshrrev_b32 v70, 4, v0\nv_lshlrev_b32 v70, 2, v70\nv_mul_lo_u32 v70, v70, s44\nv_and_b32 v71, 15, v0\nv_lshl_add_u32 v70, v71, 2, v70")
        a(f"v_mov_b32 v71, s{sT8}")
        for r in range(4):
            a(f"s_mul_i32 s{76+r}, s44, {r}\ns_add_u32 s{76+r}, s{76+r}, s43")
        a("s_waitcnt lgkmcnt(0)")
        self.stamp(6)
        a("s_barrier")
        for m in range(4):
            a(f"ds_read_b128 v[{40+4*m}:{40+4*m+3}], v2 offset:{64*m}")
        for m in range(4):
            a(f"s_waitcnt lgkmcnt({3-m})")
            a(f"v_mfma_f32_16x16x32_bf16 v[4:7], v[{40+4*m}:{40+4*m+3}], v[{WB+4*m}:{WB+4*m+3}], {'0' if m == 0 else 'v[4:7]'}")
        self.setexec(0xffffffff, 0)
        for r in range(4):
            a(f"v_and_or_b32 v{72+r}, v{4+r}, s{sFF00}, v71")
        for r in range(4):
            a(f"buffer_store_dword v{72+r}, v70, {SRD_WS}, s{76+r} offen sc1")
        self.stamp(7)
        a("s_branch L_fin")
        a("L_h_tail:")
        self.stamp(5)
        a("s_barrier")
        a("L_h_tail1:")
        a("s_barrier")
        a("s_branch L_fin")

    def xid_publish(self):
        a = self.a
        if 'noxid' in self.o.skip:
            return
        L = a.label("noxid")
        a(f"s_cmp_lg_u32 s{sW}, 0\ns_cbranch_scc1 {L}")
        a("s_getreg_b32 s75, hwreg(HW_REG_XCC_ID, 0, 4)")
        a("s_and_b32 s75, s75, 7\ns_mul_i32 s75, s75, 6\ns_mov_b32 s76, 1\ns_mov_b32 s77, 0\ns_lshl_b64 s[76:77], s[76:77], s75")
        srd(a, 60, sDBG, 256)
        a(f"v_mov_b32 v8, s76\nv_mov_b32 v9, s77\ns_lshl_b32 s75, s{sKVH}, 5\nv_mov_b32 v3, s75")
        self.setexec(1, 0)
        a("buffer_atomic_add_x2 v[8:9], v3, s[60:63], 0 offen")
        a("s_mov_b64 exec, -1")
        a(f"{L}:")

    def xid_check(self):
        a = self.a
        L = a.label("noxc")
        a(f"s_cmp_lg_u32 s{sW}, 1\ns_cbranch_scc1 {L}")
        a(f"s_lshl_b32 s75, s{sKVH}, 5\ns_add_u32 s78, s{sDBG}, s75\ns_addc_u32 s79, s{sDBG+1}, 0")
        if 'noxid' in self.o.skip:
            a("s_mov_b32 s76, 0\ns_mov_b32 s77, 0")
        else:
            a("s_load_dwordx2 s[76:77], s[78:79], 0 glc")
        a("s_getreg_b32 s75, hwreg(HW_REG_XCC_ID, 0, 4)")
        a("s_and_b32 s75, s75, 7\ns_mul_i32 s75, s75, 6\ns_waitcnt lgkmcnt(0)\ns_lshr_b64 s[76:77], s[76:77], s75\ns_and_b32 s76, s76, 63")
        a("s_cmp_eq_u32 s76, 32\ns_cselect_b32 s75, 1, 0")
        if 'nofast' in self.o.skip:
            a("s_mov_b32 s75, 0")
        a(f"v_mov_b32 v2, {L_FIN+72}\nv_mov_b32 v3, s75")
        self.setexec(1, 0)
        a("ds_write_b32 v2, v3")
        a("s_mov_b64 exec, -1")
        a(f"{L}:")

    def tr_addr(self, lbase):
        a = self.a
        a("v_lshrrev_b32 v1, 4, v0\nv_lshlrev_b32 v1, 3, v1\nv_bfe_u32 v2, v0, 2, 2\nv_add_u32 v1, v1, v2\nv_lshlrev_b32 v1, 7, v1")
        a("v_bfe_u32 v2, v0, 3, 2")
        a(f"v_xor_b32 v2, s{sW}, v2\nv_lshl_add_u32 v1, v2, 5, v1")
        a(f"v_and_b32 v2, 3, v0\nv_lshl_add_u32 v1, v2, 3, v1\nv_add_u32 v1, {lbase}, v1")

    def q_issue(self):
        a = self.a
        a(f"s_lshl_b32 s75, s{sKVH}, 3\ns_add_u32 s75, s75, s{sB}\ns_lshl_b32 s75, s75, 12\ns_lshl_b32 s76, s{sW}, 9\ns_add_u32 s75, s75, s76")
        a(f"s_add_u32 s43, s75, {WS_QP}")
        a("v_lshrrev_b32 v1, 5, v0\nv_lshlrev_b32 v1, 11, v1\nv_and_b32 v2, 31, v0\nv_lshl_add_u32 v1, v2, 4, v1")
        a("s_add_u32 s76, s43, 60")
        self.spoll(76, [(1, 52, 2048 + 7 * 64)], [52], self.o.ssleep1, name='q')
        self.spoll(76, [(1, 52 + i, (i & 7) * 64 + (i >> 3) * 2048) for i in range(16)], [52 + i for i in range(16)], self.o.ssleep, name='q')
        self.stamp(11)
        self.q_load()

    def q_load(self):
        if 'no_q' not in self.o.skip:
            self.a(f"buffer_load_dwordx4 v[8:11], v1, {SRD_WS}, s43 offen sc1")

    def q_finish(self, wait):
        a = self.a
        self.vpoll(self.q_load, [8], 5, 6, 7, self.o.qsleep, name='q', issued=True, wait=wait)
        self.unmask(8, 4)
        for k in range(4):
            a(f"v_mov_b32 v{12+k}, v{8+k}")
        for k in range(4):
            a(f"v_permlane32_swap_b32 v{8+k}, v{12+k}")
        for k in range(4):
            a(f"v_add_f32 v{8+k}, v{8+k}, v{12+k}")
        a("v_cvt_pk_bf16_f32 v8, v8, v9\nv_cvt_pk_bf16_f32 v9, v10, v11")
        a(f"s_lshl_b32 s75, s{sW}, 8\ns_add_u32 s75, s75, {L_Q}\nv_and_b32 v2, 31, v0\nv_lshlrev_b32 v2, 3, v2\nv_add_u32 v2, s75, v2")
        self.setexec(0xffffffff, 0)
        a("ds_write_b64 v2, v[8:9]")
        a("s_mov_b64 exec, -1")
        self.xid_check()
        a("s_waitcnt lgkmcnt(0)")
        self.lds_signal(C_Q, 3, 4)

    def layernorm(self):
        a = self.a
        X = 8; F = 16
        a(f"s_lshl_b32 s75, s{sW}, 1\ns_mul_i32 s75, s75, {XP}")
        a(f"v_lshrrev_b32 v1, 5, v0\nv_mul_u32_u24 v1, {XP}, v1\nv_and_b32 v2, 31, v0\nv_mul_u32_u24 v2, 28, v2\nv_add_u32 v1, v1, v2\nv_add_u32 v1, s75, v1")
        a(f"v_add_u32 v2, {L_X}, v1")
        for i in range(3):
            a(f"ds_read2_b32 v[{X+2*i}:{X+2*i+1}], v2 offset0:{2*i} offset1:{2*i+1}")
        a(f"ds_read_b32 v{X+6}, v2 offset:24")
        a("s_waitcnt lgkmcnt(0)")
        for i in range(7):
            a(f"v_lshlrev_b32 v{F+2*i}, 16, v{X+i}\nv_and_b32 v{F+2*i+1}, 0xffff0000, v{X+i}")
        a(f"v_add_f32 v3, v{F}, v{F+1}")
        for i in range(2, 14):
            a(f"v_add_f32 v3, v3, v{F+i}")
        self.row16_reduce("v_add_f32", 3)
        self.swap_reduce("v_add_f32", 3, 4, 16)
        a("v_mul_f32 v3, 0x3b124925, v3")
        a(f"v_sub_f32 v5, v{F}, v3\nv_mul_f32 v4, v5, v5")
        for i in range(1, 14):
            a(f"v_sub_f32 v5, v{F+i}, v3\nv_fmac_f32 v4, v5, v5")
        self.row16_reduce("v_add_f32", 4)
        self.swap_reduce("v_add_f32", 4, 5, 16)
        a("v_mul_f32 v4, 0x3b124925, v4")
        self.bf16_round(3, 3)
        self.bf16_round(4, 4)
        a("v_add_f32 v4, 0x3727c5ac, v4")
        self.bf16_round(4, 4)
        a("v_sqrt_f32 v4, v4")
        self.bf16_round(4, 4)
        a("v_rcp_f32 v4, v4")
        a(f"v_add_u32 v2, {L_Y}, v1")
        for i in range(7):
            a(f"v_sub_f32 v{F+2*i}, v{F+2*i}, v3\nv_sub_f32 v{F+2*i+1}, v{F+2*i+1}, v3")
            a(f"v_cvt_pk_bf16_f32 v5, v{F+2*i}, v{F+2*i+1}")
            a(f"v_lshlrev_b32 v6, 16, v5\nv_and_b32 v5, 0xffff0000, v5")
            a(f"v_mul_f32 v6, v6, v4\nv_mul_f32 v5, v5, v4")
            a(f"v_cvt_pk_bf16_f32 v{X+i}, v6, v5")
            a(f"ds_write_b32 v2, v{X+i} offset:{4*i}")

    def gelu(self, x, t0, t1):
        a = self.a
        a(f"v_mul_f32 v{t0}, v{x}, v{x}")
        a(f"v_mov_b32 v{t1}, 0xc0135761")
        a(f"v_fmac_f32 v{t1}, 0xbdd2d3e2, v{t0}")
        a(f"v_mul_f32 v{t1}, v{t1}, v{x}")
        a(f"v_exp_f32 v{t1}, v{t1}")
        a(f"v_add_f32 v{t1}, 1.0, v{t1}")
        a(f"v_rcp_f32 v{t1}, v{t1}")
        a(f"v_mul_f32 v{x}, v{x}, v{t1}")

    def h_loads(self):
        a = self.a
        for i in range(4):
            a(f"buffer_load_dwordx4 v[{16+4*i}:{16+4*i+3}], v60, {SRD_WS}, s{64+i} offen sc1")

    def h_issue(self):
        a = self.a
        a(f"s_lshl_b32 s75, s{sW}, 1\ns_mul_i32 s76, s75, 7168\ns_mul_i32 s77, s75, {XP}")
        a(f"s_and_b32 s78, s47, 7\ns_mul_i32 s79, s78, 896\ns_add_u32 s76, s76, s79\ns_add_u32 s40, s76, {WS_HP}")
        a(f"s_add_u32 s46, s77, {L_Y}\ns_mul_i32 s44, s78, 448")
        a("v_min_u32 v61, 55, v0\nv_lshlrev_b32 v60, 4, v61\nv_lshlrev_b32 v61, 3, v61\nv_add_u32 v62, s46, v61")
        a(f"s_add_u32 s75, s40, {7168 + 60}")
        self.spoll(75, [(1, 52, 8 * 7168 + 13 * 64)], [52], self.o.ssleep1, name='h')
        for kh in range(2):
            self.spoll(75, [(1, 52 + i, kh * 8 * 7168 + i * 64) for i in range(14)], [52 + i for i in range(14)], self.o.ssleep, name='h')
        a(f"s_mov_b32 s64, s40\ns_add_u32 s65, s40, {8*7168}\ns_add_u32 s66, s40, 7168\ns_add_u32 s67, s65, 7168")
        srd(a, 56, sB1, 3584)
        a("buffer_load_dwordx2 v[48:49], v61, s[56:59], s44 offen")
        if 'no_h' not in self.o.skip:
            self.h_loads()

    def h_finish(self):
        a = self.a
        self.vpoll(self.h_loads, [16, 20, 24, 28], 5, 6, 7, 8, name='h', issued=True)
        self.unmask(16, 16)
        a("v_lshlrev_b32 v50, 16, v48\nv_and_b32 v51, 0xffff0000, v48\nv_lshlrev_b32 v52, 16, v49\nv_and_b32 v53, 0xffff0000, v49")
        for bl in range(2):
            r = 16 + 8 * bl
            for k in range(4):
                a(f"v_add_f32 v{r+k}, v{r+k}, v{r+4+k}")
            for k2 in range(2):
                x0, x1 = r + 2 * k2, r + 2 * k2 + 1
                a(f"v_cvt_pk_bf16_f32 v{r+4}, v{x0}, v{x1}")
                a(f"v_lshlrev_b32 v{x0}, 16, v{r+4}\nv_and_b32 v{x1}, 0xffff0000, v{r+4}")
                a(f"v_add_f32 v{x0}, v{x0}, v{50+2*k2}\nv_add_f32 v{x1}, v{x1}, v{51+2*k2}")
                a(f"v_cvt_pk_bf16_f32 v{r+4}, v{x0}, v{x1}")
                a(f"v_lshlrev_b32 v{x0}, 16, v{r+4}\nv_and_b32 v{x1}, 0xffff0000, v{r+4}")
            for k in range(4):
                self.gelu(r + k, 36 + 2 * k, 37 + 2 * k)
            a(f"v_cvt_pk_bf16_f32 v{r}, v{r}, v{r+1}\nv_cvt_pk_bf16_f32 v{r+1}, v{r+2}, v{r+3}")
            a(f"ds_write_b64 v62, v[{r}:{r+1}] offset:{XP*bl}")

    def finalprep(self):
        a = self.a
        if 'notouch' not in self.o.skip:
            srd(a, 56, sOUT, 8 * 448 * 2)
            a("v_mov_b32 v3, 0")
            self.setexec(1, 0)
            a("buffer_load_dword v40, v3, s[56:59], 0 offen")
            a("s_mov_b64 exec, -1")
        srd(a, 56, sX, 7168)
        a(f"s_mul_i32 s75, s{sKVH}, 896")
        a("v_lshlrev_b32 v3, 4, v0")
        a("v_mov_b32 v8, 0\nv_mov_b32 v9, 0\nv_mov_b32 v10, 0\nv_mov_b32 v11, 0")
        self.setexec(0xffffffff, 0x00ffffff)
        a("buffer_load_dwordx4 v[8:11], v3, s[56:59], s75 offen")
        a("s_mov_b64 exec, -1")
        srd(a, 56, sGW, 896)
        a("buffer_load_dwordx4 v[12:15], v3, s[56:59], 0 offen")
        srd(a, 56, sB2, 896)
        a(f"s_lshl_b32 s75, s{sJJ}, 5")
        a("v_and_b32 v4, 3, v0\nv_lshlrev_b32 v4, 3, v4")
        a("buffer_load_dwordx2 v[16:17], v4, s[56:59], s75 offen")
        a("s_waitcnt vmcnt(0)")
        a("v_mov_b32 v24, 0")
        for i in range(4):
            a(f"v_lshlrev_b32 v25, 16, v{8+i}\nv_lshlrev_b32 v26, 16, v{12+i}\nv_mul_f32 v25, v25, v26")
            a(f"v_and_b32 v26, 0xffff0000, v{8+i}\nv_and_b32 v27, 0xffff0000, v{12+i}\nv_mul_f32 v26, v26, v27")
            a("v_cvt_pk_bf16_f32 v25, v25, v26")
            a("v_lshlrev_b32 v26, 16, v25\nv_and_b32 v25, 0xffff0000, v25\nv_add_f32 v24, v24, v26\nv_add_f32 v24, v24, v25")
        self.row16_reduce("v_add_f32", 24)
        self.swap_reduce("v_add_f32", 24, 25, 16)
        self.swap_reduce("v_add_f32", 24, 25, 32)
        self.bf16_round(24, 24)
        a("v_mul_f32 v24, 0xbfb8aa3b, v24\nv_exp_f32 v24, v24\nv_add_f32 v24, 1.0, v24\nv_rcp_f32 v24, v24")
        self.bf16_round(24, 24)
        a("v_sub_f32 v25, 1.0, v24")
        self.bf16_round(25, 25)
        a("v_lshlrev_b32 v28, 16, v16\nv_and_b32 v29, 0xffff0000, v16\nv_lshlrev_b32 v30, 16, v17\nv_and_b32 v31, 0xffff0000, v17")
        a(f"v_lshlrev_b32 v4, 1, v4\nv_add_u32 v4, {L_FIN}, v4\nv_mov_b32 v5, {L_FIN+64}")
        self.setexec(0xf, 0)
        a("ds_write_b128 v4, v[28:31]")
        self.setexec(1, 0)
        a("ds_write_b64 v5, v[24:25]")
        a("s_mov_b64 exec, -1")
        a("s_waitcnt lgkmcnt(0)")

    def build(self):
        a = self.a
        self.prologue()
        self.streaming()
        self.helper()
        a("L_fin:")
        self.dump_stamps()
        a("L_end:")
        a("s_endpgm")
        body = a.text()
        body = "\n".join((l.replace("@POL@", self.o.stpol) if "buffer_store" in l else l.replace("@POL@", self.o.ldpol)) for l in body.split("\n"))
        hdr = open("cdna_kernels/" + NAME + ".s.ref").read().split("; Override launch geometry")[0]
        out = hdr
        out += "; Override launch geometry by editing the next line (default: block=256,\n"
        out += f"; @launch grid=(256,1,1) block=(768,1,1) lds={LDS_BYTES}\n"
        out += '.amdgcn_target "amdgcn-amd-amdhsa--gfx950"\n.text\n'
        out += f".globl {KNAME}\n.p2align 8\n.type {KNAME},@function\n{KNAME}:\n"
        out += body
        out += f""".section .rodata,"a"
.p2align 6
.amdhsa_kernel {KNAME}
  .amdhsa_next_free_vgpr 168
  .amdhsa_next_free_sgpr 102
  .amdhsa_accum_offset 168
  .amdhsa_group_segment_fixed_size 0
  .amdhsa_kernarg_size 112
  .amdhsa_user_sgpr_count 2
  .amdhsa_user_sgpr_kernarg_segment_ptr 1
  .amdhsa_system_sgpr_workgroup_id_x 1
.end_amdhsa_kernel
"""
        return out

def parse(argv):
    p = argparse.ArgumentParser()
    p.add_argument("-o", default="cdna_kernels/" + NAME + ".s")
    p.add_argument("--stamps", action="store_true")
    p.add_argument("--dbgtime", action="store_true")
    p.add_argument("--rot", default="1,1,1,0")
    p.add_argument("--skip", default="")
    p.add_argument("--ldpol", default="sc1")
    p.add_argument("--stpol", default="sc1")
    p.add_argument("--npre", type=int, default=1)
    p.add_argument("--kmap", default="contig")
    p.add_argument("--kwin", type=int, default=0)
    p.add_argument("--vwin_n", type=int, default=0)
    p.add_argument("--order", default="kv")
    p.add_argument("--sprio", default="")
    p.add_argument("--hpre", type=int, default=7)
    p.add_argument("--woprio", type=int, default=0)
    p.add_argument("--qsleep", type=int, default=8)
    p.add_argument("--ssleep", type=int, default=2)
    p.add_argument("--fstag", type=int, default=4)
    p.add_argument("--ssleep1", type=int, default=8)
    p.add_argument("--tpol", default="nt")
    p.add_argument("--fast", action="store_true")
    p.add_argument("--earlybar", action="store_true")
    p.add_argument("--asleep", type=int, default=1)
    p.add_argument("--kvpol", default="nt")
    p.add_argument("--cntq", default="16,16,16,16,16,16,16,16")
    p.add_argument("--cnt1", default="7,7,7,7,7,7,7,7")
    p.add_argument("--cnt2", default="7,7,7,7,7,7,7,7")
    o = p.parse_args(argv)
    o.rot = tuple(int(x) for x in o.rot.split(","))
    o.skip = set(x for x in o.skip.split(",") if x)
    if not o.fast:
        o.skip.add('noxid')
    for k in ("cntq", "cnt1", "cnt2"):
        setattr(o, k, [int(x) for x in getattr(o, k).split(",")])
    return o

if __name__ == "__main__":
    o = parse(sys.argv[1:])
    open(o.o, "w").write(Gen(o).build())
    print("wrote", o.o)
```

```python
import sys, argparse
from emit import Asm

NAME = "gated_mix__sliding_block_cached__mixer_channel_mlp__decode"
KNAME = NAME + "_kernel"

WS_QP = 0x010000
WS_HP = 0x050000
WS_OP = 0x070000
WS_ST = 0x0f0000
WS_BP = 0x100000
WS_MP = 0x180000
WS_DBG = 0x600000
WS_SIZE = 0x800000

L_TILE = 0
XP = 928
L_X = 57344
L_Y = 64768
L_WO = 72192
L_Q = 88576
L_P = 89600
L_OP = 90624
L_ST = 107008
L_A = 107136
L_FIN = 109312
L_CNT = 109440
L_SH = 109568
LDS_BYTES = 111616
C_A0, C_A1, C_WO, C_Q, C_S = 0, 4, 8, 12, 16

SPIN_LIMIT = 100000

sX, sK, sV, sWQ, sWO, sW1, sB1, sW2, sB2, sGW, sOUT, sDBG, sWS = 4, 6, 8, 10, 12, 16, 18, 20, 22, 24, 26, 28, 30
sT, sT8, sT88 = 32, 33, 34
sKVH, sJ, sB, sS, sJJ = 35, 36, 37, 38, 39
SRD_WS = "s[48:51]"
sFF00 = 72
sPSEL = 73
sPSEL2 = 14
sW = 74
STAMP0 = 84
DPP = "row_mask:0xf bank_mask:0xf"

def srd(a, base, ptr, nbytes):
    a(f"s_mov_b32 s{base}, s{ptr}")
    a(f"s_and_b32 s{base+1}, s{ptr+1}, 0xffff")
    a(f"s_mov_b32 s{base+2}, {nbytes}")
    a(f"s_mov_b32 s{base+3}, 0x20000")

def pack8(vals):
    v = 0
    for i, x in enumerate(vals):
        assert 0 <= x < 256
        v |= x << (8 * i)
    return v & 0xffffffff, v >> 32

class Gen:
    def __init__(self, opt):
        self.o = opt
        self.a = Asm()

    def stamp(self, idx):
        if self.o.stamps:
            self.a("s_memrealtime s[100:101]")
            self.a("s_waitcnt lgkmcnt(0)")
            self.a(f"s_mov_b32 s{STAMP0+idx}, s100")

    def dump_stamps(self):
        if not self.o.stamps:
            return
        a = self.a
        if self.o.dbgtime:
            a("s_mov_b64 exec, -1")
            srd(a, 60, sDBG, 256)
            a(f"s_not_b32 s{STAMP0}, s{STAMP0}")
            a("v_mov_b32 v1, 0")
            for i in range(16):
                a(f"v_writelane_b32 v1, s{STAMP0+i}, {i}")
            a("s_memrealtime s[100:101]\ns_waitcnt lgkmcnt(0)")
            a("v_writelane_b32 v1, s100, 15")
            a("v_mbcnt_lo_u32_b32 v2, -1, 0\nv_mbcnt_hi_u32_b32 v2, -1, v2\nv_lshlrev_b32 v2, 2, v2")
            a("s_cmp_ge_u32 s3, 8\ns_cselect_b32 s80, 64, 0")
            a("s_mov_b32 exec_lo, 0xffff\ns_mov_b32 exec_hi, 0")
            a("buffer_atomic_umax v1, v2, s[60:63], s80 offen")
            a("s_waitcnt vmcnt(0)")
            return
        a("s_mov_b64 exec, -1")
        a("s_lshl_b32 s80, s2, 4\ns_add_u32 s80, s80, s3\ns_lshl_b32 s80, s80, 6")
        a(f"s_add_u32 s80, s80, {WS_DBG}")
        a("v_mov_b32 v1, 0")
        for i in range(16):
            a(f"v_writelane_b32 v1, s{STAMP0+i}, {i}")
        a("v_mbcnt_lo_u32_b32 v2, -1, 0\nv_mbcnt_hi_u32_b32 v2, -1, v2\nv_lshlrev_b32 v2, 2, v2")
        a("s_mov_b32 exec_lo, 0xffff\ns_mov_b32 exec_hi, 0")
        a(f"buffer_store_dword v1, v2, {SRD_WS}, s80 offen")
        a("s_waitcnt vmcnt(0)")

    def setexec(self, lo, hi):
        self.a(f"s_mov_b32 exec_lo, {hex(lo)}\ns_mov_b32 exec_hi, {hex(hi)}")

    def lds_signal(self, cnt_off, v0, v1):
        a = self.a
        a(f"v_mov_b32 v{v0}, {L_CNT + cnt_off}")
        a(f"v_mov_b32 v{v1}, 1")
        self.setexec(1, 0)
        a(f"ds_add_u32 v{v0}, v{v1}")
        a("s_mov_b64 exec, -1")

    def lds_wait(self, cnt_off, target, v0, v1, sleep=1):
        a = self.a
        L = a.label("lw"); Ld = a.label("lwd")
        a(f"v_mov_b32 v{v0}, {L_CNT + cnt_off}")
        a(f"s_mov_b32 s81, 0")
        a(f"{L}:")
        a(f"ds_read_b32 v{v1}, v{v0}")
        a("s_waitcnt lgkmcnt(0)")
        a(f"v_readfirstlane_b32 s80, v{v1}")
        a(f"s_cmp_ge_u32 s80, {target}")
        a(f"s_cbranch_scc1 {Ld}")
        a(f"s_add_u32 s81, s81, 1")
        a(f"s_cmp_ge_u32 s81, {SPIN_LIMIT*8}")
        a(f"s_cbranch_scc1 {Ld}")
        a(f"s_sleep {sleep}")
        a(f"s_branch {L}")
        a(f"{Ld}:")

    def check4w(self, r, vbad, vt, vu, first):
        a = self.a
        a(f"v_perm_b32 v{vt}, v{r}, v{r+1}, s{sPSEL}")
        a(f"v_perm_b32 v{vu}, v{r+2}, v{r+3}, s{sPSEL2}")
        a(f"v_or_b32 v{vt}, v{vt}, v{vu}")
        if first:
            a(f"v_xor_b32 v{vbad}, s{sT88}, v{vt}")
        else:
            a(f"v_xor_b32 v{vt}, s{sT88}, v{vt}\nv_or_b32 v{vbad}, v{vbad}, v{vt}")

    def unmask(self, r, n=4, dst=None):
        for i in range(n):
            self.a(f"v_and_b32 v{(dst if dst is not None else r)+i}, s{sFF00}, v{r+i}")

    def vpoll(self, loads, regs, vbad, vt, vu, sleep, name="", issued=False, wait="vmcnt(0)"):
        a = self.a
        if name and ('no_' + name) in self.o.skip:
            return
        L = a.label("vp"); Ld = a.label("vpd")
        a("s_mov_b32 s81, 0")
        if issued:
            a(f"s_waitcnt {wait}")
            for i, r in enumerate(regs):
                self.check4w(r, vbad, vt, vu, i == 0)
            a(f"v_cmp_ne_u32 vcc, 0, v{vbad}\ns_cbranch_vccz {Ld}")
        a(f"{L}:")
        loads()
        a("s_waitcnt vmcnt(0)")
        for i, r in enumerate(regs):
            self.check4w(r, vbad, vt, vu, i == 0)
        a(f"v_cmp_ne_u32 vcc, 0, v{vbad}\ns_cbranch_vccz {Ld}")
        a(f"s_add_u32 s81, s81, 1\ns_cmp_ge_u32 s81, {SPIN_LIMIT}\ns_cbranch_scc1 {Ld}")
        a(f"s_sleep {sleep}\ns_branch {L}")
        a(f"{Ld}:")

    def spoll(self, off_expr, loads, words, sleep, name=""):
        a = self.a
        if name and ('no_' + name) in self.o.skip:
            return
        P = a.label("sp"); Pd = a.label("spd")
        a(f"s_add_u32 s78, s{sWS}, s{off_expr}\ns_addc_u32 s79, s{sWS+1}, 0")
        a("s_mov_b32 s81, 0")
        a(f"{P}:")
        for ndw, dst, imm in loads:
            rng = f"s[{dst}:{dst+ndw-1}]" if ndw > 1 else f"s{dst}"
            a(f"s_load_dword{'x'+str(ndw) if ndw > 1 else ''} {rng}, s[78:79], {imm} glc")
        a("s_waitcnt lgkmcnt(0)")
        a(f"s_xor_b32 s80, s{words[0]}, s{sT8}")
        for t in words[1:]:
            a(f"s_xor_b32 s82, s{t}, s{sT8}\ns_or_b32 s80, s80, s82")
        a(f"s_and_b32 s80, s80, 0xff\ns_cbranch_scc0 {Pd}")
        a(f"s_add_u32 s81, s81, 1\ns_cmp_ge_u32 s81, {SPIN_LIMIT}\ns_cbranch_scc1 {Pd}")
        a(f"s_sleep {sleep}\ns_branch {P}")
        a(f"{Pd}:")

    def bf16_round(self, dst, src):
        a = self.a
        a(f"v_cvt_pk_bf16_f32 v{dst}, v{src}, v{src}")
        a(f"v_and_b32 v{dst}, 0xffff0000, v{dst}")

    def row16_reduce(self, op, v):
        for r in (8, 4, 2, 1):
            self.a(f"{op}_dpp v{v}, v{v}, v{v} row_ror:{r} {DPP}")

    def swap_reduce(self, op, v, t, which):
        a = self.a
        a(f"v_mov_b32 v{t}, v{v}")
        a(f"v_permlane{which}_swap_b32 v{v}, v{t}")
        a(f"{op} v{v}, v{v}, v{t}")

    def prologue(self):
        a = self.a
        a("s_cmp_ge_u32 s2, 256")
        a("s_cbranch_scc1 L_end")
        if self.o.earlybar:
            a("v_lshrrev_b32 v1, 6, v0")
            a("v_and_b32 v0, 63, v0")
            a("v_readfirstlane_b32 s3, v1")
            a(f"v_mov_b32 v1, {L_CNT}\nv_mov_b32 v2, 0\nv_mov_b32 v3, 0\nv_mov_b32 v4, 0\nv_mov_b32 v5, 0")
            a("s_cmp_lg_u32 s3, 8\ns_cbranch_scc1 L_noinit")
            self.setexec(1, 0)
            a("ds_write_b128 v1, v[2:5]\nds_write_b128 v1, v[2:5] offset:16")
            a("s_mov_b64 exec, -1")
            a("s_waitcnt lgkmcnt(0)")
            a("L_noinit:")
        a("s_load_dwordx16 s[4:19], s[0:1], 0")
        a("s_load_dwordx8 s[20:27], s[0:1], 64")
        a("s_load_dwordx4 s[28:31], s[0:1], 96")
        if self.o.stamps:
            for i in range(16):
                a(f"s_mov_b32 s{STAMP0+i}, 0")
            a("s_memrealtime s[100:101]")
        if self.o.earlybar:
            a("s_barrier")
        else:
            a("v_lshrrev_b32 v1, 6, v0")
            a("v_and_b32 v0, 63, v0")
            a("v_readfirstlane_b32 s3, v1")
        a(f"s_and_b32 s{sKVH}, s2, 7")
        a(f"s_lshr_b32 s{sJ}, s2, 3")
        a(f"s_and_b32 s{sB}, s{sJ}, 7")
        a(f"s_lshr_b32 s{sS}, s{sJ}, 3")
        a(f"s_sub_u32 s40, s{sJ}, 4")
        a(f"s_cmp_lt_u32 s{sJ}, 4")
        a(f"s_cselect_b32 s{sJJ}, 255, s40")
        a(f"s_mov_b32 s{sFF00}, 0xffffff00")
        a(f"s_mov_b32 s{sPSEL}, 0x0c0c0400")
        a("s_cmp_ge_u32 s3, 8")
        a("s_cbranch_scc1 L_helper")

    def after_karg(self):
        a = self.a
        a("s_waitcnt lgkmcnt(0)")
        if self.o.stamps:
            a(f"s_mov_b32 s{STAMP0}, s100")
        a(f"s_load_dword s{sT}, s[{sWS}:{sWS+1}], 0")
        a(f"s_mov_b32 s{sPSEL2}, 0x04000c0c")

    def tag_setup(self):
        a = self.a
        a("s_waitcnt lgkmcnt(0)")
        a(f"s_add_u32 s{sT}, s{sT}, 1")
        a(f"s_and_b32 s{sT8}, s{sT}, 0xff")
        a(f"s_mul_i32 s{sT88}, s{sT8}, 0x01010101")

    def streaming(self):
        a = self.a; o = self.o
        KD, VD = 8, 72
        QA = 136
        D0 = 144
        XS = 148
        SEL = 156
        vKo, vVo = 1, 2
        a.c("================= streaming wave =================")
        a(f"s_mov_b32 s{sW}, s3")
        a(f"s_lshl_b32 s75, s{sB}, 3\ns_add_u32 s75, s75, s{sKVH}\ns_lshl_b32 s75, s75, 21")
        a(f"s_lshl_b32 s76, s{sS}, 17\ns_add_u32 s75, s75, s76")
        a(f"s_add_u32 s75, s75, 0x180000")
        mb, mk, mw, ms = o.rot
        terms = [(sB, mb), (sKVH, mk), (sW, mw), (sS, ms)]
        a("s_mov_b32 s76, 0")
        for reg, m in terms:
            if m == 1:
                a(f"s_add_u32 s76, s76, s{reg}")
            elif m:
                a(f"s_mul_i32 s77, s{reg}, {m}\ns_add_u32 s76, s76, s77")
        if o.kmap == 'contig':
            a(f"s_lshl_b32 s77, s{sW}, 14\ns_add_u32 s75, s75, s77")
            a("s_and_b32 s76, s76, 7\ns_lshl_b32 s76, s76, 11")
            for t in range(8):
                if t:
                    a(f"s_add_u32 s76, s76, 0x800\ns_and_b32 s76, s76, 0x3fff")
                a(f"s_add_u32 s{40+t}, s76, s75")
        elif o.kmap == 'inter':
            a(f"s_lshl_b32 s77, s{sW}, 11\ns_add_u32 s75, s75, s77")
            a("s_and_b32 s76, s76, 7\ns_lshl_b32 s76, s76, 14")
            for t in range(8):
                if t:
                    a(f"s_add_u32 s76, s76, 0x4000\ns_and_b32 s76, s76, 0x1ffff")
                a(f"s_add_u32 s{40+t}, s76, s75")
        elif o.kmap == 'rot64':
            a(f"s_lshl_b32 s77, s{sW}, 3\ns_add_u32 s76, s76, s77\ns_and_b32 s76, s76, 63\ns_lshl_b32 s76, s76, 11")
            for t in range(8):
                if t:
                    a(f"s_add_u32 s76, s76, 0x800\ns_and_b32 s76, s76, 0x1ffff")
                a(f"s_add_u32 s{40+t}, s76, s75")
        a(f"v_lshrrev_b32 v3, 4, v0\nv_lshlrev_b32 v{vKo}, 6, v3")
        a(f"v_bfe_u32 v4, v0, 2, 2\nv_lshl_add_u32 v{vKo}, v4, 9, v{vKo}")
        a(f"v_and_b32 v4, 3, v0\nv_lshl_add_u32 v{vKo}, v4, 4, v{vKo}")
        a(f"v_and_b32 v4, 15, v0\nv_lshlrev_b32 v4, 4, v4\nv_lshl_add_u32 v{vVo}, v3, 9, v4")
        self.after_karg()
        self.stamp(10)
        srd(a, 52, sK, 0x8000000)
        def ld(m, isv):
            t, c = m // 2, m % 2
            r = (VD if isv else KD) + 4 * m
            a(f"buffer_load_dwordx4 v[{r}:{r+3}], v{vVo if isv else vKo}, {'s[56:59]' if isv else 's[52:55]'}, s{40+t} offen offset:{c*256} {o.kvpol}")
        npre = o.npre
        if o.sprio == 'kfirst':
            a("s_setprio 1")
        if o.vfirst:
            srd(a, 56, sV, 0x8000000)
            ld(0, True)
        for m in range(npre):
            ld(m, False)
        self.stamp(11)
        if not o.earlybar:
            a("s_barrier")
        self.stamp(12)
        srd(a, 56, sV, 0x8000000)
        srd(a, 48, sWS, WS_SIZE)
        if o.sprio == 'young':
            a(f"s_cmp_ge_u32 s{sW}, 4\ns_cbranch_scc0 L_noprio\ns_setprio 1\nL_noprio:")
        for m in range(npre, 16):
            if o.kwin and m >= o.kwin:
                a(f"s_waitcnt vmcnt({o.kwin - 1})")
            ld(m, False)
        if o.sprio == 'kfirst':
            a("s_setprio 0")
        for m in range(16):
            if o.vfirst and m == 0:
                continue
            if o.kwin and m < o.vwin_n:
                a(f"s_waitcnt vmcnt({o.kwin - 1})")
            ld(m, True)
        self.stamp(1)
        self.tag_setup()
        for base, val in ((64, 0x22222222), (66, 0x44444444), (68, 0x88888888)):
            a(f"s_mov_b32 s{base}, {hex(val)}\ns_mov_b32 s{base+1}, {hex(val)}")
        a("s_mov_b32 s70, 0\ns_mov_b32 s71, -1")
        vQ, vPw, vPr, vOw = 3, 4, 5, 6
        a(f"v_lshrrev_b32 v7, 4, v0\nv_lshlrev_b32 v{vQ}, 6, v7")
        a(f"v_bfe_u32 v164, v0, 2, 1\nv_lshl_add_u32 v{vQ}, v164, 9, v{vQ}")
        a(f"v_and_b32 v164, 3, v0\nv_lshl_add_u32 v{vQ}, v164, 4, v{vQ}")
        a(f"v_add_u32 v{vQ}, {L_Q}, v{vQ}")
        a(f"s_lshl_b32 s77, s{sW}, 7\ns_add_u32 s77, s77, {L_P}")
        a(f"v_bfe_u32 v164, v0, 2, 3\nv_lshlrev_b32 v{vPw}, 4, v164")
        a(f"v_lshrrev_b32 v164, 5, v0\nv_lshl_add_u32 v{vPw}, v164, 3, v{vPw}")
        a(f"v_and_b32 v164, 3, v0\nv_lshl_add_u32 v{vPw}, v164, 1, v{vPw}")
        a(f"v_add_u32 v{vPw}, s77, v{vPw}")
        a(f"v_bfe_u32 v164, v0, 3, 1\nv_lshlrev_b32 v{vPr}, 6, v164")
        a(f"v_lshl_add_u32 v{vPr}, v7, 4, v{vPr}\nv_add_u32 v{vPr}, s77, v{vPr}")
        a(f"s_lshl_b32 s77, s{sW}, 11\ns_add_u32 s77, s77, {L_OP}")
        a(f"v_lshrrev_b32 v164, 5, v0\nv_lshlrev_b32 v{vOw}, 10, v164")
        a(f"v_and_b32 v164, 15, v0\nv_lshl_add_u32 v{vOw}, v164, 5, v{vOw}")
        a(f"v_bfe_u32 v164, v0, 4, 1\nv_lshl_add_u32 v{vOw}, v164, 4, v{vOw}")
        a(f"v_add_u32 v{vOw}, s77, v{vOw}")
        a("v_and_b32 v164, 1, v0\nv_cmp_eq_u32 vcc, 1, v164")
        a("v_mov_b32 v165, 0x0c0c0100\nv_mov_b32 v166, 0x01000c0c\nv_cndmask_b32 v165, v165, v166, vcc")
        a("v_mov_b32 v166, 0x0c0c0302\nv_mov_b32 v167, 0x03020c0c\nv_cndmask_b32 v166, v166, v167, vcc")
        a("v_bfe_u32 v164, v0, 1, 2\nv_mov_b32 v167, 0x0c0c0c0c")
        for j in range(4):
            a(f"v_cmp_eq_u32 vcc, {j}, v164")
            a(f"v_cndmask_b32 v{SEL+j}, v167, v165, vcc")
            a(f"v_cndmask_b32 v{SEL+4+j}, v167, v166, vcc")
        if 'qwait' not in o.skip:
            self.lds_wait(C_Q, 4, 164, 165, sleep=2)
        self.stamp(2)
        a(f"ds_read_b128 v[{QA}:{QA+3}], v{vQ}")
        a(f"ds_read_b128 v[{QA+4}:{QA+7}], v{vQ} offset:256")
        a(f"v_mov_b32 v164, {L_FIN+72}\nds_read_b32 v165, v164")
        a("s_waitcnt lgkmcnt(0)")
        a("v_readfirstlane_b32 s47, v165")
        Dreg = [D0] + [KD + 8 * (t - 1) for t in range(1, 8)]
        for t in range(8):
            a(f"s_waitcnt vmcnt({30 - 2*t - (1 if o.vfirst else 0)})")
            k0, k1 = KD + 8 * t, KD + 8 * t + 4
            d = Dreg[t]
            a(f"v_mfma_f32_16x16x32_bf16 v[{d}:{d+3}], v[{QA}:{QA+3}], v[{k0}:{k0+3}], 0")
            a(f"v_mfma_f32_16x16x32_bf16 v[{d}:{d+3}], v[{QA+4}:{QA+7}], v[{k1}:{k1+3}], v[{d}:{d+3}]")
        self.stamp(3)
        for t in range(8):
            d = Dreg[t]; x = XS + t
            a(f"v_cndmask_b32 v{x}, v{d}, v{d+1}, s[64:65]")
            a(f"v_cndmask_b32 v{x}, v{x}, v{d+2}, s[66:67]")
            a(f"v_cndmask_b32 v{x}, v{x}, v{d+3}, s[68:69]")
        for i in range(4):
            a(f"v_cndmask_b32 v{XS+i}, v{XS+i}, v{XS+4+i}, s[70:71]")
        for i in range(4):
            a(f"v_add_f32_dpp v{XS+i}, v{XS+i}, v{XS+i} quad_perm:[1,0,3,2] {DPP}")
        for i in range(4):
            a(f"v_add_f32_dpp v{XS+i}, v{XS+i}, v{XS+i} quad_perm:[2,3,0,1] {DPP}")
        Z, M_, P_, T_ = XS + 4, XS + 6, XS + 7, XS + 5
        a(f"v_cndmask_b32 v{Z}, v{XS}, v{XS+1}, s[64:65]")
        a(f"v_cndmask_b32 v{Z}, v{Z}, v{XS+2}, s[66:67]")
        a(f"v_cndmask_b32 v{Z}, v{Z}, v{XS+3}, s[68:69]")
        self.bf16_round(Z, Z)
        a(f"v_mul_f32 v{Z}, 0x3db8aa3b, v{Z}")
        a(f"v_mov_b32 v{M_}, v{Z}")
        self.row16_reduce("v_max_f32", M_)
        self.swap_reduce("v_max_f32", M_, T_, 32)
        a(f"v_sub_f32 v{P_}, v{Z}, v{M_}")
        a(f"v_exp_f32 v{P_}, v{P_}")
        a(f"v_cvt_pk_bf16_f32 v{T_}, v{P_}, v{P_}")
        a(f"ds_write_b16 v{vPw}, v{T_}")
        P8 = KD
        a(f"ds_read_b128 v[{P8}:{P8+3}], v{vPr}")
        self.row16_reduce("v_add_f32", P_)
        self.swap_reduce("v_add_f32", P_, XS, 32)
        a(f"s_lshl_b32 s77, s{sW}, 3\ns_add_u32 s77, s77, {L_ST}")
        a(f"v_bfe_u32 v164, v0, 4, 1\nv_lshlrev_b32 v164, 6, v164\nv_add_u32 v164, s77, v164")
        self.setexec(0x10001, 0)
        a(f"ds_write_b64 v164, v[{M_}:{M_+1}]")
        a(f"v_mov_b32 v164, {L_CNT + C_S}\nv_mov_b32 v165, 1")
        self.setexec(1, 0)
        a("ds_add_u32 v164, v165")
        a("s_mov_b64 exec, -1")
        a("s_waitcnt lgkmcnt(2)")
        ACC = QA
        AR = [KD + 8, KD + 12]
        for u in range(8):
            ar = AR[u & 1]
            for j in range(4):
                a(f"v_perm_b32 v{ar+j}, v{P8 + u//2}, v{P8 + u//2}, v{SEL + 4*(u&1) + j}")
            a(f"s_waitcnt vmcnt({14 - 2*u})")
            for c in range(2):
                vb = VD + 8 * u + 4 * c
                acc = ACC + 4 * c
                cin = "0" if u == 0 else f"v[{acc}:{acc+3}]"
                a(f"v_mfma_f32_16x16x32_bf16 v[{acc}:{acc+3}], v[{ar}:{ar+3}], v[{vb}:{vb+3}], {cin}")
        self.stamp(4)
        a(f"s_lshl_b32 s77, s{sW}, 8\ns_add_u32 s77, s77, {L_OP}")
        a(f"v_lshlrev_b32 v32, 2, v0\nv_add_u32 v3, s77, v32")
        a(f"s_lshr_b32 s77, s{sW}, 2\ns_lshl_b32 s77, s77, 6\ns_add_u32 s77, s77, {L_ST}")
        a(f"v_mov_b32 v4, s77")
        a(f"v_mov_b32 v33, s{sT8}")
        a(f"s_lshl_b32 s76, s{sKVH}, 3\ns_add_u32 s76, s76, s{sB}")
        a(f"s_lshl_b32 s78, s76, 2\ns_add_u32 s78, s78, s{sS}\ns_lshl_b32 s78, s78, 11")
        a(f"s_lshl_b32 s79, s{sW}, 8\ns_add_u32 s78, s78, s79\ns_add_u32 s46, s78, {WS_OP}")
        a(f"s_lshl_b32 s77, s76, 1\ns_lshr_b32 s78, s{sW}, 2\ns_add_u32 s77, s77, s78\ns_lshl_b32 s77, s77, 2")
        a(f"s_add_u32 s77, s77, s{sS}\ns_lshl_b32 s77, s77, 4\ns_add_u32 s45, s77, {WS_ST}")
        self.lds_wait(C_S, 8, 164, 165, sleep=2)
        SW, OW = 40, 8
        for i in range(4):
            a(f"ds_read_b128 v[{SW+4*i}:{SW+4*i+3}], v4 offset:{16*i}")
        a(f"s_lshl_b32 s76, s{sKVH}, 3\ns_add_u32 s76, s76, s{sW}")
        a(f"s_and_b32 s78, s{sJJ}, 3")
        a(f"s_lshl_b32 s77, s76, 13\ns_lshl_b32 s79, s78, 9\ns_add_u32 s77, s77, s79\ns_add_u32 s40, s77, {WS_OP}\ns_add_u32 s41, s40, 4096")
        a(f"s_lshl_b32 s77, s76, 1\ns_lshr_b32 s79, s78, 1\ns_add_u32 s77, s77, s79\ns_lshl_b32 s77, s77, 6\ns_add_u32 s44, s77, {WS_ST}")
        a("v_lshrrev_b32 v34, 5, v0\nv_lshlrev_b32 v34, 11, v34\nv_and_b32 v35, 31, v0\nv_lshl_add_u32 v34, v35, 4, v34")
        a(f"s_mul_i32 s77, s{sW}, 272\ns_add_u32 s77, s77, {L_A}\nv_lshlrev_b32 v35, 3, v35\nv_add_u32 v35, s77, v35")
        a("s_waitcnt lgkmcnt(0)")
        ms_ = [SW + 2 * w for w in range(8)]
        a(f"v_max3_f32 v5, v{ms_[0]}, v{ms_[1]}, v{ms_[2]}")
        a(f"v_max3_f32 v30, v{ms_[3]}, v{ms_[4]}, v{ms_[5]}")
        a(f"v_max3_f32 v5, v5, v{ms_[6]}, v{ms_[7]}")
        a(f"v_max_f32 v5, v5, v30")
        a(f"v_and_b32 v5, s{sFF00}, v5")
        for w in range(8):
            a(f"v_sub_f32 v{ms_[w]}, v{ms_[w]}, v5")
        for w in range(8):
            a(f"v_exp_f32 v{ms_[w]}, v{ms_[w]}")
        a(f"ds_write_b128 v{vOw}, v[{ACC}:{ACC+3}]")
        a(f"ds_write_b128 v{vOw}, v[{ACC+4}:{ACC+7}] offset:512")
        Ls = a.label("nost")
        a(f"s_and_b32 s78, s{sW}, 3\ns_cmp_lg_u32 s78, 0\ns_cbranch_scc1 {Ls}")
        a(f"v_mul_f32 v7, v{ms_[0]}, v{ms_[0]+1}")
        for w in range(1, 8):
            a(f"v_fmac_f32 v7, v{ms_[w]}, v{ms_[w]+1}")
        a(f"v_or_b32 v36, v5, v33\nv_and_or_b32 v37, v7, s{sFF00}, v33\nv_mov_b32 v38, v33\nv_mov_b32 v39, v33\nv_mov_b32 v31, 0")
        a(f"{Ls}:")
        a("s_waitcnt lgkmcnt(0)")
        a("s_barrier")
        self.stamp(5)
        if 'tail' in o.skip:
            a("s_barrier\ns_branch L_fin")
        for i in range(4):
            a(f"ds_read2st64_b32 v[{OW+2*i}:{OW+2*i+1}], v3 offset0:{16*i} offset1:{16*i+8}")
        a("s_waitcnt lgkmcnt(2)")
        a(f"v_mul_f32 v6, v{ms_[0]}, v{OW}\nv_mul_f32 v7, v{ms_[1]}, v{OW+1}")
        a(f"v_fmac_f32 v6, v{ms_[2]}, v{OW+2}\nv_fmac_f32 v7, v{ms_[3]}, v{OW+3}")
        a("s_waitcnt lgkmcnt(0)")
        a(f"v_fmac_f32 v6, v{ms_[4]}, v{OW+4}\nv_fmac_f32 v7, v{ms_[5]}, v{OW+5}")
        a(f"v_fmac_f32 v6, v{ms_[6]}, v{OW+6}\nv_fmac_f32 v7, v{ms_[7]}, v{OW+7}")
        a("v_add_f32 v6, v6, v7")
        a(f"v_and_or_b32 v6, v6, s{sFF00}, v33")
        a(f"buffer_store_dword v6, v32, {SRD_WS}, s46 offen sc1")
        Ls2 = a.label("nost2")
        a(f"s_and_b32 s78, s{sW}, 3\ns_cmp_lg_u32 s78, 0\ns_cbranch_scc1 {Ls2}")
        self.setexec(1, 0)
        a(f"buffer_store_dwordx4 v[36:39], v31, {SRD_WS}, s45 offen sc1")
        a("s_mov_b64 exec, -1")
        a(f"{Ls2}:")
        self.stamp(6)
        Lng = a.label("nogather")
        a(f"s_cmp_eq_u32 s{sJJ}, 255\ns_cbranch_scc1 {Lng}")
        G = G3 = 56
        def loads():
            a(f"buffer_load_dwordx4 v[{G}:{G+3}], v34, {SRD_WS}, s40 offen sc1")
            a(f"buffer_load_dwordx4 v[{G+4}:{G+7}], v34, {SRD_WS}, s41 offen sc1")
        self.spoll(44, [(16, 52, 0)], [52 + i for i in range(16)], o.asleep, name='a')
        loads()
        for i in range(4):
            a(f"s_and_b32 s{52+4*i}, s{52+4*i}, s{sFF00}\ns_and_b32 s{53+4*i}, s{53+4*i}, s{sFF00}")
        a("v_mov_b32 v8, s52\nv_mov_b32 v9, s56\nv_mov_b32 v10, s60\nv_mov_b32 v11, s64")
        a("v_max3_f32 v5, v8, v9, v10\nv_max_f32 v5, v5, v11")
        for i in range(4):
            a(f"v_sub_f32 v{8+i}, v{8+i}, v5")
        for i in range(4):
            a(f"v_exp_f32 v{8+i}, v{8+i}")
        a("v_mul_f32 v6, s53, v8\nv_fmac_f32 v6, s57, v9\nv_fmac_f32 v6, s61, v10\nv_fmac_f32 v6, s65, v11")
        a("v_rcp_f32 v6, v6")
        a("v_cndmask_b32 v8, v8, v9, s[70:71]\nv_cndmask_b32 v9, v10, v11, s[70:71]")
        a("v_mul_f32 v8, v8, v6\nv_mul_f32 v9, v9, v6")
        self.vpoll(loads, [G, G + 4], 5, 6, 7, 1, name='a', issued=True)
        self.unmask(G, 8)
        self.stamp(7)
        for k in range(4):
            a(f"v_mul_f32 v{12+k}, v8, v{G3+k}")
        for k in range(4):
            a(f"v_fmac_f32 v{12+k}, v9, v{G3+4+k}")
        for k in range(4):
            a(f"v_mov_b32 v{16+k}, v{12+k}")
        for k in range(4):
            a(f"v_permlane32_swap_b32 v{12+k}, v{16+k}")
        for k in range(4):
            a(f"v_add_f32 v{12+k}, v{12+k}, v{16+k}")
        a("v_cvt_pk_bf16_f32 v12, v12, v13\nv_cvt_pk_bf16_f32 v13, v14, v15")
        self.setexec(0xffffffff, 0)
        a("ds_write_b64 v35, v[12:13]")
        a("s_mov_b64 exec, -1")
        a("s_waitcnt lgkmcnt(0)")
        a(f"{Lng}:")
        a("s_barrier")
        self.stamp(8)
        a(f"s_cmp_lg_u32 s{sW}, 0\ns_cbranch_scc1 L_fin")
        a(f"s_cmp_eq_u32 s{sJJ}, 255\ns_cbranch_scc1 L_fin")
        a(f"s_mul_i32 s76, s{sKVH}, 28\ns_add_u32 s76, s76, s{sJJ}")
        a(f"s_lshl_b32 s77, s76, 11\ns_add_u32 s40, s77, {WS_BP}\ns_add_u32 s41, s40, 1024")
        a(f"s_lshl_b32 s77, s76, 9\ns_add_u32 s44, s77, {WS_MP}")
        a("v_lshlrev_b32 v3, 4, v0")
        a("v_and_b32 v2, 31, v0\nv_lshlrev_b32 v2, 4, v2")
        a(f"v_and_b32 v4, 3, v0\nv_lshlrev_b32 v4, 4, v4\nv_add_u32 v4, {L_FIN}, v4")
        a(f"v_mov_b32 v9, {L_FIN+64}")
        a("ds_read_b128 v[24:27], v4")
        a("ds_read_b64 v[14:15], v9")
        srd(a, 60, sOUT, 8 * 448 * 2)
        a(f"s_mul_i32 s46, s{sKVH}, 896\ns_lshl_b32 s78, s{sJJ}, 5\ns_add_u32 s46, s46, s78")
        def reduce_q(vals, tmp):
            for ror in (8, 4):
                for e in vals:
                    a(f"v_add_f32_dpp v{e}, v{e}, v{e} row_ror:{ror} {DPP}")
            for which in (16, 32):
                for e, t in zip(vals, tmp):
                    a(f"v_mov_b32 v{t}, v{e}")
                for e, t in zip(vals, tmp):
                    a(f"v_permlane{which}_swap_b32 v{e}, v{t}")
                for e, t in zip(vals, tmp):
                    a(f"v_add_f32 v{e}, v{e}, v{t}")
        G, G2, G3 = 40, 64, 96
        MV = 28
        def lm():
            a(f"buffer_load_dwordx4 v[{MV}:{MV+3}], v2, {SRD_WS}, s44 offen sc1")
        def loads2(g):
            a(f"buffer_load_dwordx4 v[{g}:{g+3}], v3, {SRD_WS}, s40 offen sc1")
            a(f"buffer_load_dwordx4 v[{g+4}:{g+7}], v3, {SRD_WS}, s41 offen sc1")
        self.vpoll(lm, [MV], 5, 6, 7, 1, name='m')
        loads2(G)
        self.unmask(MV, 4)
        for k in range(4):
            a(f"v_cndmask_b32 v{MV+k}, v{MV+k}, 0, s[70:71]")
        reduce_q([MV + k for k in range(4)], [112 + k for k in range(4)])
        a("s_waitcnt lgkmcnt(0)")
        for h2 in range(2):
            M0, M1 = MV + 2 * h2, MV + 2 * h2 + 1
            a(f"v_cvt_pk_bf16_f32 v16, v{M0}, v{M1}")
            a(f"v_lshlrev_b32 v{M0}, 16, v16\nv_and_b32 v{M1}, 0xffff0000, v16")
            a(f"v_add_f32 v{M0}, v{M0}, v{24+2*h2}\nv_add_f32 v{M1}, v{M1}, v{25+2*h2}")
            a(f"v_cvt_pk_bf16_f32 v16, v{M0}, v{M1}")
            a(f"v_lshlrev_b32 v{M0}, 16, v16\nv_and_b32 v{M1}, 0xffff0000, v16")
            a(f"v_mul_f32 v{M0}, v{M0}, v15\nv_mul_f32 v{M1}, v{M1}, v15")
            a(f"v_cvt_pk_bf16_f32 v16, v{M0}, v{M1}")
            a(f"v_lshlrev_b32 v{M0}, 16, v16\nv_and_b32 v{M1}, 0xffff0000, v16")
        Lp = a.label("fp"); La = a.label("fpa"); Lb = a.label("fpb"); Lo = a.label("fpo")
        a("s_mov_b32 s81, 0")
        a(f"{Lp}:")
        loads2(G2)
        a("s_waitcnt vmcnt(2)")
        self.check4w(G, 5, 6, 7, True); self.check4w(G + 4, 5, 6, 7, False)
        a(f"v_cmp_ne_u32 vcc, 0, v5\ns_cbranch_vccz {La}")
        loads2(G)
        a("s_waitcnt vmcnt(2)")
        self.check4w(G2, 5, 6, 7, True); self.check4w(G2 + 4, 5, 6, 7, False)
        a(f"v_cmp_ne_u32 vcc, 0, v5\ns_cbranch_vccz {Lb}")
        a(f"s_add_u32 s81, s81, 1\ns_cmp_lt_u32 s81, {SPIN_LIMIT}\ns_cbranch_scc1 {Lp}")
        a(f"{Lb}:")
        self.unmask(G2, 8, G3)
        a(f"s_branch {Lo}")
        a(f"{La}:")
        self.unmask(G, 8, G3)
        a(f"{Lo}:")
        self.stamp(9)
        G = G3
        for k in range(4):
            a(f"v_add_f32 v{G+k}, v{G+k}, v{G+4+k}")
        reduce_q([G + k for k in range(4)], [112 + k for k in range(4)])
        for h2 in range(2):
            A0, A1 = G + 2 * h2, G + 2 * h2 + 1
            a(f"v_cvt_pk_bf16_f32 v16, v{A0}, v{A1}")
            a(f"v_lshlrev_b32 v{A0}, 16, v16\nv_and_b32 v{A1}, 0xffff0000, v16")
            a(f"v_mul_f32 v{A0}, v{A0}, v14\nv_mul_f32 v{A1}, v{A1}, v14")
            a(f"v_cvt_pk_bf16_f32 v16, v{A0}, v{A1}")
            a(f"v_lshlrev_b32 v{A0}, 16, v16\nv_and_b32 v{A1}, 0xffff0000, v16")
            a(f"v_add_f32 v{A0}, v{A0}, v{MV+2*h2}\nv_add_f32 v{A1}, v{A1}, v{MV+2*h2+1}")
            a(f"v_cvt_pk_bf16_f32 v{8+h2}, v{A0}, v{A1}")
        a("v_lshlrev_b32 v3, 3, v0")
        self.setexec(0xf, 0)
        a("buffer_store_dwordx2 v[8:9], v3, s[60:63], s46 offen")
        a("s_cmp_lg_u32 s2, 32\ns_cbranch_scc1 L_fin")
        a(f"v_mov_b32 v8, s{sT}\nv_mov_b32 v3, 0")
        self.setexec(1, 0)
        a(f"buffer_store_dword v8, v3, {SRD_WS}, 0 offen sc1")
        a("s_branch L_fin")

    def publish_f32(self, d, s_base, s_stride, tmp, pol="sc1"):
        a = self.a
        va, vb, quad = tmp, tmp + 1, tmp + 2
        assert quad % 2 == 0
        a(f"s_lshl_b32 s80, s{sW}, 9\ns_add_u32 s80, s80, {L_SH}")
        a(f"v_lshrrev_b32 v{va}, 4, v0\nv_lshlrev_b32 v{va}, 8, v{va}\nv_and_b32 v{vb}, 15, v0\nv_lshl_add_u32 v{va}, v{vb}, 2, v{va}\nv_add_u32 v{va}, s80, v{va}")
        self.setexec(0xffffffff, 0)
        for r in range(4):
            a(f"ds_write_b32 v{va}, v{d+r} offset:{64*r}")
        a(f"v_lshlrev_b32 v{vb}, 4, v0\nv_add_u32 v{vb}, s80, v{vb}")
        a(f"ds_read_b128 v[{quad}:{quad+3}], v{vb}")
        a(f"v_lshrrev_b32 v{va}, 2, v0\nv_mul_lo_u32 v{va}, v{va}, s{s_stride}\nv_and_b32 v{vb}, 3, v0\nv_lshl_add_u32 v{va}, v{vb}, 4, v{va}")
        a(f"v_mov_b32 v{vb}, s{sT8}")
        a("s_waitcnt lgkmcnt(0)")
        for k in range(4):
            a(f"v_and_or_b32 v{quad+k}, v{quad+k}, s{sFF00}, v{vb}")
        if 'nopub' not in self.o.skip:
            a(f"buffer_store_dwordx4 v[{quad}:{quad+3}], v{va}, {SRD_WS}, s{s_base} offen {pol}")
        a("s_mov_b64 exec, -1")

    def tile_params_lane(self):
        a = self.a
        a("v_lshrrev_b32 v1, 3, v0\nv_bfe_u32 v3, v0, 4, 1\nv_lshlrev_b32 v3, 1, v3\nv_and_b32 v2, 7, v0\nv_xor_b32 v2, v2, v3\nv_lshlrev_b32 v2, 4, v2")
        a("v_mul_lo_u32 v1, v1, s41")
        a("v_xor_b32 v2, s75, v2\nv_xor_b32 v6, 64, v2\nv_add_u32 v6, v1, v6\nv_add_u32 v1, v1, v2")

    def tile_mfma(self, nchunk):
        a = self.a
        BF, AF = 8, 40
        self.tr_addr(L_TILE)
        a(f"v_and_b32 v2, 7, v0\nv_mul_u32_u24 v2, {XP}, v2\nv_lshrrev_b32 v3, 4, v0\nv_lshl_add_u32 v2, v3, 4, v2\nv_add_u32 v2, s42, v2")
        def rd(m):
            b = BF + 4 * (m % 7); af = AF + 4 * (m % 7)
            a(f"ds_read_b64_tr_b16 v[{b}:{b+1}], v1 offset:{4096*m}")
            a(f"ds_read_b64_tr_b16 v[{b+2}:{b+3}], v1 offset:{4096*m+512}")
            a(f"ds_read_b128 v[{af}:{af+3}], v2 offset:{64*m}")
        def mm(m):
            b = BF + 4 * (m % 7); af = AF + 4 * (m % 7)
            a(f"v_mfma_f32_16x16x32_bf16 v[4:7], v[{af}:{af+3}], v[{b}:{b+3}], {'0' if m == 0 else 'v[4:7]'}")
        for m in range(4):
            rd(m)
        for m in range(nchunk):
            if m + 4 < nchunk:
                a("s_waitcnt lgkmcnt(9)"); mm(m); rd(m + 4)
            else:
                a(f"s_waitcnt lgkmcnt({3*(nchunk-1-m)})"); mm(m)

    def helper(self):
        a = self.a; o = self.o
        a("L_helper:")
        a.c("================= helper wave =================")
        a("s_setprio 3")
        a(f"s_sub_u32 s{sW}, s3, 8")
        if not o.earlybar:
            a(f"v_mov_b32 v1, {L_CNT}\nv_mov_b32 v2, 0\nv_mov_b32 v3, 0\nv_mov_b32 v4, 0\nv_mov_b32 v5, 0")
            a(f"s_cmp_lg_u32 s{sW}, 0\ns_cbranch_scc1 L_h_noinit")
            self.setexec(1, 0)
            a("ds_write_b128 v1, v[2:5]\nds_write_b128 v1, v[2:5] offset:16")
            a("s_mov_b64 exec, -1")
            a("L_h_noinit:")
        cq, c1, c2 = o.cntq, o.cnt1, o.cnt2
        assert sum(cq) == 128 and sum(c1) == 56 and sum(c2) == 56
        for x in range(8):
            assert cq[x] + c1[x] + c2[x] <= 32
        pref = lambda c: [sum(c[:i]) for i in range(8)]
        def table(vals, dst):
            lo, hi = pack8(vals)
            a(f"s_mov_b32 s76, {hex(lo)}\ns_mov_b32 s77, {hex(hi)}")
            a(f"s_lshr_b64 s[76:77], s[76:77], s78\ns_and_b32 s{dst}, s76, 0xff")
        a(f"s_lshl_b32 s78, s{sKVH}, 3")
        table(cq, 40); table([cq[x] + c1[x] for x in range(8)], 41); table([cq[x] + c1[x] + c2[x] for x in range(8)], 42)
        table(pref(cq), 43)
        table([(pref(c1)[x] - cq[x]) & 0xff for x in range(8)], 44)
        table([(pref(c2)[x] - cq[x] - c1[x]) & 0xff for x in range(8)], 46)
        if 'helpers' in o.skip:
            self.after_karg()
            srd(a, 48, sWS, WS_SIZE)
            a("s_branch L_h_tail" if o.earlybar else "s_barrier\ns_branch L_h_tail")
        a(f"s_cmp_lt_u32 s{sJ}, s40\ns_cbranch_scc1 L_h_q")
        a(f"s_cmp_lt_u32 s{sJ}, s41\ns_cbranch_scc1 L_h_m1")
        a(f"s_cmp_lt_u32 s{sJ}, s42\ns_cselect_b32 s45, 2, 3")
        a(f"s_add_u32 s47, s46, s{sJ}\ns_and_b32 s47, s47, 0xff")
        self.after_karg()
        srd(a, 48, sWS, WS_SIZE)
        if o.touch: self.touch_pages()
        if not o.earlybar:
            a("s_barrier")
        self.tag_setup()
        self.xid_publish()
        a("s_branch L_h_qgather")
        a("L_h_q:")
        a(f"s_add_u32 s47, s43, s{sJ}\ns_and_b32 s47, s47, 0xff")
        a("s_and_b32 s79, s47, 1\ns_lshr_b32 s76, s47, 1")
        a(f"s_mul_i32 s40, s79, {224*8192}\ns_lshl_b32 s77, s76, 7\ns_add_u32 s40, s40, s77")
        a("s_mov_b32 s41, 8192")
        a(f"s_mov_b32 s42, {L_X}")
        a(f"s_lshr_b32 s43, s76, 3\ns_lshl_b32 s43, s43, 15\ns_and_b32 s77, s76, 7\ns_lshl_b32 s77, s77, 8\ns_add_u32 s43, s43, s77\ns_lshl_b32 s77, s79, 11\ns_add_u32 s43, s43, s77\ns_add_u32 s43, s43, {WS_QP}")
        a("s_mov_b32 s44, 4096\ns_mov_b32 s45, 0")
        self.after_karg()
        srd(a, 52, sWQ, 448 * 8192)
        a("s_branch L_h_tile")
        a("L_h_m1:")
        a(f"s_add_u32 s47, s44, s{sJ}\ns_and_b32 s47, s47, 0xff")
        a("s_and_b32 s79, s47, 1\ns_lshr_b32 s76, s47, 1")
        a(f"s_mul_i32 s40, s79, {224*3584}\ns_lshl_b32 s77, s76, 7\ns_add_u32 s40, s40, s77")
        a("s_mov_b32 s41, 3584")
        a(f"s_mul_i32 s42, s79, 448\ns_add_u32 s42, s42, {L_Y}")
        a(f"s_mul_i32 s43, s79, {8*7168}\ns_lshl_b32 s77, s76, 8\ns_add_u32 s43, s43, s77\ns_add_u32 s43, s43, {WS_HP}")
        a("s_mov_b32 s44, 7168\ns_mov_b32 s45, 1")
        self.after_karg()
        srd(a, 52, sW1, 448 * 3584)
        a("L_h_tile:")
        a(f"s_and_b32 s75, s{sW}, 1\ns_lshl_b32 s75, s75, 6")
        self.tile_params_lane()
        a(f"s_mul_i32 s75, s{sW}, 56")
        a("s_lshl_b32 s76, s75, 7")
        a("s_mul_i32 s75, s75, s41\ns_add_u32 s75, s75, s40")
        a("s_lshl_b32 s77, s41, 3")
        def tl(i):
            a(f"s_add_u32 m0, s76, {L_TILE + 1024*i}")
            a(f"buffer_load_dwordx4 v{1 if i % 2 == 0 else 6}, s[52:55], s75 offen {o.tpol} lds")
            a("s_add_u32 s75, s75, s77")
        srd(a, 56, sX, 7168)
        a("v_lshlrev_b32 v3, 4, v0")
        a(f"s_lshl_b32 s78, s{sW}, 1\ns_mul_i32 s80, s78, {XP}\ns_mul_i32 s78, s78, 896")
        a("s_cmp_eq_u32 s45, 0\ns_cbranch_scc0 L_h_xfull")
        a("s_mul_i32 s79, s79, 448\ns_add_u32 s78, s78, s79")
        self.setexec(0x0fffffff, 0)
        a("s_branch L_h_xgo")
        a("L_h_xfull:")
        self.setexec(0xffffffff, 0x00ffffff)
        a("L_h_xgo:")
        a(f"s_add_u32 m0, s80, {L_X}")
        a("buffer_load_dwordx4 v3, s[56:59], s78 offen lds")
        a(f"s_add_u32 s78, s78, 896\ns_add_u32 m0, s80, {L_X + XP}")
        a("buffer_load_dwordx4 v3, s[56:59], s78 offen lds")
        a("s_mov_b64 exec, -1")
        for i in range(min(o.hpre, 7)):
            tl(i)
        srd(a, 48, sWS, WS_SIZE)
        if not o.earlybar:
            a("s_barrier")
        for i in range(min(o.hpre, 7), 7):
            tl(i)
        self.stamp(1)
        self.tag_setup()
        a("s_waitcnt vmcnt(0)")
        self.lds_signal(C_A0, 3, 4)
        if o.touch: self.touch_pages()
        self.lds_wait(C_A0, 4, 3, 4)
        a("s_cmp_eq_u32 s45, 0\ns_cbranch_scc1 L_h_mm")
        self.layernorm()
        a("s_waitcnt lgkmcnt(0)")
        self.lds_signal(C_A1, 3, 4)
        self.lds_wait(C_A1, 4, 3, 4)
        a("L_h_mm:")
        self.stamp(2)
        self.tile_mfma(7)
        a(f"s_lshl_b32 s75, s{sW}, 6\ns_add_u32 s43, s43, s75")
        a("s_nop 7")
        self.stamp(10)
        self.publish_f32(4, 43, 44, 70)
        self.stamp(3)
        self.xid_publish()
        a("L_h_qgather:")
        self.q_issue()
        a("s_cmp_eq_u32 s45, 2\ns_cbranch_scc1 L_h_qh")
        self.q_finish("vmcnt(0)")
        self.stamp(4)
        a("s_branch L_h_noh")
        a("L_h_qh:")
        self.h_issue()
        self.q_finish("vmcnt(5)")
        self.stamp(4)
        self.h_finish()
        a("s_waitcnt lgkmcnt(0)")
        a("L_h_noh:")
        self.stamp(8)
        WB = 100
        a(f"s_cmp_eq_u32 s{sJJ}, 255\ns_cbranch_scc1 L_h_noprep")
        a(f"s_cmp_lg_u32 s{sW}, 3\ns_cbranch_scc1 L_h_noprep")
        self.finalprep()
        a("L_h_noprep:")
        a(f"s_setprio {o.woprio}")
        a("s_cmp_eq_u32 s45, 2\ns_cbranch_scc0 L_h_now2")
        srd(a, 52, sW2, 1792 * 896)
        a("s_and_b32 s76, s47, 7\ns_lshr_b32 s77, s47, 3")
        a(f"s_mul_i32 s40, s76, {224*896}\ns_lshl_b32 s78, s77, 7\ns_add_u32 s40, s40, s78")
        a(f"s_mov_b32 s41, 896\ns_mov_b32 s42, {L_Y}")
        a(f"s_lshl_b32 s43, s77, 11\ns_lshl_b32 s78, s76, 6\ns_add_u32 s43, s43, s78\ns_lshl_b32 s78, s{sW}, 9\ns_add_u32 s43, s43, s78\ns_add_u32 s46, s43, {WS_MP}")
        a(f"s_and_b32 s75, s{sW}, 1\ns_lshl_b32 s75, s75, 6")
        self.tile_params_lane()
        a(f"s_mul_i32 s75, s{sW}, 56\ns_lshl_b32 s76, s75, 7\ns_mul_i32 s75, s75, 896\ns_add_u32 s75, s75, s40")
        for i in range(7):
            a(f"s_add_u32 m0, s76, {L_TILE + 1024*i}")
            a(f"buffer_load_dwordx4 v{1 if i % 2 == 0 else 6}, s[52:55], s75 offen {o.tpol} lds")
            if i < 6:
                a(f"s_add_u32 s75, s75, {8*896}")
        a("L_h_now2:")
        a(f"s_cmp_eq_u32 s{sJJ}, 255\ns_cbranch_scc1 L_h_nowo")
        srd(a, 60, sWO, 4096 * 896)
        a("s_mov_b32 s41, 896\ns_mov_b32 s75, 0")
        self.tile_params_lane()
        a(f"s_and_b32 s75, s{sJJ}, 3\ns_lshl_b32 s75, s75, 7\ns_lshl_b32 s76, s{sKVH}, 9\ns_add_u32 s75, s75, s76")
        a(f"s_lshl_b32 s76, s{sW}, 5\ns_add_u32 s75, s75, s76\ns_mul_i32 s75, s75, 896")
        a(f"s_lshr_b32 s76, s{sJJ}, 2\ns_lshl_b32 s76, s76, 7\ns_add_u32 s75, s75, s76")
        a(f"s_lshl_b32 s76, s{sW}, 12")
        for i in range(4):
            if 'nowo' in o.skip: break
            a(f"s_add_u32 m0, s76, {L_WO + 1024*i}")
            a(f"buffer_load_dwordx4 v{1 if i % 2 == 0 else 6}, s[60:63], s75 offen {o.tpol} lds")
            if i < 3:
                a(f"s_add_u32 s75, s75, {8*896}")
        a("L_h_nowo:")
        a("s_setprio 3")
        self.stamp(5)
        a("s_barrier")
        if 'tail' in o.skip:
            a("s_barrier\ns_branch L_fin")
        a("s_waitcnt vmcnt(0)")
        self.lds_signal(C_WO, 3, 4)
        self.lds_wait(C_WO, 4, 3, 4)
        self.stamp(9)
        a("s_cmp_eq_u32 s45, 2\ns_cbranch_scc0 L_h_nom2")
        self.tile_mfma(7)
        a(f"s_mov_b32 s44, {28*512}")
        a("s_nop 7")
        self.publish_f32(4, 46, 44, 70)
        a("L_h_nom2:")
        a(f"s_cmp_eq_u32 s{sJJ}, 255\ns_cbranch_scc1 L_h_tail1")
        self.tr_addr(L_WO)
        for m in range(4):
            a(f"ds_read_b64_tr_b16 v[{WB+4*m}:{WB+4*m+1}], v1 offset:{4096*m}")
            a(f"ds_read_b64_tr_b16 v[{WB+4*m+2}:{WB+4*m+3}], v1 offset:{4096*m+512}")
        a(f"s_lshr_b32 s75, s{sJJ}, 2\ns_lshl_b32 s75, s75, 2\ns_add_u32 s75, s75, s{sW}\ns_lshl_b32 s43, s75, 11")
        a(f"s_lshl_b32 s75, s{sKVH}, 2\ns_and_b32 s76, s{sJJ}, 3\ns_add_u32 s75, s75, s76\ns_lshl_b32 s75, s75, 6")
        a(f"s_add_u32 s43, s43, s75\ns_add_u32 s43, s43, {WS_BP}\ns_mov_b32 s44, {28*2048}")
        a(f"v_and_b32 v2, 7, v0\nv_mul_u32_u24 v2, 272, v2\nv_lshrrev_b32 v3, 4, v0\nv_lshl_add_u32 v2, v3, 4, v2\nv_add_u32 v2, {L_A}, v2")
        a("v_lshrrev_b32 v70, 4, v0\nv_lshlrev_b32 v70, 2, v70\nv_mul_lo_u32 v70, v70, s44\nv_and_b32 v71, 15, v0\nv_lshl_add_u32 v70, v71, 2, v70")
        a(f"v_mov_b32 v71, s{sT8}")
        for r in range(4):
            a(f"s_mul_i32 s{76+r}, s44, {r}\ns_add_u32 s{76+r}, s{76+r}, s43")
        a("s_waitcnt lgkmcnt(0)")
        self.stamp(6)
        a("s_barrier")
        for m in range(4):
            a(f"ds_read_b128 v[{40+4*m}:{40+4*m+3}], v2 offset:{64*m}")
        for m in range(4):
            a(f"s_waitcnt lgkmcnt({3-m})")
            a(f"v_mfma_f32_16x16x32_bf16 v[4:7], v[{40+4*m}:{40+4*m+3}], v[{WB+4*m}:{WB+4*m+3}], {'0' if m == 0 else 'v[4:7]'}")
        self.setexec(0xffffffff, 0)
        for r in range(4):
            a(f"v_and_or_b32 v{72+r}, v{4+r}, s{sFF00}, v71")
        for r in range(4):
            a(f"buffer_store_dword v{72+r}, v70, {SRD_WS}, s{76+r} offen sc1")
        self.stamp(7)
        a("s_branch L_fin")
        a("L_h_tail:")
        self.stamp(5)
        a("s_barrier")
        a("L_h_tail1:")
        a("s_barrier")
        a("s_branch L_fin")

    def touch_pages(self):
        a = self.a
        L = a.label("notouch")
        a(f"s_cmp_lg_u32 s{sW}, 3\ns_cbranch_scc1 {L}")
        a("v_mov_b32 v3, 0")
        self.setexec(1, 0)
        if not self.o.vfirst:
            srd(a, 56, sV, 0x8000000)
            a(f"s_lshl_b32 s75, s{sB}, 3\ns_add_u32 s75, s75, s{sKVH}\ns_lshl_b32 s75, s75, 21\ns_lshl_b32 s76, s{sS}, 17\ns_add_u32 s75, s75, s76\ns_add_u32 s75, s75, 0x180000")
            a("buffer_load_dword v40, v3, s[56:59], s75 offen nt")
        srd(a, 56, sWO, 4096 * 896)
        a(f"s_mul_i32 s75, s{sKVH}, {512*896}")
        a("buffer_load_dword v41, v3, s[56:59], s75 offen nt")
        a(f"s_add_u32 s75, s75, {511*896}")
        a("buffer_load_dword v42, v3, s[56:59], s75 offen nt")
        srd(a, 56, sW2, 1792 * 896)
        a("buffer_load_dword v43, v3, s[56:59], 0 offen nt")
        srd(a, 56, sOUT, 8 * 448 * 2)
        a("buffer_load_dword v44, v3, s[56:59], 0 offen")
        a("s_mov_b64 exec, -1")
        a(f"{L}:")

    def xid_publish(self):
        a = self.a
        if 'noxid' in self.o.skip:
            return
        L = a.label("noxid")
        a(f"s_cmp_lg_u32 s{sW}, 0\ns_cbranch_scc1 {L}")
        a("s_getreg_b32 s75, hwreg(HW_REG_XCC_ID, 0, 4)")
        a("s_and_b32 s75, s75, 7\ns_mul_i32 s75, s75, 6\ns_mov_b32 s76, 1\ns_mov_b32 s77, 0\ns_lshl_b64 s[76:77], s[76:77], s75")
        srd(a, 60, sDBG, 256)
        a(f"v_mov_b32 v8, s76\nv_mov_b32 v9, s77\ns_lshl_b32 s75, s{sKVH}, 5\nv_mov_b32 v3, s75")
        self.setexec(1, 0)
        a("buffer_atomic_add_x2 v[8:9], v3, s[60:63], 0 offen")
        a("s_mov_b64 exec, -1")
        a(f"{L}:")

    def xid_check(self):
        a = self.a
        L = a.label("noxc")
        a(f"s_cmp_lg_u32 s{sW}, 1\ns_cbranch_scc1 {L}")
        a(f"s_lshl_b32 s75, s{sKVH}, 5\ns_add_u32 s78, s{sDBG}, s75\ns_addc_u32 s79, s{sDBG+1}, 0")
        if 'noxid' in self.o.skip:
            a("s_mov_b32 s76, 0\ns_mov_b32 s77, 0")
        else:
            a("s_load_dwordx2 s[76:77], s[78:79], 0 glc")
        a("s_getreg_b32 s75, hwreg(HW_REG_XCC_ID, 0, 4)")
        a("s_and_b32 s75, s75, 7\ns_mul_i32 s75, s75, 6\ns_waitcnt lgkmcnt(0)\ns_lshr_b64 s[76:77], s[76:77], s75\ns_and_b32 s76, s76, 63")
        a("s_cmp_eq_u32 s76, 32\ns_cselect_b32 s75, 1, 0")
        if 'nofast' in self.o.skip:
            a("s_mov_b32 s75, 0")
        a(f"v_mov_b32 v2, {L_FIN+72}\nv_mov_b32 v3, s75")
        self.setexec(1, 0)
        a("ds_write_b32 v2, v3")
        a("s_mov_b64 exec, -1")
        a(f"{L}:")

    def tr_addr(self, lbase):
        a = self.a
        a("v_lshrrev_b32 v1, 4, v0\nv_lshlrev_b32 v1, 3, v1\nv_bfe_u32 v2, v0, 2, 2\nv_add_u32 v1, v1, v2\nv_lshlrev_b32 v1, 7, v1")
        a("v_bfe_u32 v2, v0, 3, 2")
        a(f"v_xor_b32 v2, s{sW}, v2\nv_lshl_add_u32 v1, v2, 5, v1")
        a(f"v_and_b32 v2, 3, v0\nv_lshl_add_u32 v1, v2, 3, v1\nv_add_u32 v1, {lbase}, v1")

    def q_issue(self):
        a = self.a
        a(f"s_lshl_b32 s75, s{sKVH}, 3\ns_add_u32 s75, s75, s{sB}\ns_lshl_b32 s75, s75, 12\ns_lshl_b32 s76, s{sW}, 9\ns_add_u32 s75, s75, s76")
        a(f"s_add_u32 s43, s75, {WS_QP}")
        a("v_lshrrev_b32 v1, 5, v0\nv_lshlrev_b32 v1, 11, v1\nv_and_b32 v2, 31, v0\nv_lshl_add_u32 v1, v2, 4, v1")
        a("s_add_u32 s76, s43, 60")
        self.spoll(76, [(1, 52, 2048 + 7 * 64)], [52], self.o.ssleep1, name='q')
        self.spoll(76, [(1, 52 + i, (i & 7) * 64 + (i >> 3) * 2048) for i in range(16)], [52 + i for i in range(16)], self.o.ssleep, name='q')
        self.stamp(11)
        self.q_load()

    def q_load(self):
        if 'no_q' not in self.o.skip:
            self.a(f"buffer_load_dwordx4 v[8:11], v1, {SRD_WS}, s43 offen sc1")

    def q_finish(self, wait):
        a = self.a
        self.vpoll(self.q_load, [8], 5, 6, 7, self.o.qsleep, name='q', issued=True, wait=wait)
        self.unmask(8, 4)
        for k in range(4):
            a(f"v_mov_b32 v{12+k}, v{8+k}")
        for k in range(4):
            a(f"v_permlane32_swap_b32 v{8+k}, v{12+k}")
        for k in range(4):
            a(f"v_add_f32 v{8+k}, v{8+k}, v{12+k}")
        a("v_cvt_pk_bf16_f32 v8, v8, v9\nv_cvt_pk_bf16_f32 v9, v10, v11")
        a(f"s_lshl_b32 s75, s{sW}, 8\ns_add_u32 s75, s75, {L_Q}\nv_and_b32 v2, 31, v0\nv_lshlrev_b32 v2, 3, v2\nv_add_u32 v2, s75, v2")
        self.setexec(0xffffffff, 0)
        a("ds_write_b64 v2, v[8:9]")
        a("s_mov_b64 exec, -1")
        self.xid_check()
        a("s_waitcnt lgkmcnt(0)")
        self.lds_signal(C_Q, 3, 4)

    def layernorm(self):
        a = self.a
        X = 8; F = 16
        a(f"s_lshl_b32 s75, s{sW}, 1\ns_mul_i32 s75, s75, {XP}")
        a(f"v_lshrrev_b32 v1, 5, v0\nv_mul_u32_u24 v1, {XP}, v1\nv_and_b32 v2, 31, v0\nv_mul_u32_u24 v2, 28, v2\nv_add_u32 v1, v1, v2\nv_add_u32 v1, s75, v1")
        a(f"v_add_u32 v2, {L_X}, v1")
        for i in range(3):
            a(f"ds_read2_b32 v[{X+2*i}:{X+2*i+1}], v2 offset0:{2*i} offset1:{2*i+1}")
        a(f"ds_read_b32 v{X+6}, v2 offset:24")
        a("s_waitcnt lgkmcnt(0)")
        for i in range(7):
            a(f"v_lshlrev_b32 v{F+2*i}, 16, v{X+i}\nv_and_b32 v{F+2*i+1}, 0xffff0000, v{X+i}")
        a(f"v_add_f32 v3, v{F}, v{F+1}")
        for i in range(2, 14):
            a(f"v_add_f32 v3, v3, v{F+i}")
        self.row16_reduce("v_add_f32", 3)
        self.swap_reduce("v_add_f32", 3, 4, 16)
        a("v_mul_f32 v3, 0x3b124925, v3")
        a(f"v_sub_f32 v5, v{F}, v3\nv_mul_f32 v4, v5, v5")
        for i in range(1, 14):
            a(f"v_sub_f32 v5, v{F+i}, v3\nv_fmac_f32 v4, v5, v5")
        self.row16_reduce("v_add_f32", 4)
        self.swap_reduce("v_add_f32", 4, 5, 16)
        a("v_mul_f32 v4, 0x3b124925, v4")
        self.bf16_round(3, 3)
        self.bf16_round(4, 4)
        a("v_add_f32 v4, 0x3727c5ac, v4")
        self.bf16_round(4, 4)
        a("v_sqrt_f32 v4, v4")
        self.bf16_round(4, 4)
        a("v_rcp_f32 v4, v4")
        a(f"v_add_u32 v2, {L_Y}, v1")
        for i in range(7):
            a(f"v_sub_f32 v{F+2*i}, v{F+2*i}, v3\nv_sub_f32 v{F+2*i+1}, v{F+2*i+1}, v3")
            a(f"v_cvt_pk_bf16_f32 v5, v{F+2*i}, v{F+2*i+1}")
            a(f"v_lshlrev_b32 v6, 16, v5\nv_and_b32 v5, 0xffff0000, v5")
            a(f"v_mul_f32 v6, v6, v4\nv_mul_f32 v5, v5, v4")
            a(f"v_cvt_pk_bf16_f32 v{X+i}, v6, v5")
            a(f"ds_write_b32 v2, v{X+i} offset:{4*i}")

    def gelu(self, x, t0, t1):
        a = self.a
        a(f"v_mul_f32 v{t0}, v{x}, v{x}")
        a(f"v_mov_b32 v{t1}, 0xc0135761")
        a(f"v_fmac_f32 v{t1}, 0xbdd2d3e2, v{t0}")
        a(f"v_mul_f32 v{t1}, v{t1}, v{x}")
        a(f"v_exp_f32 v{t1}, v{t1}")
        a(f"v_add_f32 v{t1}, 1.0, v{t1}")
        a(f"v_rcp_f32 v{t1}, v{t1}")
        a(f"v_mul_f32 v{x}, v{x}, v{t1}")

    def h_loads(self):
        a = self.a
        for i in range(4):
            a(f"buffer_load_dwordx4 v[{16+4*i}:{16+4*i+3}], v60, {SRD_WS}, s{64+i} offen sc1")

    def h_issue(self):
        a = self.a
        a(f"s_lshl_b32 s75, s{sW}, 1\ns_mul_i32 s76, s75, 7168\ns_mul_i32 s77, s75, {XP}")
        a(f"s_and_b32 s78, s47, 7\ns_mul_i32 s79, s78, 896\ns_add_u32 s76, s76, s79\ns_add_u32 s40, s76, {WS_HP}")
        a(f"s_add_u32 s46, s77, {L_Y}\ns_mul_i32 s44, s78, 448")
        a("v_min_u32 v61, 55, v0\nv_lshlrev_b32 v60, 4, v61\nv_lshlrev_b32 v61, 3, v61\nv_add_u32 v62, s46, v61")
        a(f"s_add_u32 s75, s40, {7168 + 60}")
        self.spoll(75, [(1, 52, 8 * 7168 + 13 * 64)], [52], self.o.ssleep1, name='h')
        for kh in range(2):
            self.spoll(75, [(1, 52 + i, kh * 8 * 7168 + i * 64) for i in range(14)], [52 + i for i in range(14)], self.o.ssleep, name='h')
        a(f"s_mov_b32 s64, s40\ns_add_u32 s65, s40, {8*7168}\ns_add_u32 s66, s40, 7168\ns_add_u32 s67, s65, 7168")
        srd(a, 56, sB1, 3584)
        a("buffer_load_dwordx2 v[48:49], v61, s[56:59], s44 offen")
        if 'no_h' not in self.o.skip:
            self.h_loads()

    def h_finish(self):
        a = self.a
        self.vpoll(self.h_loads, [16, 20, 24, 28], 5, 6, 7, 8, name='h', issued=True)
        self.unmask(16, 16)
        a("v_lshlrev_b32 v50, 16, v48\nv_and_b32 v51, 0xffff0000, v48\nv_lshlrev_b32 v52, 16, v49\nv_and_b32 v53, 0xffff0000, v49")
        for bl in range(2):
            r = 16 + 8 * bl
            for k in range(4):
                a(f"v_add_f32 v{r+k}, v{r+k}, v{r+4+k}")
            for k2 in range(2):
                x0, x1 = r + 2 * k2, r + 2 * k2 + 1
                a(f"v_cvt_pk_bf16_f32 v{r+4}, v{x0}, v{x1}")
                a(f"v_lshlrev_b32 v{x0}, 16, v{r+4}\nv_and_b32 v{x1}, 0xffff0000, v{r+4}")
                a(f"v_add_f32 v{x0}, v{x0}, v{50+2*k2}\nv_add_f32 v{x1}, v{x1}, v{51+2*k2}")
                a(f"v_cvt_pk_bf16_f32 v{r+4}, v{x0}, v{x1}")
                a(f"v_lshlrev_b32 v{x0}, 16, v{r+4}\nv_and_b32 v{x1}, 0xffff0000, v{r+4}")
            for k in range(4):
                self.gelu(r + k, 36 + 2 * k, 37 + 2 * k)
            a(f"v_cvt_pk_bf16_f32 v{r}, v{r}, v{r+1}\nv_cvt_pk_bf16_f32 v{r+1}, v{r+2}, v{r+3}")
            a(f"ds_write_b64 v62, v[{r}:{r+1}] offset:{XP*bl}")

    def finalprep(self):
        a = self.a
        if 'notouch' not in self.o.skip:
            srd(a, 56, sOUT, 8 * 448 * 2)
            a("v_mov_b32 v3, 0")
            self.setexec(1, 0)
            a("buffer_load_dword v40, v3, s[56:59], 0 offen")
            a("s_mov_b64 exec, -1")
        srd(a, 56, sX, 7168)
        a(f"s_mul_i32 s75, s{sKVH}, 896")
        a("v_lshlrev_b32 v3, 4, v0")
        a("v_mov_b32 v8, 0\nv_mov_b32 v9, 0\nv_mov_b32 v10, 0\nv_mov_b32 v11, 0")
        self.setexec(0xffffffff, 0x00ffffff)
        a("buffer_load_dwordx4 v[8:11], v3, s[56:59], s75 offen")
        a("s_mov_b64 exec, -1")
        srd(a, 56, sGW, 896)
        a("buffer_load_dwordx4 v[12:15], v3, s[56:59], 0 offen")
        srd(a, 56, sB2, 896)
        a(f"s_lshl_b32 s75, s{sJJ}, 5")
        a("v_and_b32 v4, 3, v0\nv_lshlrev_b32 v4, 3, v4")
        a("buffer_load_dwordx2 v[16:17], v4, s[56:59], s75 offen")
        a("s_waitcnt vmcnt(0)")
        a("v_mov_b32 v24, 0")
        for i in range(4):
            a(f"v_lshlrev_b32 v25, 16, v{8+i}\nv_lshlrev_b32 v26, 16, v{12+i}\nv_mul_f32 v25, v25, v26")
            a(f"v_and_b32 v26, 0xffff0000, v{8+i}\nv_and_b32 v27, 0xffff0000, v{12+i}\nv_mul_f32 v26, v26, v27")
            a("v_cvt_pk_bf16_f32 v25, v25, v26")
            a("v_lshlrev_b32 v26, 16, v25\nv_and_b32 v25, 0xffff0000, v25\nv_add_f32 v24, v24, v26\nv_add_f32 v24, v24, v25")
        self.row16_reduce("v_add_f32", 24)
        self.swap_reduce("v_add_f32", 24, 25, 16)
        self.swap_reduce("v_add_f32", 24, 25, 32)
        self.bf16_round(24, 24)
        a("v_mul_f32 v24, 0xbfb8aa3b, v24\nv_exp_f32 v24, v24\nv_add_f32 v24, 1.0, v24\nv_rcp_f32 v24, v24")
        self.bf16_round(24, 24)
        a("v_sub_f32 v25, 1.0, v24")
        self.bf16_round(25, 25)
        a("v_lshlrev_b32 v28, 16, v16\nv_and_b32 v29, 0xffff0000, v16\nv_lshlrev_b32 v30, 16, v17\nv_and_b32 v31, 0xffff0000, v17")
        a(f"v_lshlrev_b32 v4, 1, v4\nv_add_u32 v4, {L_FIN}, v4\nv_mov_b32 v5, {L_FIN+64}")
        self.setexec(0xf, 0)
        a("ds_write_b128 v4, v[28:31]")
        self.setexec(1, 0)
        a("ds_write_b64 v5, v[24:25]")
        a("s_mov_b64 exec, -1")
        a("s_waitcnt lgkmcnt(0)")

    def build(self):
        a = self.a
        self.prologue()
        self.streaming()
        self.helper()
        a("L_fin:")
        self.dump_stamps()
        a("L_end:")
        a("s_endpgm")
        body = a.text()
        body = "\n".join((l.replace("@POL@", self.o.stpol) if "buffer_store" in l else l.replace("@POL@", self.o.ldpol)) for l in body.split("\n"))
        hdr = open("cdna_kernels/" + NAME + ".s.ref").read().split("; Override launch geometry")[0]
        out = hdr
        out += "; Override launch geometry by editing the next line (default: block=256,\n"
        out += f"; @launch grid=(256,1,1) block=(768,1,1) lds={LDS_BYTES}\n"
        out += '.amdgcn_target "amdgcn-amd-amdhsa--gfx950"\n.text\n'
        out += f".globl {KNAME}\n.p2align 8\n.type {KNAME},@function\n{KNAME}:\n"
        out += body
        out += f""".section .rodata,"a"
.p2align 6
.amdhsa_kernel {KNAME}
  .amdhsa_next_free_vgpr 168
  .amdhsa_next_free_sgpr 102
  .amdhsa_accum_offset 168
  .amdhsa_group_segment_fixed_size 0
  .amdhsa_kernarg_size 112
  .amdhsa_user_sgpr_count 2
  .amdhsa_user_sgpr_kernarg_segment_ptr 1
  .amdhsa_system_sgpr_workgroup_id_x 1
.end_amdhsa_kernel
"""
        return out

def parse(argv):
    p = argparse.ArgumentParser()
    p.add_argument("-o", default="cdna_kernels/" + NAME + ".s")
    p.add_argument("--stamps", action="store_true")
    p.add_argument("--dbgtime", action="store_true")
    p.add_argument("--rot", default="1,1,1,0")
    p.add_argument("--skip", default="")
    p.add_argument("--ldpol", default="sc1")
    p.add_argument("--stpol", default="sc1")
    p.add_argument("--npre", type=int, default=1)
    p.add_argument("--kmap", default="contig")
    p.add_argument("--kwin", type=int, default=0)
    p.add_argument("--vwin_n", type=int, default=0)
    p.add_argument("--order", default="kv")
    p.add_argument("--sprio", default="")
    p.add_argument("--hpre", type=int, default=7)
    p.add_argument("--woprio", type=int, default=0)
    p.add_argument("--qsleep", type=int, default=8)
    p.add_argument("--ssleep", type=int, default=2)
    p.add_argument("--fstag", type=int, default=4)
    p.add_argument("--ssleep1", type=int, default=8)
    p.add_argument("--tpol", default="nt")
    p.add_argument("--fast", action="store_true")
    p.add_argument("--earlybar", action="store_true")
    p.add_argument("--asleep", type=int, default=1)
    p.add_argument("--touch", action="store_true")
    p.add_argument("--vfirst", action="store_true")
    p.add_argument("--kvpol", default="nt")
    p.add_argument("--cntq", default="16,16,16,16,16,16,16,16")
    p.add_argument("--cnt1", default="7,7,7,7,7,7,7,7")
    p.add_argument("--cnt2", default="7,7,7,7,7,7,7,7")
    o = p.parse_args(argv)
    o.rot = tuple(int(x) for x in o.rot.split(","))
    o.skip = set(x for x in o.skip.split(",") if x)
    if not o.fast:
        o.skip.add('noxid')
    for k in ("cntq", "cnt1", "cnt2"):
        setattr(o, k, [int(x) for x in getattr(o, k).split(",")])
    return o

if __name__ == "__main__":
    o = parse(sys.argv[1:])
    open(o.o, "w").write(Gen(o).build())
    print("wrote", o.o)
```

```python
import sys, argparse
from emit import Asm

NAME = "gated_mix__sliding_block_cached__mixer_channel_mlp__decode"
KNAME = NAME + "_kernel"

WS_QP = 0x010000
WS_HP = 0x050000
WS_OP = 0x070000
WS_ST = 0x0f0000
WS_BP = 0x100000
WS_MP = 0x180000
WS_DBG = 0x600000
WS_SIZE = 0x800000

L_TILE = 0
XP = 928
L_X = 57344
L_Y = 64768
L_WO = 72192
L_Q = 88576
L_P = 89600
L_OP = 90624
L_ST = 107008
L_A = 107136
L_FIN = 109312
L_CNT = 109440
L_SH = 109568
LDS_BYTES = 111616
C_A0, C_A1, C_WO, C_Q, C_S = 0, 4, 8, 12, 16

SPIN_LIMIT = 100000

sX, sK, sV, sWQ, sWO, sW1, sB1, sW2, sB2, sGW, sOUT, sDBG, sWS = 4, 6, 8, 10, 12, 16, 18, 20, 22, 24, 26, 28, 30
sT, sT8, sT88 = 32, 33, 34
sKVH, sJ, sB, sS, sJJ = 35, 36, 37, 38, 39
SRD_WS = "s[48:51]"
sFF00 = 72
sPSEL = 73
sPSEL2 = 14
sW = 74
STAMP0 = 84
DPP = "row_mask:0xf bank_mask:0xf"

def srd(a, base, ptr, nbytes):
    a(f"s_mov_b32 s{base}, s{ptr}")
    a(f"s_and_b32 s{base+1}, s{ptr+1}, 0xffff")
    a(f"s_mov_b32 s{base+2}, {nbytes}")
    a(f"s_mov_b32 s{base+3}, 0x20000")

def pack8(vals):
    v = 0
    for i, x in enumerate(vals):
        assert 0 <= x < 256
        v |= x << (8 * i)
    return v & 0xffffffff, v >> 32

class Gen:
    def __init__(self, opt):
        self.o = opt
        self.a = Asm()

    def stamp(self, idx):
        if self.o.stamps:
            self.a("s_memrealtime s[100:101]")
            self.a("s_waitcnt lgkmcnt(0)")
            self.a(f"s_mov_b32 s{STAMP0+idx}, s100")

    def dump_stamps(self):
        if not self.o.stamps:
            return
        a = self.a
        if self.o.dbgtime:
            a("s_mov_b64 exec, -1")
            srd(a, 60, sDBG, 256)
            a(f"s_not_b32 s{STAMP0}, s{STAMP0}")
            a("v_mov_b32 v1, 0")
            for i in range(16):
                a(f"v_writelane_b32 v1, s{STAMP0+i}, {i}")
            a("s_memrealtime s[100:101]\ns_waitcnt lgkmcnt(0)")
            a("v_writelane_b32 v1, s100, 15")
            a("v_mbcnt_lo_u32_b32 v2, -1, 0\nv_mbcnt_hi_u32_b32 v2, -1, v2\nv_lshlrev_b32 v2, 2, v2")
            a("s_cmp_ge_u32 s3, 8\ns_cselect_b32 s80, 64, 0")
            a("s_mov_b32 exec_lo, 0xffff\ns_mov_b32 exec_hi, 0")
            a("buffer_atomic_umax v1, v2, s[60:63], s80 offen")
            a("s_waitcnt vmcnt(0)")
            return
        a("s_mov_b64 exec, -1")
        a("s_lshl_b32 s80, s2, 4\ns_add_u32 s80, s80, s3\ns_lshl_b32 s80, s80, 6")
        a(f"s_add_u32 s80, s80, {WS_DBG}")
        a("v_mov_b32 v1, 0")
        for i in range(16):
            a(f"v_writelane_b32 v1, s{STAMP0+i}, {i}")
        a("v_mbcnt_lo_u32_b32 v2, -1, 0\nv_mbcnt_hi_u32_b32 v2, -1, v2\nv_lshlrev_b32 v2, 2, v2")
        a("s_mov_b32 exec_lo, 0xffff\ns_mov_b32 exec_hi, 0")
        a(f"buffer_store_dword v1, v2, {SRD_WS}, s80 offen")
        a("s_waitcnt vmcnt(0)")

    def setexec(self, lo, hi):
        self.a(f"s_mov_b32 exec_lo, {hex(lo)}\ns_mov_b32 exec_hi, {hex(hi)}")

    def lds_signal(self, cnt_off, v0, v1):
        a = self.a
        a(f"v_mov_b32 v{v0}, {L_CNT + cnt_off}")
        a(f"v_mov_b32 v{v1}, 1")
        self.setexec(1, 0)
        a(f"ds_add_u32 v{v0}, v{v1}")
        a("s_mov_b64 exec, -1")

    def lds_wait(self, cnt_off, target, v0, v1, sleep=1):
        a = self.a
        L = a.label("lw"); Ld = a.label("lwd")
        a(f"v_mov_b32 v{v0}, {L_CNT + cnt_off}")
        a(f"s_mov_b32 s81, 0")
        a(f"{L}:")
        a(f"ds_read_b32 v{v1}, v{v0}")
        a("s_waitcnt lgkmcnt(0)")
        a(f"v_readfirstlane_b32 s80, v{v1}")
        a(f"s_cmp_ge_u32 s80, {target}")
        a(f"s_cbranch_scc1 {Ld}")
        a(f"s_add_u32 s81, s81, 1")
        a(f"s_cmp_ge_u32 s81, {SPIN_LIMIT*8}")
        a(f"s_cbranch_scc1 {Ld}")
        a(f"s_sleep {sleep}")
        a(f"s_branch {L}")
        a(f"{Ld}:")

    def check4w(self, r, vbad, vt, vu, first):
        a = self.a
        a(f"v_perm_b32 v{vt}, v{r}, v{r+1}, s{sPSEL}")
        a(f"v_perm_b32 v{vu}, v{r+2}, v{r+3}, s{sPSEL2}")
        a(f"v_or_b32 v{vt}, v{vt}, v{vu}")
        if first:
            a(f"v_xor_b32 v{vbad}, s{sT88}, v{vt}")
        else:
            a(f"v_xor_b32 v{vt}, s{sT88}, v{vt}\nv_or_b32 v{vbad}, v{vbad}, v{vt}")

    def unmask(self, r, n=4, dst=None):
        for i in range(n):
            self.a(f"v_and_b32 v{(dst if dst is not None else r)+i}, s{sFF00}, v{r+i}")

    def vpoll(self, loads, regs, vbad, vt, vu, sleep, name="", issued=False, wait="vmcnt(0)"):
        a = self.a
        if name and ('no_' + name) in self.o.skip:
            return
        L = a.label("vp"); Ld = a.label("vpd")
        a("s_mov_b32 s81, 0")
        if issued:
            a(f"s_waitcnt {wait}")
            for i, r in enumerate(regs):
                self.check4w(r, vbad, vt, vu, i == 0)
            a(f"v_cmp_ne_u32 vcc, 0, v{vbad}\ns_cbranch_vccz {Ld}")
        a(f"{L}:")
        loads()
        a("s_waitcnt vmcnt(0)")
        for i, r in enumerate(regs):
            self.check4w(r, vbad, vt, vu, i == 0)
        a(f"v_cmp_ne_u32 vcc, 0, v{vbad}\ns_cbranch_vccz {Ld}")
        a(f"s_add_u32 s81, s81, 1\ns_cmp_ge_u32 s81, {SPIN_LIMIT}\ns_cbranch_scc1 {Ld}")
        a(f"s_sleep {sleep}\ns_branch {L}")
        a(f"{Ld}:")

    def spoll(self, off_expr, loads, words, sleep, name=""):
        a = self.a
        if name and ('no_' + name) in self.o.skip:
            return
        P = a.label("sp"); Pd = a.label("spd")
        a(f"s_add_u32 s78, s{sWS}, s{off_expr}\ns_addc_u32 s79, s{sWS+1}, 0")
        a("s_mov_b32 s81, 0")
        a(f"{P}:")
        for ndw, dst, imm in loads:
            rng = f"s[{dst}:{dst+ndw-1}]" if ndw > 1 else f"s{dst}"
            a(f"s_load_dword{'x'+str(ndw) if ndw > 1 else ''} {rng}, s[78:79], {imm} glc")
        a("s_waitcnt lgkmcnt(0)")
        a(f"s_xor_b32 s80, s{words[0]}, s{sT8}")
        for t in words[1:]:
            a(f"s_xor_b32 s82, s{t}, s{sT8}\ns_or_b32 s80, s80, s82")
        a(f"s_and_b32 s80, s80, 0xff\ns_cbranch_scc0 {Pd}")
        a(f"s_add_u32 s81, s81, 1\ns_cmp_ge_u32 s81, {SPIN_LIMIT}\ns_cbranch_scc1 {Pd}")
        a(f"s_sleep {sleep}\ns_branch {P}")
        a(f"{Pd}:")

    def bf16_round(self, dst, src):
        a = self.a
        a(f"v_cvt_pk_bf16_f32 v{dst}, v{src}, v{src}")
        a(f"v_and_b32 v{dst}, 0xffff0000, v{dst}")

    def row16_reduce(self, op, v):
        for r in (8, 4, 2, 1):
            self.a(f"{op}_dpp v{v}, v{v}, v{v} row_ror:{r} {DPP}")

    def swap_reduce(self, op, v, t, which):
        a = self.a
        a(f"v_mov_b32 v{t}, v{v}")
        a(f"v_permlane{which}_swap_b32 v{v}, v{t}")
        a(f"{op} v{v}, v{v}, v{t}")

    def prologue(self):
        a = self.a
        a("s_cmp_ge_u32 s2, 256")
        a("s_cbranch_scc1 L_end")
        if self.o.earlybar:
            a("v_lshrrev_b32 v1, 6, v0")
            a("v_and_b32 v0, 63, v0")
            a("v_readfirstlane_b32 s3, v1")
            a(f"v_mov_b32 v1, {L_CNT}\nv_mov_b32 v2, 0\nv_mov_b32 v3, 0\nv_mov_b32 v4, 0\nv_mov_b32 v5, 0")
            a("s_cmp_lg_u32 s3, 8\ns_cbranch_scc1 L_noinit")
            self.setexec(1, 0)
            a("ds_write_b128 v1, v[2:5]\nds_write_b128 v1, v[2:5] offset:16")
            a("s_mov_b64 exec, -1")
            a("s_waitcnt lgkmcnt(0)")
            a("L_noinit:")
        a("s_load_dwordx16 s[4:19], s[0:1], 0")
        a("s_load_dwordx8 s[20:27], s[0:1], 64")
        a("s_load_dwordx4 s[28:31], s[0:1], 96")
        if self.o.stamps:
            for i in range(16):
                a(f"s_mov_b32 s{STAMP0+i}, 0")
            a("s_memrealtime s[100:101]")
        if self.o.earlybar:
            a("s_barrier")
        else:
            a("v_lshrrev_b32 v1, 6, v0")
            a("v_and_b32 v0, 63, v0")
            a("v_readfirstlane_b32 s3, v1")
        a(f"s_and_b32 s{sKVH}, s2, 7")
        a(f"s_lshr_b32 s{sJ}, s2, 3")
        a(f"s_and_b32 s{sB}, s{sJ}, 7")
        a(f"s_lshr_b32 s{sS}, s{sJ}, 3")
        a(f"s_sub_u32 s40, s{sJ}, 4")
        a(f"s_cmp_lt_u32 s{sJ}, 4")
        a(f"s_cselect_b32 s{sJJ}, 255, s40")
        a(f"s_mov_b32 s{sFF00}, 0xffffff00")
        a(f"s_mov_b32 s{sPSEL}, 0x0c0c0400")
        a("s_cmp_ge_u32 s3, 8")
        a("s_cbranch_scc1 L_helper")

    def after_karg(self):
        a = self.a
        a("s_waitcnt lgkmcnt(0)")
        if self.o.stamps:
            a(f"s_mov_b32 s{STAMP0}, s100")
        a(f"s_load_dword s{sT}, s[{sWS}:{sWS+1}], 0")
        a(f"s_mov_b32 s{sPSEL2}, 0x04000c0c")

    def tag_setup(self):
        a = self.a
        a("s_waitcnt lgkmcnt(0)")
        a(f"s_add_u32 s{sT}, s{sT}, 1")
        a(f"s_and_b32 s{sT8}, s{sT}, 0xff")
        a(f"s_mul_i32 s{sT88}, s{sT8}, 0x01010101")

    def streaming(self):
        a = self.a; o = self.o
        KD, VD = 8, 72
        QA = 136
        D0 = 144
        XS = 148
        SEL = 156
        vKo, vVo = 1, 2
        a.c("================= streaming wave =================")
        a(f"s_mov_b32 s{sW}, s3")
        a(f"s_lshl_b32 s75, s{sB}, 3\ns_add_u32 s75, s75, s{sKVH}\ns_lshl_b32 s75, s75, 21")
        a(f"s_lshl_b32 s76, s{sS}, 17\ns_add_u32 s75, s75, s76")
        a(f"s_add_u32 s75, s75, 0x180000")
        mb, mk, mw, ms = o.rot
        terms = [(sB, mb), (sKVH, mk), (sW, mw), (sS, ms)]
        a("s_mov_b32 s76, 0")
        for reg, m in terms:
            if m == 1:
                a(f"s_add_u32 s76, s76, s{reg}")
            elif m:
                a(f"s_mul_i32 s77, s{reg}, {m}\ns_add_u32 s76, s76, s77")
        if o.kmap == 'contig':
            a(f"s_lshl_b32 s77, s{sW}, 14\ns_add_u32 s75, s75, s77")
            a("s_and_b32 s76, s76, 7\ns_lshl_b32 s76, s76, 11")
            for t in range(8):
                if t:
                    a(f"s_add_u32 s76, s76, 0x800\ns_and_b32 s76, s76, 0x3fff")
                a(f"s_add_u32 s{40+t}, s76, s75")
        elif o.kmap == 'inter':
            a(f"s_lshl_b32 s77, s{sW}, 11\ns_add_u32 s75, s75, s77")
            a("s_and_b32 s76, s76, 7\ns_lshl_b32 s76, s76, 14")
            for t in range(8):
                if t:
                    a(f"s_add_u32 s76, s76, 0x4000\ns_and_b32 s76, s76, 0x1ffff")
                a(f"s_add_u32 s{40+t}, s76, s75")
        elif o.kmap == 'rot64':
            a(f"s_lshl_b32 s77, s{sW}, 3\ns_add_u32 s76, s76, s77\ns_and_b32 s76, s76, 63\ns_lshl_b32 s76, s76, 11")
            for t in range(8):
                if t:
                    a(f"s_add_u32 s76, s76, 0x800\ns_and_b32 s76, s76, 0x1ffff")
                a(f"s_add_u32 s{40+t}, s76, s75")
        a(f"v_lshrrev_b32 v3, 4, v0\nv_lshlrev_b32 v{vKo}, 6, v3")
        a(f"v_bfe_u32 v4, v0, 2, 2\nv_lshl_add_u32 v{vKo}, v4, 9, v{vKo}")
        a(f"v_and_b32 v4, 3, v0\nv_lshl_add_u32 v{vKo}, v4, 4, v{vKo}")
        a(f"v_and_b32 v4, 15, v0\nv_lshlrev_b32 v4, 4, v4\nv_lshl_add_u32 v{vVo}, v3, 9, v4")
        self.after_karg()
        self.stamp(10)
        srd(a, 52, sK, 0x8000000)
        def ld(m, isv):
            t, c = m // 2, m % 2
            r = (VD if isv else KD) + 4 * m
            a(f"buffer_load_dwordx4 v[{r}:{r+3}], v{vVo if isv else vKo}, {'s[56:59]' if isv else 's[52:55]'}, s{40+t} offen offset:{c*256} {o.kvpol}")
        npre = o.npre
        if o.sprio == 'kfirst':
            a("s_setprio 1")
        if o.vfirst:
            srd(a, 56, sV, 0x8000000)
            ld(0, True)
        for m in range(npre):
            ld(m, False)
        self.stamp(11)
        if not o.earlybar:
            a("s_barrier")
        self.stamp(12)
        srd(a, 56, sV, 0x8000000)
        srd(a, 48, sWS, WS_SIZE)
        if o.sprio == 'young':
            a(f"s_cmp_ge_u32 s{sW}, 4\ns_cbranch_scc0 L_noprio\ns_setprio 1\nL_noprio:")
        for m in range(npre, 16):
            if o.kwin and m >= o.kwin:
                a(f"s_waitcnt vmcnt({o.kwin - 1})")
            ld(m, False)
        if o.sprio == 'kfirst':
            a("s_setprio 0")
        for m in range(16):
            if o.vfirst and m == 0:
                continue
            if o.kwin and m < o.vwin_n:
                a(f"s_waitcnt vmcnt({o.kwin - 1})")
            ld(m, True)
        self.stamp(1)
        self.tag_setup()
        for base, val in ((64, 0x22222222), (66, 0x44444444), (68, 0x88888888)):
            a(f"s_mov_b32 s{base}, {hex(val)}\ns_mov_b32 s{base+1}, {hex(val)}")
        a("s_mov_b32 s70, 0\ns_mov_b32 s71, -1")
        vQ, vPw, vPr, vOw = 3, 4, 5, 6
        a(f"v_lshrrev_b32 v7, 4, v0\nv_lshlrev_b32 v{vQ}, 6, v7")
        a(f"v_bfe_u32 v164, v0, 2, 1\nv_lshl_add_u32 v{vQ}, v164, 9, v{vQ}")
        a(f"v_and_b32 v164, 3, v0\nv_lshl_add_u32 v{vQ}, v164, 4, v{vQ}")
        a(f"v_add_u32 v{vQ}, {L_Q}, v{vQ}")
        a(f"s_lshl_b32 s77, s{sW}, 7\ns_add_u32 s77, s77, {L_P}")
        a(f"v_bfe_u32 v164, v0, 2, 3\nv_lshlrev_b32 v{vPw}, 4, v164")
        a(f"v_lshrrev_b32 v164, 5, v0\nv_lshl_add_u32 v{vPw}, v164, 3, v{vPw}")
        a(f"v_and_b32 v164, 3, v0\nv_lshl_add_u32 v{vPw}, v164, 1, v{vPw}")
        a(f"v_add_u32 v{vPw}, s77, v{vPw}")
        a(f"v_bfe_u32 v164, v0, 3, 1\nv_lshlrev_b32 v{vPr}, 6, v164")
        a(f"v_lshl_add_u32 v{vPr}, v7, 4, v{vPr}\nv_add_u32 v{vPr}, s77, v{vPr}")
        a(f"s_lshl_b32 s77, s{sW}, 11\ns_add_u32 s77, s77, {L_OP}")
        a(f"v_lshrrev_b32 v164, 5, v0\nv_lshlrev_b32 v{vOw}, 10, v164")
        a(f"v_and_b32 v164, 15, v0\nv_lshl_add_u32 v{vOw}, v164, 5, v{vOw}")
        a(f"v_bfe_u32 v164, v0, 4, 1\nv_lshl_add_u32 v{vOw}, v164, 4, v{vOw}")
        a(f"v_add_u32 v{vOw}, s77, v{vOw}")
        a("v_and_b32 v164, 1, v0\nv_cmp_eq_u32 vcc, 1, v164")
        a("v_mov_b32 v165, 0x0c0c0100\nv_mov_b32 v166, 0x01000c0c\nv_cndmask_b32 v165, v165, v166, vcc")
        a("v_mov_b32 v166, 0x0c0c0302\nv_mov_b32 v167, 0x03020c0c\nv_cndmask_b32 v166, v166, v167, vcc")
        a("v_bfe_u32 v164, v0, 1, 2\nv_mov_b32 v167, 0x0c0c0c0c")
        for j in range(4):
            a(f"v_cmp_eq_u32 vcc, {j}, v164")
            a(f"v_cndmask_b32 v{SEL+j}, v167, v165, vcc")
            a(f"v_cndmask_b32 v{SEL+4+j}, v167, v166, vcc")
        if 'qwait' not in o.skip:
            self.lds_wait(C_Q, 4, 164, 165, sleep=2)
        self.stamp(2)
        a(f"ds_read_b128 v[{QA}:{QA+3}], v{vQ}")
        a(f"ds_read_b128 v[{QA+4}:{QA+7}], v{vQ} offset:256")
        a(f"v_mov_b32 v164, {L_FIN+72}\nds_read_b32 v165, v164")
        a("s_waitcnt lgkmcnt(0)")
        a("v_readfirstlane_b32 s47, v165")
        Dreg = [D0] + [KD + 8 * (t - 1) for t in range(1, 8)]
        for t in range(8):
            a(f"s_waitcnt vmcnt({30 - 2*t - (1 if o.vfirst else 0)})")
            k0, k1 = KD + 8 * t, KD + 8 * t + 4
            d = Dreg[t]
            a(f"v_mfma_f32_16x16x32_bf16 v[{d}:{d+3}], v[{QA}:{QA+3}], v[{k0}:{k0+3}], 0")
            a(f"v_mfma_f32_16x16x32_bf16 v[{d}:{d+3}], v[{QA+4}:{QA+7}], v[{k1}:{k1+3}], v[{d}:{d+3}]")
        self.stamp(3)
        for t in range(8):
            d = Dreg[t]; x = XS + t
            a(f"v_cndmask_b32 v{x}, v{d}, v{d+1}, s[64:65]")
            a(f"v_cndmask_b32 v{x}, v{x}, v{d+2}, s[66:67]")
            a(f"v_cndmask_b32 v{x}, v{x}, v{d+3}, s[68:69]")
        for i in range(4):
            a(f"v_cndmask_b32 v{XS+i}, v{XS+i}, v{XS+4+i}, s[70:71]")
        for i in range(4):
            a(f"v_add_f32_dpp v{XS+i}, v{XS+i}, v{XS+i} quad_perm:[1,0,3,2] {DPP}")
        for i in range(4):
            a(f"v_add_f32_dpp v{XS+i}, v{XS+i}, v{XS+i} quad_perm:[2,3,0,1] {DPP}")
        Z, M_, P_, T_ = XS + 4, XS + 6, XS + 7, XS + 5
        a(f"v_cndmask_b32 v{Z}, v{XS}, v{XS+1}, s[64:65]")
        a(f"v_cndmask_b32 v{Z}, v{Z}, v{XS+2}, s[66:67]")
        a(f"v_cndmask_b32 v{Z}, v{Z}, v{XS+3}, s[68:69]")
        self.bf16_round(Z, Z)
        a(f"v_mul_f32 v{Z}, 0x3db8aa3b, v{Z}")
        a(f"v_mov_b32 v{M_}, v{Z}")
        self.row16_reduce("v_max_f32", M_)
        self.swap_reduce("v_max_f32", M_, T_, 32)
        a(f"v_sub_f32 v{P_}, v{Z}, v{M_}")
        a(f"v_exp_f32 v{P_}, v{P_}")
        a(f"v_cvt_pk_bf16_f32 v{T_}, v{P_}, v{P_}")
        a(f"ds_write_b16 v{vPw}, v{T_}")
        P8 = KD
        a(f"ds_read_b128 v[{P8}:{P8+3}], v{vPr}")
        self.row16_reduce("v_add_f32", P_)
        self.swap_reduce("v_add_f32", P_, XS, 32)
        a(f"s_lshl_b32 s77, s{sW}, 3\ns_add_u32 s77, s77, {L_ST}")
        a(f"v_bfe_u32 v164, v0, 4, 1\nv_lshlrev_b32 v164, 6, v164\nv_add_u32 v164, s77, v164")
        self.setexec(0x10001, 0)
        a(f"ds_write_b64 v164, v[{M_}:{M_+1}]")
        a(f"v_mov_b32 v164, {L_CNT + C_S}\nv_mov_b32 v165, 1")
        self.setexec(1, 0)
        a("ds_add_u32 v164, v165")
        a("s_mov_b64 exec, -1")
        a("s_waitcnt lgkmcnt(2)")
        ACC = QA
        AR = [KD + 8, KD + 12]
        for u in range(8):
            ar = AR[u & 1]
            for j in range(4):
                a(f"v_perm_b32 v{ar+j}, v{P8 + u//2}, v{P8 + u//2}, v{SEL + 4*(u&1) + j}")
            a(f"s_waitcnt vmcnt({14 - 2*u})")
            for c in range(2):
                vb = VD + 8 * u + 4 * c
                acc = ACC + 4 * c
                cin = "0" if u == 0 else f"v[{acc}:{acc+3}]"
                a(f"v_mfma_f32_16x16x32_bf16 v[{acc}:{acc+3}], v[{ar}:{ar+3}], v[{vb}:{vb+3}], {cin}")
        self.stamp(4)
        a(f"s_lshl_b32 s77, s{sW}, 8\ns_add_u32 s77, s77, {L_OP}")
        a(f"v_lshlrev_b32 v32, 2, v0\nv_add_u32 v3, s77, v32")
        a(f"s_lshr_b32 s77, s{sW}, 2\ns_lshl_b32 s77, s77, 6\ns_add_u32 s77, s77, {L_ST}")
        a(f"v_mov_b32 v4, s77")
        a(f"v_mov_b32 v33, s{sT8}")
        a(f"s_lshl_b32 s76, s{sKVH}, 3\ns_add_u32 s76, s76, s{sB}")
        a(f"s_lshl_b32 s78, s76, 2\ns_add_u32 s78, s78, s{sS}\ns_lshl_b32 s78, s78, 11")
        a(f"s_lshl_b32 s79, s{sW}, 8\ns_add_u32 s78, s78, s79\ns_add_u32 s46, s78, {WS_OP}")
        a(f"s_lshl_b32 s77, s76, 1\ns_lshr_b32 s78, s{sW}, 2\ns_add_u32 s77, s77, s78\ns_lshl_b32 s77, s77, 2")
        a(f"s_add_u32 s77, s77, s{sS}\ns_lshl_b32 s77, s77, 4\ns_add_u32 s45, s77, {WS_ST}")
        self.lds_wait(C_S, 8, 164, 165, sleep=2)
        SW, OW = 40, 8
        for i in range(4):
            a(f"ds_read_b128 v[{SW+4*i}:{SW+4*i+3}], v4 offset:{16*i}")
        a(f"s_lshl_b32 s76, s{sKVH}, 3\ns_add_u32 s76, s76, s{sW}")
        a(f"s_and_b32 s78, s{sJJ}, 3")
        a(f"s_lshl_b32 s77, s76, 13\ns_lshl_b32 s79, s78, 9\ns_add_u32 s77, s77, s79\ns_add_u32 s40, s77, {WS_OP}\ns_add_u32 s41, s40, 4096")
        a(f"s_lshl_b32 s77, s76, 1\ns_lshr_b32 s79, s78, 1\ns_add_u32 s77, s77, s79\ns_lshl_b32 s77, s77, 6\ns_add_u32 s44, s77, {WS_ST}")
        a("v_lshrrev_b32 v34, 5, v0\nv_lshlrev_b32 v34, 11, v34\nv_and_b32 v35, 31, v0\nv_lshl_add_u32 v34, v35, 4, v34")
        a(f"s_mul_i32 s77, s{sW}, 272\ns_add_u32 s77, s77, {L_A}\nv_lshlrev_b32 v35, 3, v35\nv_add_u32 v35, s77, v35")
        a("s_waitcnt lgkmcnt(0)")
        ms_ = [SW + 2 * w for w in range(8)]
        a(f"v_max3_f32 v5, v{ms_[0]}, v{ms_[1]}, v{ms_[2]}")
        a(f"v_max3_f32 v30, v{ms_[3]}, v{ms_[4]}, v{ms_[5]}")
        a(f"v_max3_f32 v5, v5, v{ms_[6]}, v{ms_[7]}")
        a(f"v_max_f32 v5, v5, v30")
        a(f"v_and_b32 v5, s{sFF00}, v5")
        for w in range(8):
            a(f"v_sub_f32 v{ms_[w]}, v{ms_[w]}, v5")
        for w in range(8):
            a(f"v_exp_f32 v{ms_[w]}, v{ms_[w]}")
        a(f"ds_write_b128 v{vOw}, v[{ACC}:{ACC+3}]")
        a(f"ds_write_b128 v{vOw}, v[{ACC+4}:{ACC+7}] offset:512")
        Ls = a.label("nost")
        a(f"s_and_b32 s78, s{sW}, 3\ns_cmp_lg_u32 s78, 0\ns_cbranch_scc1 {Ls}")
        a(f"v_mul_f32 v7, v{ms_[0]}, v{ms_[0]+1}")
        for w in range(1, 8):
            a(f"v_fmac_f32 v7, v{ms_[w]}, v{ms_[w]+1}")
        a(f"v_or_b32 v36, v5, v33\nv_and_or_b32 v37, v7, s{sFF00}, v33\nv_mov_b32 v38, v33\nv_mov_b32 v39, v33\nv_mov_b32 v31, 0")
        a(f"{Ls}:")
        a("s_waitcnt lgkmcnt(0)")
        a("s_barrier")
        self.stamp(5)
        if 'tail' in o.skip:
            a("s_barrier\ns_branch L_fin")
        for i in range(4):
            a(f"ds_read2st64_b32 v[{OW+2*i}:{OW+2*i+1}], v3 offset0:{16*i} offset1:{16*i+8}")
        a("s_waitcnt lgkmcnt(2)")
        a(f"v_mul_f32 v6, v{ms_[0]}, v{OW}\nv_mul_f32 v7, v{ms_[1]}, v{OW+1}")
        a(f"v_fmac_f32 v6, v{ms_[2]}, v{OW+2}\nv_fmac_f32 v7, v{ms_[3]}, v{OW+3}")
        a("s_waitcnt lgkmcnt(0)")
        a(f"v_fmac_f32 v6, v{ms_[4]}, v{OW+4}\nv_fmac_f32 v7, v{ms_[5]}, v{OW+5}")
        a(f"v_fmac_f32 v6, v{ms_[6]}, v{OW+6}\nv_fmac_f32 v7, v{ms_[7]}, v{OW+7}")
        a("v_add_f32 v6, v6, v7")
        a(f"v_and_or_b32 v6, v6, s{sFF00}, v33")
        a(f"buffer_store_dword v6, v32, {SRD_WS}, s46 offen sc1")
        Ls2 = a.label("nost2")
        a(f"s_and_b32 s78, s{sW}, 3\ns_cmp_lg_u32 s78, 0\ns_cbranch_scc1 {Ls2}")
        self.setexec(1, 0)
        a(f"buffer_store_dwordx4 v[36:39], v31, {SRD_WS}, s45 offen sc1")
        a("s_mov_b64 exec, -1")
        a(f"{Ls2}:")
        self.stamp(6)
        Lng = a.label("nogather")
        a(f"s_cmp_eq_u32 s{sJJ}, 255\ns_cbranch_scc1 {Lng}")
        G = G3 = 56
        def loads():
            a(f"buffer_load_dwordx4 v[{G}:{G+3}], v34, {SRD_WS}, s40 offen sc1")
            a(f"buffer_load_dwordx4 v[{G+4}:{G+7}], v34, {SRD_WS}, s41 offen sc1")
        self.spoll(44, [(16, 52, 0)], [52 + i for i in range(16)], o.asleep, name='a')
        loads()
        for i in range(4):
            a(f"s_and_b32 s{52+4*i}, s{52+4*i}, s{sFF00}\ns_and_b32 s{53+4*i}, s{53+4*i}, s{sFF00}")
        a("v_mov_b32 v8, s52\nv_mov_b32 v9, s56\nv_mov_b32 v10, s60\nv_mov_b32 v11, s64")
        a("v_max3_f32 v5, v8, v9, v10\nv_max_f32 v5, v5, v11")
        for i in range(4):
            a(f"v_sub_f32 v{8+i}, v{8+i}, v5")
        for i in range(4):
            a(f"v_exp_f32 v{8+i}, v{8+i}")
        a("v_mul_f32 v6, s53, v8\nv_fmac_f32 v6, s57, v9\nv_fmac_f32 v6, s61, v10\nv_fmac_f32 v6, s65, v11")
        a("v_rcp_f32 v6, v6")
        a("v_cndmask_b32 v8, v8, v9, s[70:71]\nv_cndmask_b32 v9, v10, v11, s[70:71]")
        a("v_mul_f32 v8, v8, v6\nv_mul_f32 v9, v9, v6")
        self.vpoll(loads, [G, G + 4], 5, 6, 7, 1, name='a', issued=True)
        self.unmask(G, 8)
        self.stamp(7)
        for k in range(4):
            a(f"v_mul_f32 v{12+k}, v8, v{G3+k}")
        for k in range(4):
            a(f"v_fmac_f32 v{12+k}, v9, v{G3+4+k}")
        for k in range(4):
            a(f"v_mov_b32 v{16+k}, v{12+k}")
        for k in range(4):
            a(f"v_permlane32_swap_b32 v{12+k}, v{16+k}")
        for k in range(4):
            a(f"v_add_f32 v{12+k}, v{12+k}, v{16+k}")
        a("v_cvt_pk_bf16_f32 v12, v12, v13\nv_cvt_pk_bf16_f32 v13, v14, v15")
        self.setexec(0xffffffff, 0)
        a("ds_write_b64 v35, v[12:13]")
        a("s_mov_b64 exec, -1")
        a("s_waitcnt lgkmcnt(0)")
        a(f"{Lng}:")
        a("s_barrier")
        self.stamp(8)
        a(f"s_cmp_lg_u32 s{sW}, 0\ns_cbranch_scc1 L_fin")
        a(f"s_cmp_eq_u32 s{sJJ}, 255\ns_cbranch_scc1 L_fin")
        a(f"s_mul_i32 s76, s{sKVH}, 28\ns_add_u32 s76, s76, s{sJJ}")
        a(f"s_lshl_b32 s77, s76, 11\ns_add_u32 s40, s77, {WS_BP}\ns_add_u32 s41, s40, 1024")
        a(f"s_lshl_b32 s77, s76, 9\ns_add_u32 s44, s77, {WS_MP}")
        a("v_lshlrev_b32 v3, 4, v0")
        a("v_and_b32 v2, 31, v0\nv_lshlrev_b32 v2, 4, v2")
        a(f"v_and_b32 v4, 3, v0\nv_lshlrev_b32 v4, 4, v4\nv_add_u32 v4, {L_FIN}, v4")
        a(f"v_mov_b32 v9, {L_FIN+64}")
        a("ds_read_b128 v[24:27], v4")
        a("ds_read_b64 v[14:15], v9")
        srd(a, 60, sOUT, 8 * 448 * 2)
        a(f"s_mul_i32 s46, s{sKVH}, 896\ns_lshl_b32 s78, s{sJJ}, 5\ns_add_u32 s46, s46, s78")
        def reduce_q(vals, tmp):
            for ror in (8, 4):
                for e in vals:
                    a(f"v_add_f32_dpp v{e}, v{e}, v{e} row_ror:{ror} {DPP}")
            for which in (16, 32):
                for e, t in zip(vals, tmp):
                    a(f"v_mov_b32 v{t}, v{e}")
                for e, t in zip(vals, tmp):
                    a(f"v_permlane{which}_swap_b32 v{e}, v{t}")
                for e, t in zip(vals, tmp):
                    a(f"v_add_f32 v{e}, v{e}, v{t}")
        G, G2, G3 = 40, 64, 96
        MV = 28
        def lm():
            a(f"buffer_load_dwordx4 v[{MV}:{MV+3}], v2, {SRD_WS}, s44 offen sc1")
        def loads2(g):
            a(f"buffer_load_dwordx4 v[{g}:{g+3}], v3, {SRD_WS}, s40 offen sc1")
            a(f"buffer_load_dwordx4 v[{g+4}:{g+7}], v3, {SRD_WS}, s41 offen sc1")
        self.vpoll(lm, [MV], 5, 6, 7, 1, name='m')
        loads2(G)
        self.unmask(MV, 4)
        for k in range(4):
            a(f"v_cndmask_b32 v{MV+k}, v{MV+k}, 0, s[70:71]")
        reduce_q([MV + k for k in range(4)], [112 + k for k in range(4)])
        a("s_waitcnt lgkmcnt(0)")
        for h2 in range(2):
            M0, M1 = MV + 2 * h2, MV + 2 * h2 + 1
            a(f"v_cvt_pk_bf16_f32 v16, v{M0}, v{M1}")
            a(f"v_lshlrev_b32 v{M0}, 16, v16\nv_and_b32 v{M1}, 0xffff0000, v16")
            a(f"v_add_f32 v{M0}, v{M0}, v{24+2*h2}\nv_add_f32 v{M1}, v{M1}, v{25+2*h2}")
            a(f"v_cvt_pk_bf16_f32 v16, v{M0}, v{M1}")
            a(f"v_lshlrev_b32 v{M0}, 16, v16\nv_and_b32 v{M1}, 0xffff0000, v16")
            a(f"v_mul_f32 v{M0}, v{M0}, v15\nv_mul_f32 v{M1}, v{M1}, v15")
            a(f"v_cvt_pk_bf16_f32 v16, v{M0}, v{M1}")
            a(f"v_lshlrev_b32 v{M0}, 16, v16\nv_and_b32 v{M1}, 0xffff0000, v16")
        Lp = a.label("fp"); La = a.label("fpa"); Lb = a.label("fpb"); Lo = a.label("fpo")
        a("s_mov_b32 s81, 0")
        a(f"{Lp}:")
        loads2(G2)
        a("s_waitcnt vmcnt(2)")
        self.check4w(G, 5, 6, 7, True); self.check4w(G + 4, 5, 6, 7, False)
        a(f"v_cmp_ne_u32 vcc, 0, v5\ns_cbranch_vccz {La}")
        loads2(G)
        a("s_waitcnt vmcnt(2)")
        self.check4w(G2, 5, 6, 7, True); self.check4w(G2 + 4, 5, 6, 7, False)
        a(f"v_cmp_ne_u32 vcc, 0, v5\ns_cbranch_vccz {Lb}")
        a(f"s_add_u32 s81, s81, 1\ns_cmp_lt_u32 s81, {SPIN_LIMIT}\ns_cbranch_scc1 {Lp}")
        a(f"{Lb}:")
        self.unmask(G2, 8, G3)
        a(f"s_branch {Lo}")
        a(f"{La}:")
        self.unmask(G, 8, G3)
        a(f"{Lo}:")
        self.stamp(9)
        G = G3
        for k in range(4):
            a(f"v_add_f32 v{G+k}, v{G+k}, v{G+4+k}")
        reduce_q([G + k for k in range(4)], [112 + k for k in range(4)])
        for h2 in range(2):
            A0, A1 = G + 2 * h2, G + 2 * h2 + 1
            a(f"v_cvt_pk_bf16_f32 v16, v{A0}, v{A1}")
            a(f"v_lshlrev_b32 v{A0}, 16, v16\nv_and_b32 v{A1}, 0xffff0000, v16")
            a(f"v_mul_f32 v{A0}, v{A0}, v14\nv_mul_f32 v{A1}, v{A1}, v14")
            a(f"v_cvt_pk_bf16_f32 v16, v{A0}, v{A1}")
            a(f"v_lshlrev_b32 v{A0}, 16, v16\nv_and_b32 v{A1}, 0xffff0000, v16")
            a(f"v_add_f32 v{A0}, v{A0}, v{MV+2*h2}\nv_add_f32 v{A1}, v{A1}, v{MV+2*h2+1}")
            a(f"v_cvt_pk_bf16_f32 v{8+h2}, v{A0}, v{A1}")
        a("v_lshlrev_b32 v3, 3, v0")
        self.setexec(0xf, 0)
        a("buffer_store_dwordx2 v[8:9], v3, s[60:63], s46 offen")
        a("s_cmp_lg_u32 s2, 32\ns_cbranch_scc1 L_fin")
        a(f"v_mov_b32 v8, s{sT}\nv_mov_b32 v3, 0")
        self.setexec(1, 0)
        a(f"buffer_store_dword v8, v3, {SRD_WS}, 0 offen sc1")
        a("s_branch L_fin")

    def publish_f32(self, d, s_base, s_stride, tmp, pol="sc1"):
        a = self.a
        va, vb, quad = tmp, tmp + 1, tmp + 2
        assert quad % 2 == 0
        a(f"s_lshl_b32 s80, s{sW}, 9\ns_add_u32 s80, s80, {L_SH}")
        a(f"v_lshrrev_b32 v{va}, 4, v0\nv_lshlrev_b32 v{va}, 8, v{va}\nv_and_b32 v{vb}, 15, v0\nv_lshl_add_u32 v{va}, v{vb}, 2, v{va}\nv_add_u32 v{va}, s80, v{va}")
        self.setexec(0xffffffff, 0)
        for r in range(4):
            a(f"ds_write_b32 v{va}, v{d+r} offset:{64*r}")
        a(f"v_lshlrev_b32 v{vb}, 4, v0\nv_add_u32 v{vb}, s80, v{vb}")
        a(f"ds_read_b128 v[{quad}:{quad+3}], v{vb}")
        a(f"v_lshrrev_b32 v{va}, 2, v0\nv_mul_lo_u32 v{va}, v{va}, s{s_stride}\nv_and_b32 v{vb}, 3, v0\nv_lshl_add_u32 v{va}, v{vb}, 4, v{va}")
        a(f"v_mov_b32 v{vb}, s{sT8}")
        a("s_waitcnt lgkmcnt(0)")
        for k in range(4):
            a(f"v_and_or_b32 v{quad+k}, v{quad+k}, s{sFF00}, v{vb}")
        if 'nopub' not in self.o.skip:
            a(f"buffer_store_dwordx4 v[{quad}:{quad+3}], v{va}, {SRD_WS}, s{s_base} offen {pol}")
        a("s_mov_b64 exec, -1")

    def tile_params_lane(self):
        a = self.a
        a("v_lshrrev_b32 v1, 3, v0\nv_bfe_u32 v3, v0, 4, 1\nv_lshlrev_b32 v3, 1, v3\nv_and_b32 v2, 7, v0\nv_xor_b32 v2, v2, v3\nv_lshlrev_b32 v2, 4, v2")
        a("v_mul_lo_u32 v1, v1, s41")
        a("v_xor_b32 v2, s75, v2\nv_xor_b32 v6, 64, v2\nv_add_u32 v6, v1, v6\nv_add_u32 v1, v1, v2")

    def tile_mfma(self, nchunk):
        a = self.a
        BF, AF = 8, 40
        self.tr_addr(L_TILE)
        a(f"v_and_b32 v2, 7, v0\nv_mul_u32_u24 v2, {XP}, v2\nv_lshrrev_b32 v3, 4, v0\nv_lshl_add_u32 v2, v3, 4, v2\nv_add_u32 v2, s42, v2")
        def rd(m):
            b = BF + 4 * (m % 7); af = AF + 4 * (m % 7)
            a(f"ds_read_b64_tr_b16 v[{b}:{b+1}], v1 offset:{4096*m}")
            a(f"ds_read_b64_tr_b16 v[{b+2}:{b+3}], v1 offset:{4096*m+512}")
            a(f"ds_read_b128 v[{af}:{af+3}], v2 offset:{64*m}")
        def mm(m):
            b = BF + 4 * (m % 7); af = AF + 4 * (m % 7)
            a(f"v_mfma_f32_16x16x32_bf16 v[4:7], v[{af}:{af+3}], v[{b}:{b+3}], {'0' if m == 0 else 'v[4:7]'}")
        for m in range(4):
            rd(m)
        for m in range(nchunk):
            if m + 4 < nchunk:
                a("s_waitcnt lgkmcnt(9)"); mm(m); rd(m + 4)
            else:
                a(f"s_waitcnt lgkmcnt({3*(nchunk-1-m)})"); mm(m)

    def helper(self):
        a = self.a; o = self.o
        a("L_helper:")
        a.c("================= helper wave =================")
        a("s_setprio 3")
        a(f"s_sub_u32 s{sW}, s3, 8")
        if not o.earlybar:
            a(f"v_mov_b32 v1, {L_CNT}\nv_mov_b32 v2, 0\nv_mov_b32 v3, 0\nv_mov_b32 v4, 0\nv_mov_b32 v5, 0")
            a(f"s_cmp_lg_u32 s{sW}, 0\ns_cbranch_scc1 L_h_noinit")
            self.setexec(1, 0)
            a("ds_write_b128 v1, v[2:5]\nds_write_b128 v1, v[2:5] offset:16")
            a("s_mov_b64 exec, -1")
            a("L_h_noinit:")
        cq, c1, c2 = o.cntq, o.cnt1, o.cnt2
        assert sum(cq) == 128 and sum(c1) == 56 and sum(c2) == 56
        for x in range(8):
            assert cq[x] + c1[x] + c2[x] <= 32
        pref = lambda c: [sum(c[:i]) for i in range(8)]
        def table(vals, dst):
            lo, hi = pack8(vals)
            a(f"s_mov_b32 s76, {hex(lo)}\ns_mov_b32 s77, {hex(hi)}")
            a(f"s_lshr_b64 s[76:77], s[76:77], s78\ns_and_b32 s{dst}, s76, 0xff")
        a(f"s_lshl_b32 s78, s{sKVH}, 3")
        table(cq, 40); table([cq[x] + c1[x] for x in range(8)], 41); table([cq[x] + c1[x] + c2[x] for x in range(8)], 42)
        table(pref(cq), 43)
        table([(pref(c1)[x] - cq[x]) & 0xff for x in range(8)], 44)
        table([(pref(c2)[x] - cq[x] - c1[x]) & 0xff for x in range(8)], 46)
        if 'helpers' in o.skip:
            self.after_karg()
            srd(a, 48, sWS, WS_SIZE)
            a("s_branch L_h_tail" if o.earlybar else "s_barrier\ns_branch L_h_tail")
        a(f"s_cmp_lt_u32 s{sJ}, s40\ns_cbranch_scc1 L_h_q")
        a(f"s_cmp_lt_u32 s{sJ}, s41\ns_cbranch_scc1 L_h_m1")
        a(f"s_cmp_lt_u32 s{sJ}, s42\ns_cselect_b32 s45, 2, 3")
        a(f"s_add_u32 s47, s46, s{sJ}\ns_and_b32 s47, s47, 0xff")
        self.after_karg()
        srd(a, 48, sWS, WS_SIZE)
        if o.touch: self.touch_pages()
        if not o.earlybar:
            a("s_barrier")
        self.tag_setup()
        self.xid_publish()
        a("s_branch L_h_qgather")
        a("L_h_q:")
        a(f"s_add_u32 s47, s43, s{sJ}\ns_and_b32 s47, s47, 0xff")
        a("s_and_b32 s79, s47, 1\ns_lshr_b32 s76, s47, 1")
        a(f"s_mul_i32 s40, s79, {224*8192}\ns_lshl_b32 s77, s76, 7\ns_add_u32 s40, s40, s77")
        a("s_mov_b32 s41, 8192")
        a(f"s_mov_b32 s42, {L_X}")
        a(f"s_lshr_b32 s43, s76, 3\ns_lshl_b32 s43, s43, 15\ns_and_b32 s77, s76, 7\ns_lshl_b32 s77, s77, 8\ns_add_u32 s43, s43, s77\ns_lshl_b32 s77, s79, 11\ns_add_u32 s43, s43, s77\ns_add_u32 s43, s43, {WS_QP}")
        a("s_mov_b32 s44, 4096\ns_mov_b32 s45, 0")
        self.after_karg()
        srd(a, 52, sWQ, 448 * 8192)
        a("s_branch L_h_tile")
        a("L_h_m1:")
        a(f"s_add_u32 s47, s44, s{sJ}\ns_and_b32 s47, s47, 0xff")
        a("s_and_b32 s79, s47, 1\ns_lshr_b32 s76, s47, 1")
        a(f"s_mul_i32 s40, s79, {224*3584}\ns_lshl_b32 s77, s76, 7\ns_add_u32 s40, s40, s77")
        a("s_mov_b32 s41, 3584")
        a(f"s_mul_i32 s42, s79, 448\ns_add_u32 s42, s42, {L_Y}")
        a(f"s_mul_i32 s43, s79, {8*7168}\ns_lshl_b32 s77, s76, 8\ns_add_u32 s43, s43, s77\ns_add_u32 s43, s43, {WS_HP}")
        a("s_mov_b32 s44, 7168\ns_mov_b32 s45, 1")
        self.after_karg()
        srd(a, 52, sW1, 448 * 3584)
        a("L_h_tile:")
        a(f"s_and_b32 s75, s{sW}, 1\ns_lshl_b32 s75, s75, 6")
        self.tile_params_lane()
        a(f"s_mul_i32 s75, s{sW}, 56")
        a("s_lshl_b32 s76, s75, 7")
        a("s_mul_i32 s75, s75, s41\ns_add_u32 s75, s75, s40")
        a("s_lshl_b32 s77, s41, 3")
        def tl(i):
            a(f"s_add_u32 m0, s76, {L_TILE + 1024*i}")
            a(f"buffer_load_dwordx4 v{1 if i % 2 == 0 else 6}, s[52:55], s75 offen {o.tpol} lds")
            a("s_add_u32 s75, s75, s77")
        srd(a, 56, sX, 7168)
        a("v_lshlrev_b32 v3, 4, v0")
        a(f"s_lshl_b32 s78, s{sW}, 1\ns_mul_i32 s80, s78, {XP}\ns_mul_i32 s78, s78, 896")
        a("s_cmp_eq_u32 s45, 0\ns_cbranch_scc0 L_h_xfull")
        a("s_mul_i32 s79, s79, 448\ns_add_u32 s78, s78, s79")
        self.setexec(0x0fffffff, 0)
        a("s_branch L_h_xgo")
        a("L_h_xfull:")
        self.setexec(0xffffffff, 0x00ffffff)
        a("L_h_xgo:")
        a(f"s_add_u32 m0, s80, {L_X}")
        a("buffer_load_dwordx4 v3, s[56:59], s78 offen lds")
        a(f"s_add_u32 s78, s78, 896\ns_add_u32 m0, s80, {L_X + XP}")
        a("buffer_load_dwordx4 v3, s[56:59], s78 offen lds")
        a("s_mov_b64 exec, -1")
        for i in range(min(o.hpre, 7)):
            tl(i)
        srd(a, 48, sWS, WS_SIZE)
        if not o.earlybar:
            a("s_barrier")
        for i in range(min(o.hpre, 7), 7):
            tl(i)
        self.stamp(1)
        self.tag_setup()
        a("s_waitcnt vmcnt(0)")
        self.lds_signal(C_A0, 3, 4)
        if o.touch: self.touch_pages()
        self.lds_wait(C_A0, 4, 3, 4)
        a("s_cmp_eq_u32 s45, 0\ns_cbranch_scc1 L_h_mm")
        self.layernorm()
        a("s_waitcnt lgkmcnt(0)")
        self.lds_signal(C_A1, 3, 4)
        self.lds_wait(C_A1, 4, 3, 4)
        a("L_h_mm:")
        self.stamp(2)
        self.tile_mfma(7)
        a(f"s_lshl_b32 s75, s{sW}, 6\ns_add_u32 s43, s43, s75")
        a("s_nop 7")
        self.stamp(10)
        self.publish_f32(4, 43, 44, 70)
        self.stamp(3)
        self.xid_publish()
        a("L_h_qgather:")
        self.q_issue()
        a("s_cmp_eq_u32 s45, 2\ns_cbranch_scc1 L_h_qh")
        self.q_finish("vmcnt(0)")
        self.stamp(4)
        a("s_branch L_h_noh")
        a("L_h_qh:")
        self.h_issue()
        self.q_finish("vmcnt(5)")
        self.stamp(4)
        self.h_finish()
        a("s_waitcnt lgkmcnt(0)")
        a("L_h_noh:")
        self.stamp(8)
        WB = 100
        a(f"s_cmp_eq_u32 s{sJJ}, 255\ns_cbranch_scc1 L_h_noprep")
        a(f"s_cmp_lg_u32 s{sW}, 3\ns_cbranch_scc1 L_h_noprep")
        self.finalprep()
        a("L_h_noprep:")
        a(f"s_setprio {o.woprio}")
        a("s_cmp_eq_u32 s45, 2\ns_cbranch_scc0 L_h_now2")
        srd(a, 52, sW2, 1792 * 896)
        a("s_and_b32 s76, s47, 7\ns_lshr_b32 s77, s47, 3")
        a(f"s_mul_i32 s40, s76, {224*896}\ns_lshl_b32 s78, s77, 7\ns_add_u32 s40, s40, s78")
        a(f"s_mov_b32 s41, 896\ns_mov_b32 s42, {L_Y}")
        a(f"s_lshl_b32 s43, s77, 11\ns_lshl_b32 s78, s76, 6\ns_add_u32 s43, s43, s78\ns_lshl_b32 s78, s{sW}, 9\ns_add_u32 s43, s43, s78\ns_add_u32 s46, s43, {WS_MP}")
        a(f"s_and_b32 s75, s{sW}, 1\ns_lshl_b32 s75, s75, 6")
        self.tile_params_lane()
        a(f"s_mul_i32 s75, s{sW}, 56\ns_lshl_b32 s76, s75, 7\ns_mul_i32 s75, s75, 896\ns_add_u32 s75, s75, s40")
        for i in range(7):
            a(f"s_add_u32 m0, s76, {L_TILE + 1024*i}")
            a(f"buffer_load_dwordx4 v{1 if i % 2 == 0 else 6}, s[52:55], s75 offen {o.tpol} lds")
            if i < 6:
                a(f"s_add_u32 s75, s75, {8*896}")
        a("L_h_now2:")
        a(f"s_cmp_eq_u32 s{sJJ}, 255\ns_cbranch_scc1 L_h_nowo")
        srd(a, 60, sWO, 4096 * 896)
        a("s_mov_b32 s41, 896\ns_mov_b32 s75, 0")
        self.tile_params_lane()
        a(f"s_and_b32 s75, s{sJJ}, 3\ns_lshl_b32 s75, s75, 7\ns_lshl_b32 s76, s{sKVH}, 9\ns_add_u32 s75, s75, s76")
        a(f"s_lshl_b32 s76, s{sW}, 5\ns_add_u32 s75, s75, s76\ns_mul_i32 s75, s75, 896")
        a(f"s_lshr_b32 s76, s{sJJ}, 2\ns_lshl_b32 s76, s76, 7\ns_add_u32 s75, s75, s76")
        a(f"s_lshl_b32 s76, s{sW}, 12")
        for i in range(4):
            if 'nowo' in o.skip: break
            a(f"s_add_u32 m0, s76, {L_WO + 1024*i}")
            a(f"buffer_load_dwordx4 v{1 if i % 2 == 0 else 6}, s[60:63], s75 offen {o.tpol} lds")
            if i < 3:
                a(f"s_add_u32 s75, s75, {8*896}")
        a("L_h_nowo:")
        a("s_setprio 3")
        self.stamp(5)
        a("s_barrier")
        if 'tail' in o.skip:
            a("s_barrier\ns_branch L_fin")
        a("s_waitcnt vmcnt(0)")
        self.lds_signal(C_WO, 3, 4)
        self.lds_wait(C_WO, 4, 3, 4)
        self.stamp(9)
        a("s_cmp_eq_u32 s45, 2\ns_cbranch_scc0 L_h_nom2")
        self.tile_mfma(7)
        a(f"s_mov_b32 s44, {28*512}")
        a("s_nop 7")
        self.publish_f32(4, 46, 44, 70)
        a("L_h_nom2:")
        a(f"s_cmp_eq_u32 s{sJJ}, 255\ns_cbranch_scc1 L_h_tail1")
        self.tr_addr(L_WO)
        for m in range(4):
            a(f"ds_read_b64_tr_b16 v[{WB+4*m}:{WB+4*m+1}], v1 offset:{4096*m}")
            a(f"ds_read_b64_tr_b16 v[{WB+4*m+2}:{WB+4*m+3}], v1 offset:{4096*m+512}")
        a(f"s_lshr_b32 s75, s{sJJ}, 2\ns_lshl_b32 s75, s75, 2\ns_add_u32 s75, s75, s{sW}\ns_lshl_b32 s43, s75, 11")
        a(f"s_lshl_b32 s75, s{sKVH}, 2\ns_and_b32 s76, s{sJJ}, 3\ns_add_u32 s75, s75, s76\ns_lshl_b32 s75, s75, 6")
        a(f"s_add_u32 s43, s43, s75\ns_add_u32 s43, s43, {WS_BP}\ns_mov_b32 s44, {28*2048}")
        a(f"v_and_b32 v2, 7, v0\nv_mul_u32_u24 v2, 272, v2\nv_lshrrev_b32 v3, 4, v0\nv_lshl_add_u32 v2, v3, 4, v2\nv_add_u32 v2, {L_A}, v2")
        a("v_lshrrev_b32 v70, 4, v0\nv_lshlrev_b32 v70, 2, v70\nv_mul_lo_u32 v70, v70, s44\nv_and_b32 v71, 15, v0\nv_lshl_add_u32 v70, v71, 2, v70")
        a(f"v_mov_b32 v71, s{sT8}")
        for r in range(4):
            a(f"s_mul_i32 s{76+r}, s44, {r}\ns_add_u32 s{76+r}, s{76+r}, s43")
        a("s_waitcnt lgkmcnt(0)")
        self.stamp(6)
        a("s_barrier")
        for m in range(4):
            a(f"ds_read_b128 v[{40+4*m}:{40+4*m+3}], v2 offset:{64*m}")
        for m in range(4):
            a(f"s_waitcnt lgkmcnt({3-m})")
            a(f"v_mfma_f32_16x16x32_bf16 v[4:7], v[{40+4*m}:{40+4*m+3}], v[{WB+4*m}:{WB+4*m+3}], {'0' if m == 0 else 'v[4:7]'}")
        self.setexec(0xffffffff, 0)
        for r in range(4):
            a(f"v_and_or_b32 v{72+r}, v{4+r}, s{sFF00}, v71")
        for r in range(4):
            a(f"buffer_store_dword v{72+r}, v70, {SRD_WS}, s{76+r} offen sc1")
        self.stamp(7)
        a("s_branch L_fin")
        a("L_h_tail:")
        self.stamp(5)
        a("s_barrier")
        a("L_h_tail1:")
        a("s_barrier")
        a("s_branch L_fin")

    def touch_pages(self):
        a = self.a
        L = a.label("notouch")
        a(f"s_cmp_lg_u32 s{sW}, 3\ns_cbranch_scc1 {L}")
        a("v_mov_b32 v3, 0")
        self.setexec(1, 0)
        if not self.o.vfirst:
            srd(a, 56, sV, 0x8000000)
            a(f"s_lshl_b32 s75, s{sB}, 3\ns_add_u32 s75, s75, s{sKVH}\ns_lshl_b32 s75, s75, 21\ns_lshl_b32 s76, s{sS}, 17\ns_add_u32 s75, s75, s76\ns_add_u32 s75, s75, 0x180000")
            a("buffer_load_dword v40, v3, s[56:59], s75 offen nt")
        srd(a, 56, sWO, 4096 * 896)
        a(f"s_mul_i32 s75, s{sKVH}, {512*896}")
        a("buffer_load_dword v41, v3, s[56:59], s75 offen nt")
        a(f"s_add_u32 s75, s75, {511*896}")
        a("buffer_load_dword v42, v3, s[56:59], s75 offen nt")
        srd(a, 56, sW2, 1792 * 896)
        a("buffer_load_dword v43, v3, s[56:59], 0 offen nt")
        srd(a, 56, sOUT, 8 * 448 * 2)
        a("buffer_load_dword v44, v3, s[56:59], 0 offen")
        a("s_mov_b64 exec, -1")
        a(f"{L}:")

    def xid_publish(self):
        a = self.a
        if 'noxid' in self.o.skip:
            return
        L = a.label("noxid")
        a(f"s_cmp_lg_u32 s{sW}, 0\ns_cbranch_scc1 {L}")
        a("s_getreg_b32 s75, hwreg(HW_REG_XCC_ID, 0, 4)")
        a("s_and_b32 s75, s75, 7\ns_mul_i32 s75, s75, 6\ns_mov_b32 s76, 1\ns_mov_b32 s77, 0\ns_lshl_b64 s[76:77], s[76:77], s75")
        srd(a, 60, sDBG, 256)
        a(f"v_mov_b32 v8, s76\nv_mov_b32 v9, s77\ns_lshl_b32 s75, s{sKVH}, 5\nv_mov_b32 v3, s75")
        self.setexec(1, 0)
        a("buffer_atomic_add_x2 v[8:9], v3, s[60:63], 0 offen")
        a("s_mov_b64 exec, -1")
        a(f"{L}:")

    def xid_check(self):
        a = self.a
        L = a.label("noxc")
        a(f"s_cmp_lg_u32 s{sW}, 1\ns_cbranch_scc1 {L}")
        a(f"s_lshl_b32 s75, s{sKVH}, 5\ns_add_u32 s78, s{sDBG}, s75\ns_addc_u32 s79, s{sDBG+1}, 0")
        if 'noxid' in self.o.skip:
            a("s_mov_b32 s76, 0\ns_mov_b32 s77, 0")
        else:
            a("s_load_dwordx2 s[76:77], s[78:79], 0 glc")
        a("s_getreg_b32 s75, hwreg(HW_REG_XCC_ID, 0, 4)")
        a("s_and_b32 s75, s75, 7\ns_mul_i32 s75, s75, 6\ns_waitcnt lgkmcnt(0)\ns_lshr_b64 s[76:77], s[76:77], s75\ns_and_b32 s76, s76, 63")
        a("s_cmp_eq_u32 s76, 32\ns_cselect_b32 s75, 1, 0")
        if 'nofast' in self.o.skip:
            a("s_mov_b32 s75, 0")
        a(f"v_mov_b32 v2, {L_FIN+72}\nv_mov_b32 v3, s75")
        self.setexec(1, 0)
        a("ds_write_b32 v2, v3")
        a("s_mov_b64 exec, -1")
        a(f"{L}:")

    def tr_addr(self, lbase):
        a = self.a
        a("v_lshrrev_b32 v1, 4, v0\nv_lshlrev_b32 v1, 3, v1\nv_bfe_u32 v2, v0, 2, 2\nv_add_u32 v1, v1, v2\nv_lshlrev_b32 v1, 7, v1")
        a("v_bfe_u32 v2, v0, 3, 2")
        a(f"v_xor_b32 v2, s{sW}, v2\nv_lshl_add_u32 v1, v2, 5, v1")
        a(f"v_and_b32 v2, 3, v0\nv_lshl_add_u32 v1, v2, 3, v1\nv_add_u32 v1, {lbase}, v1")

    def q_issue(self):
        a = self.a
        a(f"s_lshl_b32 s75, s{sKVH}, 3\ns_add_u32 s75, s75, s{sB}\ns_lshl_b32 s75, s75, 12\ns_lshl_b32 s76, s{sW}, 9\ns_add_u32 s75, s75, s76")
        a(f"s_add_u32 s43, s75, {WS_QP}")
        a("v_lshrrev_b32 v1, 5, v0\nv_lshlrev_b32 v1, 11, v1\nv_and_b32 v2, 31, v0\nv_lshl_add_u32 v1, v2, 4, v1")
        a("s_add_u32 s76, s43, 60")
        self.spoll(76, [(1, 52, 2048 + 7 * 64)], [52], self.o.ssleep1, name='q')
        self.spoll(76, [(1, 52 + i, (i & 7) * 64 + (i >> 3) * 2048) for i in range(16)], [52 + i for i in range(16)], self.o.ssleep, name='q')
        self.stamp(11)
        self.q_load()

    def q_load(self):
        if 'no_q' not in self.o.skip:
            self.a(f"buffer_load_dwordx4 v[8:11], v1, {SRD_WS}, s43 offen sc1")

    def q_finish(self, wait):
        a = self.a
        self.vpoll(self.q_load, [8], 5, 6, 7, self.o.qsleep, name='q', issued=True, wait=wait)
        self.unmask(8, 4)
        for k in range(4):
            a(f"v_mov_b32 v{12+k}, v{8+k}")
        for k in range(4):
            a(f"v_permlane32_swap_b32 v{8+k}, v{12+k}")
        for k in range(4):
            a(f"v_add_f32 v{8+k}, v{8+k}, v{12+k}")
        a("v_cvt_pk_bf16_f32 v8, v8, v9\nv_cvt_pk_bf16_f32 v9, v10, v11")
        a(f"s_lshl_b32 s75, s{sW}, 8\ns_add_u32 s75, s75, {L_Q}\nv_and_b32 v2, 31, v0\nv_lshlrev_b32 v2, 3, v2\nv_add_u32 v2, s75, v2")
        self.setexec(0xffffffff, 0)
        a("ds_write_b64 v2, v[8:9]")
        a("s_mov_b64 exec, -1")
        self.xid_check()
        a("s_waitcnt lgkmcnt(0)")
        self.lds_signal(C_Q, 3, 4)

    def layernorm(self):
        a = self.a
        X = 8; F = 16
        a(f"s_lshl_b32 s75, s{sW}, 1\ns_mul_i32 s75, s75, {XP}")
        a(f"v_lshrrev_b32 v1, 5, v0\nv_mul_u32_u24 v1, {XP}, v1\nv_and_b32 v2, 31, v0\nv_mul_u32_u24 v2, 28, v2\nv_add_u32 v1, v1, v2\nv_add_u32 v1, s75, v1")
        a(f"v_add_u32 v2, {L_X}, v1")
        for i in range(3):
            a(f"ds_read2_b32 v[{X+2*i}:{X+2*i+1}], v2 offset0:{2*i} offset1:{2*i+1}")
        a(f"ds_read_b32 v{X+6}, v2 offset:24")
        a("s_waitcnt lgkmcnt(0)")
        for i in range(7):
            a(f"v_lshlrev_b32 v{F+2*i}, 16, v{X+i}\nv_and_b32 v{F+2*i+1}, 0xffff0000, v{X+i}")
        a(f"v_add_f32 v3, v{F}, v{F+1}")
        for i in range(2, 14):
            a(f"v_add_f32 v3, v3, v{F+i}")
        self.row16_reduce("v_add_f32", 3)
        self.swap_reduce("v_add_f32", 3, 4, 16)
        a("v_mul_f32 v3, 0x3b124925, v3")
        a(f"v_sub_f32 v5, v{F}, v3\nv_mul_f32 v4, v5, v5")
        for i in range(1, 14):
            a(f"v_sub_f32 v5, v{F+i}, v3\nv_fmac_f32 v4, v5, v5")
        self.row16_reduce("v_add_f32", 4)
        self.swap_reduce("v_add_f32", 4, 5, 16)
        a("v_mul_f32 v4, 0x3b124925, v4")
        self.bf16_round(3, 3)
        self.bf16_round(4, 4)
        a("v_add_f32 v4, 0x3727c5ac, v4")
        self.bf16_round(4, 4)
        a("v_sqrt_f32 v4, v4")
        self.bf16_round(4, 4)
        a("v_rcp_f32 v4, v4")
        a(f"v_add_u32 v2, {L_Y}, v1")
        for i in range(7):
            a(f"v_sub_f32 v{F+2*i}, v{F+2*i}, v3\nv_sub_f32 v{F+2*i+1}, v{F+2*i+1}, v3")
            a(f"v_cvt_pk_bf16_f32 v5, v{F+2*i}, v{F+2*i+1}")
            a(f"v_lshlrev_b32 v6, 16, v5\nv_and_b32 v5, 0xffff0000, v5")
            a(f"v_mul_f32 v6, v6, v4\nv_mul_f32 v5, v5, v4")
            a(f"v_cvt_pk_bf16_f32 v{X+i}, v6, v5")
            a(f"ds_write_b32 v2, v{X+i} offset:{4*i}")

    def gelu(self, x, t0, t1):
        a = self.a
        a(f"v_mul_f32 v{t0}, v{x}, v{x}")
        a(f"v_mov_b32 v{t1}, 0xc0135761")
        a(f"v_fmac_f32 v{t1}, 0xbdd2d3e2, v{t0}")
        a(f"v_mul_f32 v{t1}, v{t1}, v{x}")
        a(f"v_exp_f32 v{t1}, v{t1}")
        a(f"v_add_f32 v{t1}, 1.0, v{t1}")
        a(f"v_rcp_f32 v{t1}, v{t1}")
        a(f"v_mul_f32 v{x}, v{x}, v{t1}")

    def h_loads(self):
        a = self.a
        for i in range(4):
            a(f"buffer_load_dwordx4 v[{16+4*i}:{16+4*i+3}], v60, {SRD_WS}, s{64+i} offen sc1")

    def h_issue(self):
        a = self.a
        a(f"s_lshl_b32 s75, s{sW}, 1\ns_mul_i32 s76, s75, 7168\ns_mul_i32 s77, s75, {XP}")
        a(f"s_and_b32 s78, s47, 7\ns_mul_i32 s79, s78, 896\ns_add_u32 s76, s76, s79\ns_add_u32 s40, s76, {WS_HP}")
        a(f"s_add_u32 s46, s77, {L_Y}\ns_mul_i32 s44, s78, 448")
        a("v_min_u32 v61, 55, v0\nv_lshlrev_b32 v60, 4, v61\nv_lshlrev_b32 v61, 3, v61\nv_add_u32 v62, s46, v61")
        a(f"s_add_u32 s75, s40, {7168 + 60}")
        self.spoll(75, [(1, 52, 8 * 7168 + 13 * 64)], [52], self.o.ssleep1, name='h')
        for kh in range(2):
            self.spoll(75, [(1, 52 + i, kh * 8 * 7168 + i * 64) for i in range(14)], [52 + i for i in range(14)], self.o.ssleep, name='h')
        a(f"s_mov_b32 s64, s40\ns_add_u32 s65, s40, {8*7168}\ns_add_u32 s66, s40, 7168\ns_add_u32 s67, s65, 7168")
        srd(a, 56, sB1, 3584)
        a("buffer_load_dwordx2 v[48:49], v61, s[56:59], s44 offen")
        if 'no_h' not in self.o.skip:
            self.h_loads()

    def h_finish(self):
        a = self.a
        self.vpoll(self.h_loads, [16, 20, 24, 28], 5, 6, 7, 8, name='h', issued=True)
        self.unmask(16, 16)
        a("v_lshlrev_b32 v50, 16, v48\nv_and_b32 v51, 0xffff0000, v48\nv_lshlrev_b32 v52, 16, v49\nv_and_b32 v53, 0xffff0000, v49")
        for bl in range(2):
            r = 16 + 8 * bl
            for k in range(4):
                a(f"v_add_f32 v{r+k}, v{r+k}, v{r+4+k}")
            for k2 in range(2):
                x0, x1 = r + 2 * k2, r + 2 * k2 + 1
                a(f"v_cvt_pk_bf16_f32 v{r+4}, v{x0}, v{x1}")
                a(f"v_lshlrev_b32 v{x0}, 16, v{r+4}\nv_and_b32 v{x1}, 0xffff0000, v{r+4}")
                a(f"v_add_f32 v{x0}, v{x0}, v{50+2*k2}\nv_add_f32 v{x1}, v{x1}, v{51+2*k2}")
                a(f"v_cvt_pk_bf16_f32 v{r+4}, v{x0}, v{x1}")
                a(f"v_lshlrev_b32 v{x0}, 16, v{r+4}\nv_and_b32 v{x1}, 0xffff0000, v{r+4}")
            for k in range(4):
                self.gelu(r + k, 36 + 2 * k, 37 + 2 * k)
            a(f"v_cvt_pk_bf16_f32 v{r}, v{r}, v{r+1}\nv_cvt_pk_bf16_f32 v{r+1}, v{r+2}, v{r+3}")
            a(f"ds_write_b64 v62, v[{r}:{r+1}] offset:{XP*bl}")

    def finalprep(self):
        a = self.a
        if 'notouch' not in self.o.skip:
            srd(a, 56, sOUT, 8 * 448 * 2)
            a("v_mov_b32 v3, 0")
            self.setexec(1, 0)
            a("buffer_load_dword v40, v3, s[56:59], 0 offen")
            a("s_mov_b64 exec, -1")
        srd(a, 56, sX, 7168)
        a(f"s_mul_i32 s75, s{sKVH}, 896")
        a("v_lshlrev_b32 v3, 4, v0")
        a("v_mov_b32 v8, 0\nv_mov_b32 v9, 0\nv_mov_b32 v10, 0\nv_mov_b32 v11, 0")
        self.setexec(0xffffffff, 0x00ffffff)
        a("buffer_load_dwordx4 v[8:11], v3, s[56:59], s75 offen")
        a("s_mov_b64 exec, -1")
        srd(a, 56, sGW, 896)
        a("buffer_load_dwordx4 v[12:15], v3, s[56:59], 0 offen")
        srd(a, 56, sB2, 896)
        a(f"s_lshl_b32 s75, s{sJJ}, 5")
        a("v_and_b32 v4, 3, v0\nv_lshlrev_b32 v4, 3, v4")
        a("buffer_load_dwordx2 v[16:17], v4, s[56:59], s75 offen")
        a("s_waitcnt vmcnt(0)")
        a("v_mov_b32 v24, 0")
        for i in range(4):
            a(f"v_lshlrev_b32 v25, 16, v{8+i}\nv_lshlrev_b32 v26, 16, v{12+i}\nv_mul_f32 v25, v25, v26")
            a(f"v_and_b32 v26, 0xffff0000, v{8+i}\nv_and_b32 v27, 0xffff0000, v{12+i}\nv_mul_f32 v26, v26, v27")
            a("v_cvt_pk_bf16_f32 v25, v25, v26")
            a("v_lshlrev_b32 v26, 16, v25\nv_and_b32 v25, 0xffff0000, v25\nv_add_f32 v24, v24, v26\nv_add_f32 v24, v24, v25")
        self.row16_reduce("v_add_f32", 24)
        self.swap_reduce("v_add_f32", 24, 25, 16)
        self.swap_reduce("v_add_f32", 24, 25, 32)
        self.bf16_round(24, 24)
        a("v_mul_f32 v24, 0xbfb8aa3b, v24\nv_exp_f32 v24, v24\nv_add_f32 v24, 1.0, v24\nv_rcp_f32 v24, v24")
        self.bf16_round(24, 24)
        a("v_sub_f32 v25, 1.0, v24")
        self.bf16_round(25, 25)
        a("v_lshlrev_b32 v28, 16, v16\nv_and_b32 v29, 0xffff0000, v16\nv_lshlrev_b32 v30, 16, v17\nv_and_b32 v31, 0xffff0000, v17")
        a(f"v_lshlrev_b32 v4, 1, v4\nv_add_u32 v4, {L_FIN}, v4\nv_mov_b32 v5, {L_FIN+64}")
        self.setexec(0xf, 0)
        a("ds_write_b128 v4, v[28:31]")
        self.setexec(1, 0)
        a("ds_write_b64 v5, v[24:25]")
        a("s_mov_b64 exec, -1")
        a("s_waitcnt lgkmcnt(0)")

    def build(self):
        a = self.a
        self.prologue()
        self.streaming()
        self.helper()
        a("L_fin:")
        self.dump_stamps()
        a("L_end:")
        a("s_endpgm")
        body = a.text()
        body = "\n".join((l.replace("@POL@", self.o.stpol) if "buffer_store" in l else l.replace("@POL@", self.o.ldpol)) for l in body.split("\n"))
        hdr = open("cdna_kernels/" + NAME + ".s.ref").read().split("; Override launch geometry")[0]
        out = hdr
        out += "; Override launch geometry by editing the next line (default: block=256,\n"
        out += f"; @launch grid=(256,1,1) block=(768,1,1) lds={LDS_BYTES}\n"
        out += '.amdgcn_target "amdgcn-amd-amdhsa--gfx950"\n.text\n'
        out += f".globl {KNAME}\n.p2align 8\n.type {KNAME},@function\n{KNAME}:\n"
        out += body
        out += f""".section .rodata,"a"
.p2align 6
.amdhsa_kernel {KNAME}
  .amdhsa_next_free_vgpr 168
  .amdhsa_next_free_sgpr 102
  .amdhsa_accum_offset 168
  .amdhsa_group_segment_fixed_size 0
  .amdhsa_kernarg_size 112
  .amdhsa_user_sgpr_count 2
  .amdhsa_user_sgpr_kernarg_segment_ptr 1
  .amdhsa_system_sgpr_workgroup_id_x 1
.end_amdhsa_kernel
"""
        return out

def parse(argv):
    p = argparse.ArgumentParser()
    p.add_argument("-o", default="cdna_kernels/" + NAME + ".s")
    p.add_argument("--stamps", action="store_true")
    p.add_argument("--dbgtime", action="store_true")
    p.add_argument("--rot", default="1,1,1,0")
    p.add_argument("--skip", default="")
    p.add_argument("--ldpol", default="sc1")
    p.add_argument("--stpol", default="sc1")
    p.add_argument("--npre", type=int, default=1)
    p.add_argument("--kmap", default="contig")
    p.add_argument("--kwin", type=int, default=4)
    p.add_argument("--vwin_n", type=int, default=8)
    p.add_argument("--order", default="kv")
    p.add_argument("--sprio", default="")
    p.add_argument("--hpre", type=int, default=7)
    p.add_argument("--woprio", type=int, default=0)
    p.add_argument("--qsleep", type=int, default=8)
    p.add_argument("--ssleep", type=int, default=2)
    p.add_argument("--fstag", type=int, default=4)
    p.add_argument("--ssleep1", type=int, default=8)
    p.add_argument("--tpol", default="nt")
    p.add_argument("--fast", action="store_true")
    p.add_argument("--earlybar", action="store_true")
    p.add_argument("--asleep", type=int, default=1)
    p.add_argument("--touch", action="store_true")
    p.add_argument("--vfirst", action="store_true")
    p.add_argument("--outtouch", action="store_true")
    p.add_argument("--kvpol", default="nt")
    p.add_argument("--cntq", default="16,16,16,16,16,16,16,16")
    p.add_argument("--cnt1", default="7,7,7,7,7,7,7,7")
    p.add_argument("--cnt2", default="7,7,7,7,7,7,7,7")
    o = p.parse_args(argv)
    o.rot = tuple(int(x) for x in o.rot.split(","))
    o.skip = set(x for x in o.skip.split(",") if x)
    if not o.fast:
        o.skip.add('noxid')
    if not o.outtouch:
        o.skip.add('notouch')
    for k in ("cntq", "cnt1", "cnt2"):
        setattr(o, k, [int(x) for x in getattr(o, k).split(",")])
    return o

if __name__ == "__main__":
    o = parse(sys.argv[1:])
    open(o.o, "w").write(Gen(o).build())
    print("wrote", o.o)
```

```python
import sys, argparse
from emit import Asm

NAME = "gated_mix__sliding_block_cached__mixer_channel_mlp__decode"
KNAME = NAME + "_kernel"

WS_QP = 0x100000
WS_HP = 0x180000
WS_OP = 0x200000
WS_ST = 0x300000
WS_BP = 0x400000
WS_MP = 0x500000
WS_XI = 0x5c0000
WS_DBG = 0x600000
WS_SIZE = 0x800000

L_TILE = 0
L_X = 57344
L_Y = 64512
L_WO = 71680
L_Q = 88064
L_P = 89088
L_OP = 90112
L_ST = 106496
L_A = 106624
L_FIN = 108800
L_CNT = 108928
LDS_BYTES = 109056
C_A0, C_A1, C_WO, C_Q = 0, 4, 8, 12

SPIN_LIMIT = 20000

sX, sK, sV, sWQ, sWO, sW1, sB1, sW2, sB2, sGW, sOUT, sDBG, sWS = 4, 6, 8, 10, 12, 16, 18, 20, 22, 24, 26, 28, 30
sT, sT8, sT88 = 32, 33, 34
sKVH, sJ, sB, sS, sJJ = 35, 36, 37, 38, 39
SRD_WS = "s[48:51]"
sFF00 = 72
sPSEL = 73
sW = 74
STAMP0 = 84
DPP = "row_mask:0xf bank_mask:0xf"

def srd(a, base, ptr, nbytes):
    a(f"s_mov_b32 s{base}, s{ptr}")
    a(f"s_and_b32 s{base+1}, s{ptr+1}, 0xffff")
    a(f"s_mov_b32 s{base+2}, {nbytes}")
    a(f"s_mov_b32 s{base+3}, 0x20000")

def pack8(vals):
    v = 0
    for i, x in enumerate(vals):
        assert 0 <= x < 256
        v |= x << (8 * i)
    return v & 0xffffffff, v >> 32

class Gen:
    def __init__(self, opt):
        self.o = opt
        self.a = Asm()

    def stamp(self, idx):
        if self.o.stamps:
            self.a(f"s_memrealtime s[{STAMP0-2}:{STAMP0-1}]")
            self.a("s_waitcnt lgkmcnt(0)")
            self.a(f"s_mov_b32 s{STAMP0+idx}, s{STAMP0-2}")

    def dump_stamps(self):
        if not self.o.stamps:
            return
        a = self.a
        a("s_mov_b64 exec, -1")
        a("s_lshl_b32 s80, s2, 4\ns_add_u32 s80, s80, s3\ns_lshl_b32 s80, s80, 6")
        a(f"s_add_u32 s80, s80, {WS_DBG}")
        a("v_mov_b32 v1, 0")
        for i in range(16):
            a(f"v_writelane_b32 v1, s{STAMP0+i}, {i}")
        a("v_mbcnt_lo_u32_b32 v2, -1, 0\nv_mbcnt_hi_u32_b32 v2, -1, v2\nv_lshlrev_b32 v2, 2, v2")
        a("s_mov_b32 exec_lo, 0xffff\ns_mov_b32 exec_hi, 0")
        a(f"buffer_store_dword v1, v2, {SRD_WS}, s80 offen")
        a("s_waitcnt vmcnt(0)")

    def setexec(self, lo, hi):
        self.a(f"s_mov_b32 exec_lo, {hex(lo)}\ns_mov_b32 exec_hi, {hex(hi)}")

    def lds_signal(self, cnt_off, v0, v1):
        a = self.a
        a(f"v_mov_b32 v{v0}, {L_CNT + cnt_off}")
        a(f"v_mov_b32 v{v1}, 1")
        self.setexec(1, 0)
        a(f"ds_add_u32 v{v0}, v{v1}")
        a("s_mov_b64 exec, -1")

    def lds_wait(self, cnt_off, target, v0, v1, sleep=1):
        a = self.a
        L = a.label("lw"); Ld = a.label("lwd")
        a(f"v_mov_b32 v{v0}, {L_CNT + cnt_off}")
        a(f"s_mov_b32 s81, 0")
        a(f"{L}:")
        a(f"ds_read_b32 v{v1}, v{v0}")
        a("s_waitcnt lgkmcnt(0)")
        a(f"v_readfirstlane_b32 s80, v{v1}")
        a(f"s_cmp_ge_u32 s80, {target}")
        a(f"s_cbranch_scc1 {Ld}")
        a(f"s_add_u32 s81, s81, 1")
        a(f"s_cmp_ge_u32 s81, {SPIN_LIMIT*8}")
        a(f"s_cbranch_scc1 {Ld}")
        a(f"s_sleep {sleep}")
        a(f"s_branch {L}")
        a(f"{Ld}:")

    def check(self, r, width, t8, vbad, vt, vu, first):
        a = self.a
        if width == 2:
            if first:
                a(f"v_xor_b32 v{vbad}, s{sT}, v{r+1}")
            else:
                a(f"v_xor_b32 v{vt}, s{sT}, v{r+1}\nv_or_b32 v{vbad}, v{vbad}, v{vt}")
            assert not t8
            return
        a(f"v_xor_b32 v{vt}, s{sT}, v{r+1}")
        a(f"v_xor_b32 v{vu}, s{sT}, v{r+3}")
        if first:
            a(f"v_or_b32 v{vbad}, v{vt}, v{vu}")
        else:
            a(f"v_or3_b32 v{vbad}, v{vbad}, v{vt}, v{vu}")
        if t8:
            a(f"v_perm_b32 v{vt}, v{r}, v{r+2}, s{sPSEL}")
            a(f"v_xor_b32 v{vt}, s{sT88}, v{vt}")
            a(f"v_or_b32 v{vbad}, v{vbad}, v{vt}")

    def poll(self, loads, regs, vbad, vt, vu, sleep=2, pre=None, name="", width=4, t8=True):
        a = self.a
        if name and ('no_' + name) in self.o.skip:
            return
        if name and ('once_' + name) in self.o.skip:
            loads()
            a("s_waitcnt vmcnt(0)")
            return
        if name and ('nopre_' + name) in self.o.skip:
            pre = None
        if pre is not None:
            emit, pregs, (lo, hi), psleep = pre
            P = a.label("pre"); Pd = a.label("pred")
            a("s_mov_b32 s81, 0")
            a(f"{P}:")
            self.setexec(lo, hi)
            emit()
            a("s_waitcnt vmcnt(0)")
            for i, r in enumerate(pregs):
                if i == 0:
                    a(f"v_xor_b32 v{vbad}, s{sT}, v{r+1}")
                else:
                    a(f"v_xor_b32 v{vt}, s{sT}, v{r+1}\nv_or_b32 v{vbad}, v{vbad}, v{vt}")
            a(f"v_cmp_ne_u32 vcc, 0, v{vbad}")
            a("s_mov_b64 exec, -1")
            a(f"s_cbranch_vccz {Pd}")
            a("s_add_u32 s81, s81, 1")
            a(f"s_cmp_ge_u32 s81, {SPIN_LIMIT}")
            a(f"s_cbranch_scc1 {Pd}")
            a(f"s_sleep {psleep}")
            a(f"s_branch {P}")
            a(f"{Pd}:")
        L = a.label("poll"); Ld = a.label("polld")
        a("s_mov_b32 s81, 0")
        a(f"{L}:")
        loads()
        a("s_waitcnt vmcnt(0)")
        for i, r in enumerate(regs):
            self.check(r, width, t8, vbad, vt, vu, i == 0)
        a(f"v_cmp_ne_u32 vcc, 0, v{vbad}")
        a(f"s_cbranch_vccz {Ld}")
        a("s_add_u32 s81, s81, 1")
        a(f"s_cmp_ge_u32 s81, {SPIN_LIMIT}")
        a(f"s_cbranch_scc1 {Ld}")
        a(f"s_sleep {sleep}")
        a(f"s_branch {L}")
        a(f"{Ld}:")
        if t8:
            for r in regs:
                a(f"v_and_b32 v{r}, s{sFF00}, v{r}")
                a(f"v_and_b32 v{r+2}, s{sFF00}, v{r+2}")

    def bf16_round(self, dst, src):
        a = self.a
        a(f"v_cvt_pk_bf16_f32 v{dst}, v{src}, v{src}")
        a(f"v_and_b32 v{dst}, 0xffff0000, v{dst}")

    def row16_reduce(self, op, v):
        for r in (8, 4, 2, 1):
            self.a(f"{op}_dpp v{v}, v{v}, v{v} row_ror:{r} {DPP}")

    def swap_reduce(self, op, v, t, which):
        a = self.a
        a(f"v_mov_b32 v{t}, v{v}")
        a(f"v_permlane{which}_swap_b32 v{v}, v{t}")
        a(f"{op} v{v}, v{v}, v{t}")

    def prologue(self):
        a = self.a
        a("s_cmp_ge_u32 s2, 256")
        a("s_cbranch_scc1 L_end")
        a("s_load_dwordx16 s[4:19], s[0:1], 0")
        a("s_load_dwordx8 s[20:27], s[0:1], 64")
        a("s_load_dwordx4 s[28:31], s[0:1], 96")
        if self.o.stamps:
            for i in range(16):
                a(f"s_mov_b32 s{STAMP0+i}, 0")
            a(f"s_memrealtime s[{STAMP0-2}:{STAMP0-1}]")
        a("v_lshrrev_b32 v1, 6, v0")
        a("v_and_b32 v0, 63, v0")
        a("v_readfirstlane_b32 s3, v1")
        a(f"s_and_b32 s{sKVH}, s2, 7")
        a(f"s_lshr_b32 s{sJ}, s2, 3")
        a(f"s_and_b32 s{sB}, s{sJ}, 7")
        a(f"s_lshr_b32 s{sS}, s{sJ}, 3")
        a(f"s_sub_u32 s40, s{sJ}, 4")
        a(f"s_cmp_lt_u32 s{sJ}, 4")
        a(f"s_cselect_b32 s{sJJ}, 255, s40")
        a(f"s_mov_b32 s{sFF00}, 0xffffff00")
        a(f"s_mov_b32 s{sPSEL}, 0x0c0c0400")
        a("s_cmp_ge_u32 s3, 8")
        a("s_cbranch_scc1 L_helper")

    def after_karg(self):
        a = self.a
        a("s_waitcnt lgkmcnt(0)")
        if self.o.stamps:
            a(f"s_mov_b32 s{STAMP0}, s{STAMP0-2}")
        a(f"s_load_dword s{sT}, s[{sWS}:{sWS+1}], 0")

    def tag_setup(self):
        a = self.a
        a("s_waitcnt lgkmcnt(0)")
        a(f"s_add_u32 s{sT}, s{sT}, 1")
        a(f"s_mul_i32 s{sT8}, s{sT}, 0x9E3779B1")
        a(f"s_lshr_b32 s{sT8}, s{sT8}, 24")
        a(f"s_lshl_b32 s{sT88}, s{sT8}, 8")
        a(f"s_or_b32 s{sT88}, s{sT88}, s{sT8}")

    def streaming(self):
        a = self.a; o = self.o
        KD, VD = 8, 72
        QA = 136
        D0 = 144
        XS = 148
        SEL = 156
        vKo, vVo = 1, 2
        a.c("================= streaming wave =================")
        a(f"s_mov_b32 s{sW}, s3")
        a(f"s_lshl_b32 s75, s{sB}, 3\ns_add_u32 s75, s75, s{sKVH}\ns_lshl_b32 s75, s75, 21")
        a(f"s_lshl_b32 s76, s{sS}, 17\ns_add_u32 s75, s75, s76")
        a(f"s_lshl_b32 s76, s{sW}, 14\ns_add_u32 s75, s75, s76")
        a(f"s_add_u32 s75, s75, 0x180000")
        mb, mk, mw, ms = o.rot
        terms = [(sB, mb), (sKVH, mk), (sW, mw), (sS, ms)]
        a("s_mov_b32 s76, 0")
        for reg, m in terms:
            if m == 1:
                a(f"s_add_u32 s76, s76, s{reg}")
            elif m:
                a(f"s_mul_i32 s77, s{reg}, {m}\ns_add_u32 s76, s76, s77")
        a("s_and_b32 s76, s76, 7\ns_lshl_b32 s76, s76, 11")
        for t in range(8):
            if t:
                a(f"s_add_u32 s76, s76, 0x800\ns_and_b32 s76, s76, 0x3fff")
            a(f"s_add_u32 s{40+t}, s76, s75")
        a(f"v_lshrrev_b32 v3, 4, v0\nv_lshlrev_b32 v{vKo}, 6, v3")
        a(f"v_bfe_u32 v4, v0, 2, 2\nv_lshl_add_u32 v{vKo}, v4, 9, v{vKo}")
        a(f"v_and_b32 v4, 3, v0\nv_lshl_add_u32 v{vKo}, v4, 4, v{vKo}")
        a(f"v_and_b32 v4, 15, v0\nv_lshlrev_b32 v4, 4, v4\nv_lshl_add_u32 v{vVo}, v3, 9, v4")
        self.after_karg()
        srd(a, 52, sK, 0x8000000)
        def ld(m, isv):
            t, c = m // 2, m % 2
            r = (VD if isv else KD) + 4 * m
            a(f"buffer_load_dwordx4 v[{r}:{r+3}], v{vVo if isv else vKo}, {'s[56:59]' if isv else 's[52:55]'}, s{40+t} offen offset:{c*256} nt")
        npre = o.npre
        for m in range(npre):
            ld(m, False)
        a("s_barrier")
        srd(a, 56, sV, 0x8000000)
        srd(a, 48, sWS, WS_SIZE)
        for m in range(npre, 16):
            ld(m, False)
        for m in range(16):
            ld(m, True)
        self.stamp(1)
        self.tag_setup()
        for base, val in ((64, 0x22222222), (66, 0x44444444), (68, 0x88888888)):
            a(f"s_mov_b32 s{base}, {hex(val)}\ns_mov_b32 s{base+1}, {hex(val)}")
        a("s_mov_b32 s70, 0\ns_mov_b32 s71, -1")
        vQ, vPw, vPr, vOw = 3, 4, 5, 6
        a(f"v_lshrrev_b32 v7, 4, v0\nv_lshlrev_b32 v{vQ}, 6, v7")
        a(f"v_bfe_u32 v164, v0, 2, 1\nv_lshl_add_u32 v{vQ}, v164, 9, v{vQ}")
        a(f"v_and_b32 v164, 3, v0\nv_lshl_add_u32 v{vQ}, v164, 4, v{vQ}")
        a(f"v_add_u32 v{vQ}, {L_Q}, v{vQ}")
        a(f"s_lshl_b32 s77, s{sW}, 7\ns_add_u32 s77, s77, {L_P}")
        a(f"v_bfe_u32 v164, v0, 2, 3\nv_lshlrev_b32 v{vPw}, 4, v164")
        a(f"v_lshrrev_b32 v164, 5, v0\nv_lshl_add_u32 v{vPw}, v164, 3, v{vPw}")
        a(f"v_and_b32 v164, 3, v0\nv_lshl_add_u32 v{vPw}, v164, 1, v{vPw}")
        a(f"v_add_u32 v{vPw}, s77, v{vPw}")
        a(f"v_bfe_u32 v164, v0, 3, 1\nv_lshlrev_b32 v{vPr}, 6, v164")
        a(f"v_lshl_add_u32 v{vPr}, v7, 4, v{vPr}\nv_add_u32 v{vPr}, s77, v{vPr}")
        a(f"s_lshl_b32 s77, s{sW}, 11\ns_add_u32 s77, s77, {L_OP}")
        a(f"v_lshrrev_b32 v164, 5, v0\nv_lshlrev_b32 v{vOw}, 10, v164")
        a(f"v_and_b32 v164, 15, v0\nv_lshl_add_u32 v{vOw}, v164, 5, v{vOw}")
        a(f"v_bfe_u32 v164, v0, 4, 1\nv_lshl_add_u32 v{vOw}, v164, 4, v{vOw}")
        a(f"v_add_u32 v{vOw}, s77, v{vOw}")
        a("v_and_b32 v164, 1, v0\nv_cmp_eq_u32 vcc, 1, v164")
        a("v_mov_b32 v165, 0x0c0c0100\nv_mov_b32 v166, 0x01000c0c\nv_cndmask_b32 v165, v165, v166, vcc")
        a("v_mov_b32 v166, 0x0c0c0302\nv_mov_b32 v167, 0x03020c0c\nv_cndmask_b32 v166, v166, v167, vcc")
        a("v_bfe_u32 v164, v0, 1, 2\nv_mov_b32 v167, 0x0c0c0c0c")
        for j in range(4):
            a(f"v_cmp_eq_u32 vcc, {j}, v164")
            a(f"v_cndmask_b32 v{SEL+j}, v167, v165, vcc")
            a(f"v_cndmask_b32 v{SEL+4+j}, v167, v166, vcc")
        if 'qwait' not in o.skip:
            self.lds_wait(C_Q, 4, 164, 165, sleep=2)
        self.stamp(2)
        a(f"ds_read_b128 v[{QA}:{QA+3}], v{vQ}")
        a(f"ds_read_b128 v[{QA+4}:{QA+7}], v{vQ} offset:256")
        a("s_waitcnt lgkmcnt(0)")
        Dreg = [D0] + [KD + 8 * (t - 1) for t in range(1, 8)]
        for t in range(8):
            a(f"s_waitcnt vmcnt({30 - 2*t})")
            k0, k1 = KD + 8 * t, KD + 8 * t + 4
            d = Dreg[t]
            a(f"v_mfma_f32_16x16x32_bf16 v[{d}:{d+3}], v[{QA}:{QA+3}], v[{k0}:{k0+3}], 0")
            a(f"v_mfma_f32_16x16x32_bf16 v[{d}:{d+3}], v[{QA+4}:{QA+7}], v[{k1}:{k1+3}], v[{d}:{d+3}]")
        self.stamp(3)
        for t in range(8):
            d = Dreg[t]; x = XS + t
            a(f"v_cndmask_b32 v{x}, v{d}, v{d+1}, s[64:65]")
            a(f"v_cndmask_b32 v{x}, v{x}, v{d+2}, s[66:67]")
            a(f"v_cndmask_b32 v{x}, v{x}, v{d+3}, s[68:69]")
        for i in range(4):
            a(f"v_cndmask_b32 v{XS+i}, v{XS+i}, v{XS+4+i}, s[70:71]")
        for i in range(4):
            a(f"v_add_f32_dpp v{XS+i}, v{XS+i}, v{XS+i} quad_perm:[1,0,3,2] {DPP}")
        for i in range(4):
            a(f"v_add_f32_dpp v{XS+i}, v{XS+i}, v{XS+i} quad_perm:[2,3,0,1] {DPP}")
        Z, M_, P_, T_ = XS + 4, XS + 6, XS + 7, XS + 5
        a(f"v_cndmask_b32 v{Z}, v{XS}, v{XS+1}, s[64:65]")
        a(f"v_cndmask_b32 v{Z}, v{Z}, v{XS+2}, s[66:67]")
        a(f"v_cndmask_b32 v{Z}, v{Z}, v{XS+3}, s[68:69]")
        self.bf16_round(Z, Z)
        a(f"v_mul_f32 v{Z}, 0x3db8aa3b, v{Z}")
        a(f"v_mov_b32 v{M_}, v{Z}")
        self.row16_reduce("v_max_f32", M_)
        self.swap_reduce("v_max_f32", M_, T_, 32)
        a(f"v_sub_f32 v{P_}, v{Z}, v{M_}")
        a(f"v_exp_f32 v{P_}, v{P_}")
        a(f"v_cvt_pk_bf16_f32 v{T_}, v{P_}, v{P_}")
        a(f"ds_write_b16 v{vPw}, v{T_}")
        P8 = KD
        a(f"ds_read_b128 v[{P8}:{P8+3}], v{vPr}")
        self.row16_reduce("v_add_f32", P_)
        self.swap_reduce("v_add_f32", P_, XS, 32)
        a(f"s_lshl_b32 s77, s{sW}, 3\ns_add_u32 s77, s77, {L_ST}")
        a(f"v_bfe_u32 v164, v0, 4, 1\nv_lshlrev_b32 v164, 6, v164\nv_add_u32 v164, s77, v164")
        self.setexec(0x10001, 0)
        a(f"ds_write_b64 v164, v[{M_}:{M_+1}]")
        a("s_mov_b64 exec, -1")
        a("s_waitcnt lgkmcnt(1)")
        ACC = QA
        AR = [KD + 8, KD + 12]
        for u in range(8):
            ar = AR[u & 1]
            for j in range(4):
                a(f"v_perm_b32 v{ar+j}, v{P8 + u//2}, v{P8 + u//2}, v{SEL + 4*(u&1) + j}")
            a(f"s_waitcnt vmcnt({14 - 2*u})")
            for c in range(2):
                vb = VD + 8 * u + 4 * c
                acc = ACC + 4 * c
                cin = "0" if u == 0 else f"v[{acc}:{acc+3}]"
                a(f"v_mfma_f32_16x16x32_bf16 v[{acc}:{acc+3}], v[{ar}:{ar+3}], v[{vb}:{vb+3}], {cin}")
        self.stamp(4)
        a(f"s_lshl_b32 s77, s{sW}, 8\ns_add_u32 s77, s77, {L_OP}")
        a(f"v_lshlrev_b32 v3, 2, v0\nv_add_u32 v3, s77, v3")
        a(f"s_lshr_b32 s77, s{sW}, 2\ns_lshl_b32 s77, s77, 6\ns_add_u32 s77, s77, {L_ST}")
        a(f"v_mov_b32 v4, s77")
        a(f"v_mov_b32 v33, s{sT8}\nv_mov_b32 v35, s{sT}\nv_lshlrev_b32 v32, 3, v0")
        a(f"s_lshl_b32 s76, s{sKVH}, 3\ns_add_u32 s76, s76, s{sB}")
        a(f"s_lshl_b32 s78, s76, 2\ns_add_u32 s78, s78, s{sS}\ns_lshl_b32 s78, s78, 12")
        a(f"s_lshl_b32 s79, s{sW}, 9\ns_add_u32 s78, s78, s79\ns_add_u32 s78, s78, {WS_OP}")
        a(f"ds_write_b128 v{vOw}, v[{ACC}:{ACC+3}]")
        a(f"ds_write_b128 v{vOw}, v[{ACC+4}:{ACC+7}] offset:512")
        a("s_waitcnt lgkmcnt(0)")
        a("s_barrier")
        self.stamp(5)
        if 'tail' in o.skip:
            a("s_barrier\ns_branch L_fin")
        OW, SW = 8, 16
        for i in range(4):
            a(f"ds_read_b128 v[{SW+4*i}:{SW+4*i+3}], v4 offset:{16*i}")
        for i in range(4):
            a(f"ds_read2st64_b32 v[{OW+2*i}:{OW+2*i+1}], v3 offset0:{16*i} offset1:{16*i+8}")
        a("s_waitcnt lgkmcnt(4)")
        ms_ = [SW + 2 * w for w in range(8)]
        a(f"v_max3_f32 v5, v{ms_[0]}, v{ms_[1]}, v{ms_[2]}")
        a(f"v_max3_f32 v6, v{ms_[3]}, v{ms_[4]}, v{ms_[5]}")
        a(f"v_max3_f32 v5, v5, v{ms_[6]}, v{ms_[7]}")
        a(f"v_max_f32 v5, v5, v6")
        a(f"v_and_b32 v5, s{sFF00}, v5")
        for w in range(8):
            a(f"v_sub_f32 v{ms_[w]}, v{ms_[w]}, v5")
        for w in range(8):
            a(f"v_exp_f32 v{ms_[w]}, v{ms_[w]}")
        a("s_waitcnt lgkmcnt(0)")
        a(f"v_mul_f32 v6, v{ms_[0]}, v{OW}\nv_mul_f32 v7, v{ms_[1]}, v{OW+1}")
        for w in range(2, 8, 2):
            a(f"v_fmac_f32 v6, v{ms_[w]}, v{OW+w}\nv_fmac_f32 v7, v{ms_[w+1]}, v{OW+w+1}")
        a("v_add_f32 v6, v6, v7")
        a(f"v_and_or_b32 v34, v6, s{sFF00}, v33")
        a(f"buffer_store_dwordx2 v[34:35], v32, {SRD_WS}, s78 offen @POL@")
        Ls = a.label("nost")
        a(f"s_and_b32 s78, s{sW}, 3\ns_cmp_lg_u32 s78, 0\ns_cbranch_scc1 {Ls}")
        a(f"v_mul_f32 v7, v{ms_[0]}, v{ms_[0]+1}")
        for w in range(1, 8):
            a(f"v_fmac_f32 v7, v{ms_[w]}, v{ms_[w]+1}")
        a(f"v_or_b32 v36, v5, v33\nv_mov_b32 v37, s{sT}")
        a(f"v_and_or_b32 v38, v7, s{sFF00}, v33\nv_mov_b32 v39, s{sT}")
        a(f"s_lshl_b32 s77, s76, 1\ns_lshr_b32 s78, s{sW}, 2\ns_add_u32 s77, s77, s78\ns_lshl_b32 s77, s77, 2")
        a(f"s_add_u32 s77, s77, s{sS}\ns_lshl_b32 s77, s77, 4\ns_add_u32 s77, s77, {WS_ST}")
        a("v_mov_b32 v32, 0")
        self.setexec(1, 0)
        a(f"buffer_store_dwordx4 v[36:39], v32, {SRD_WS}, s77 offen @POL@")
        a("s_mov_b64 exec, -1")
        a(f"{Ls}:")
        self.stamp(6)
        Lng = a.label("nogather")
        a(f"s_cmp_eq_u32 s{sJJ}, 255\ns_cbranch_scc1 {Lng}")
        a(f"s_lshl_b32 s76, s{sKVH}, 3\ns_add_u32 s76, s76, s{sW}")
        a(f"s_and_b32 s78, s{sJJ}, 3")
        a(f"s_lshl_b32 s77, s76, 14\ns_lshl_b32 s79, s78, 10\ns_add_u32 s77, s77, s79\ns_add_u32 s40, s77, {WS_OP}")
        for s_ in range(1, 4):
            a(f"s_add_u32 s{40+s_}, s40, {4096*s_}")
        a(f"s_lshl_b32 s77, s76, 1\ns_lshr_b32 s79, s78, 1\ns_add_u32 s77, s77, s79\ns_lshl_b32 s77, s77, 6\ns_add_u32 s44, s77, {WS_ST}")
        a("v_lshlrev_b32 v3, 4, v0")
        a("v_and_b32 v4, 3, v0\nv_lshlrev_b32 v4, 4, v4")
        G = 40
        def loads():
            for s_ in range(4):
                a(f"buffer_load_dwordx4 v[{G+4*s_}:{G+4*s_+3}], v3, {SRD_WS}, s{40+s_} offen @POL@")
            a(f"buffer_load_dwordx4 v[{G+16}:{G+19}], v4, {SRD_WS}, s44 offen @POL@")
        def pre_a():
            a(f"buffer_load_dwordx4 v[{G+16}:{G+19}], v4, {SRD_WS}, s44 offen @POL@")
        self.poll(loads, [G, G+4, G+8, G+12, G+16], 5, 6, 7, sleep=1, pre=(pre_a, [G+16], (0xf, 0), 1), name='a')
        self.stamp(7)
        Mv, Lv = G + 16, G + 18
        a(f"v_max_f32_dpp v5, v{Mv}, v{Mv} quad_perm:[1,0,3,2] {DPP}")
        a(f"v_max_f32_dpp v5, v5, v5 quad_perm:[2,3,0,1] {DPP}")
        a(f"v_sub_f32 v5, v{Mv}, v5\nv_exp_f32 v5, v5")
        a(f"v_mul_f32 v6, v5, v{Lv}")
        a(f"v_add_f32_dpp v6, v6, v6 quad_perm:[1,0,3,2] {DPP}")
        a(f"v_add_f32_dpp v6, v6, v6 quad_perm:[2,3,0,1] {DPP}")
        a(f"v_rcp_f32 v6, v6\nv_mul_f32 v5, v5, v6")
        a(f"s_mul_i32 s77, s{sW}, 272\ns_add_u32 s77, s77, {L_A}")
        a("v_lshlrev_b32 v3, 2, v0\nv_add_u32 v3, s77, v3")
        for e, dst in ((0, 8), (2, 9)):
            a(f"v_mul_f32_dpp v{dst}, v5, v{G+e} quad_perm:[0,0,0,0] {DPP}")
        for s_ in range(1, 4):
            q = f"[{s_},{s_},{s_},{s_}]"
            for e, dst in ((0, 8), (2, 9)):
                a(f"v_fmac_f32_dpp v{dst}, v5, v{G+4*s_+e} quad_perm:{q} {DPP}")
        a("v_cvt_pk_bf16_f32 v8, v8, v9")
        a("ds_write_b32 v3, v8")
        a("s_waitcnt lgkmcnt(0)")
        a(f"{Lng}:")
        a("s_barrier")
        self.stamp(8)
        a(f"s_cmp_lg_u32 s{sW}, 0\ns_cbranch_scc1 L_fin")
        a(f"s_cmp_eq_u32 s{sJJ}, 255\ns_cbranch_scc1 L_fin")
        a(f"s_mul_i32 s76, s{sKVH}, 28\ns_add_u32 s76, s76, s{sJJ}")
        a(f"s_lshl_b32 s77, s76, 12\ns_add_u32 s40, s77, {WS_BP}")
        for i in range(1, 4):
            a(f"s_add_u32 s{40+i}, s40, {1024*i}")
        a(f"s_lshl_b32 s77, s76, 10\ns_add_u32 s44, s77, {WS_MP}")
        a("v_lshlrev_b32 v3, 4, v0")
        a(f"v_and_b32 v4, 7, v0\nv_lshlrev_b32 v4, 3, v4\nv_add_u32 v4, {L_FIN}, v4")
        a(f"v_mov_b32 v9, {L_FIN+64}")
        a("ds_read_b64 v[10:11], v4")
        a("ds_read_b64 v[14:15], v9")
        srd(a, 60, sOUT, 8 * 448 * 2)
        a(f"s_mul_i32 s46, s{sKVH}, 896\ns_lshl_b32 s78, s{sJJ}, 5\ns_add_u32 s46, s46, s78")
        def loads2():
            a(f"buffer_load_dwordx4 v[{G+16}:{G+19}], v3, {SRD_WS}, s44 offen @POL@")
            for i in range(4):
                a(f"buffer_load_dwordx4 v[{G+4*i}:{G+4*i+3}], v3, {SRD_WS}, s{40+i} offen @POL@")
        self.poll(loads2, [G+16, G, G+4, G+8, G+12], 5, 6, 7, sleep=1, name='b')
        self.stamp(9)
        for e in (0, 2):
            a(f"v_add_f32 v{G+e}, v{G+e}, v{G+4+e}\nv_add_f32 v{G+8+e}, v{G+8+e}, v{G+12+e}")
        for e in (0, 2):
            a(f"v_add_f32 v{G+e}, v{G+e}, v{G+8+e}")
        vals = [G, G + 2, G + 16, G + 18]
        for e in vals:
            a(f"v_add_f32_dpp v{e}, v{e}, v{e} row_ror:8 {DPP}")
        tmp = [20, 21, 22, 23]
        for which in (16, 32):
            for e, t in zip(vals, tmp):
                a(f"v_mov_b32 v{t}, v{e}")
            for e, t in zip(vals, tmp):
                a(f"v_permlane{which}_swap_b32 v{e}, v{t}")
            for e, t in zip(vals, tmp):
                a(f"v_add_f32 v{e}, v{e}, v{t}")
        a("s_waitcnt lgkmcnt(0)")
        a(f"v_cvt_pk_bf16_f32 v20, v{G}, v{G+2}\nv_cvt_pk_bf16_f32 v21, v{G+16}, v{G+18}")
        a("v_lshlrev_b32 v22, 16, v20\nv_and_b32 v23, 0xffff0000, v20")
        a("v_lshlrev_b32 v24, 16, v21\nv_and_b32 v25, 0xffff0000, v21")
        a("v_add_f32 v24, v24, v10\nv_add_f32 v25, v25, v11")
        a("v_mul_f32 v22, v22, v14\nv_mul_f32 v23, v23, v14")
        a("v_cvt_pk_bf16_f32 v21, v24, v25\nv_cvt_pk_bf16_f32 v20, v22, v23")
        a("v_lshlrev_b32 v24, 16, v21\nv_and_b32 v25, 0xffff0000, v21")
        a("v_lshlrev_b32 v22, 16, v20\nv_and_b32 v23, 0xffff0000, v20")
        a("v_mul_f32 v24, v24, v15\nv_mul_f32 v25, v25, v15")
        a("v_cvt_pk_bf16_f32 v21, v24, v25")
        a("v_lshlrev_b32 v24, 16, v21\nv_and_b32 v25, 0xffff0000, v21")
        a("v_add_f32 v22, v22, v24\nv_add_f32 v23, v23, v25")
        a("v_cvt_pk_bf16_f32 v8, v22, v23")
        a("v_lshlrev_b32 v3, 2, v0")
        self.setexec(0xff, 0)
        a("buffer_store_dword v8, v3, s[60:63], s46 offen")
        a("s_cmp_lg_u32 s2, 32\ns_cbranch_scc1 L_fin")
        a(f"v_mov_b32 v8, s{sT}\nv_mov_b32 v3, 0")
        self.setexec(1, 0)
        a(f"buffer_store_dword v8, v3, {SRD_WS}, 0 offen sc1")
        a("s_branch L_fin")

    def publish_f32(self, d, s_base, s_stride, tmp):
        a = self.a
        va, vt8, pair = tmp, tmp + 1, tmp + 2
        assert pair % 2 == 0
        a(f"v_lshrrev_b32 v{va}, 4, v0\nv_lshlrev_b32 v{va}, 2, v{va}")
        a(f"v_mul_lo_u32 v{va}, v{va}, s{s_stride}")
        a(f"v_and_b32 v{vt8}, 15, v0\nv_lshl_add_u32 v{va}, v{vt8}, 3, v{va}")
        a(f"v_mov_b32 v{vt8}, s{sT8}")
        for r in range(4):
            a(f"v_mov_b32 v{pair+2*r+1}, s{sT}")
        for r in range(4):
            a(f"v_and_or_b32 v{pair+2*r}, v{d+r}, s{sFF00}, v{vt8}")
        self.setexec(0xffffffff, 0)
        for r in range(4):
            a(f"buffer_store_dwordx2 v[{pair+2*r}:{pair+2*r+1}], v{va}, {SRD_WS}, s{s_base} offen @POL@")
            if r < 3:
                a(f"s_add_u32 s{s_base}, s{s_base}, s{s_stride}")
        a("s_mov_b64 exec, -1")

    def publish_bf16(self, d, s_base, s_stride, tmp):
        a = self.a
        va, vt, pair = tmp, tmp + 1, tmp + 2
        assert pair % 2 == 0
        a(f"v_lshrrev_b32 v{va}, 4, v0\nv_lshlrev_b32 v{va}, 2, v{va}")
        a(f"v_mul_lo_u32 v{va}, v{va}, s{s_stride}")
        a(f"v_and_b32 v{vt}, 14, v0\nv_lshl_add_u32 v{va}, v{vt}, 2, v{va}")
        for r in range(4):
            a(f"v_mov_b32_dpp v{pair+2*r+1}, v{d+r} quad_perm:[1,0,3,2] {DPP}")
        for r in range(4):
            a(f"v_cvt_pk_bf16_f32 v{pair+2*r}, v{d+r}, v{pair+2*r+1}")
        for r in range(4):
            a(f"v_mov_b32 v{pair+2*r+1}, s{sT}")
        self.setexec(0x55555555, 0)
        for r in range(4):
            a(f"buffer_store_dwordx2 v[{pair+2*r}:{pair+2*r+1}], v{va}, {SRD_WS}, s{s_base} offen @POL@")
            if r < 3:
                a(f"s_add_u32 s{s_base}, s{s_base}, s{s_stride}")
        a("s_mov_b64 exec, -1")

    def helper(self):
        a = self.a; o = self.o
        a("L_helper:")
        a.c("================= helper wave =================")
        a("s_setprio 3")
        a(f"s_sub_u32 s{sW}, s3, 8")
        a(f"v_mov_b32 v1, {L_CNT}\nv_mov_b32 v2, 0\nv_mov_b32 v3, 0\nv_mov_b32 v4, 0\nv_mov_b32 v5, 0")
        a(f"s_cmp_lg_u32 s{sW}, 0\ns_cbranch_scc1 L_h_noinit")
        self.setexec(1, 0)
        a("ds_write_b128 v1, v[2:5]")
        a("s_mov_b64 exec, -1")
        a("L_h_noinit:")
        cq, c1, c2 = o.cntq, o.cnt1, o.cnt2
        assert sum(cq) == 64 and sum(c1) == 28 and sum(c2) == 56
        for x in range(8):
            assert cq[x] + c1[x] + c2[x] <= 32
        pref = lambda c: [sum(c[:i]) for i in range(8)]
        def table(vals, dst):
            lo, hi = pack8(vals)
            a(f"s_mov_b32 s76, {hex(lo)}\ns_mov_b32 s77, {hex(hi)}")
            a(f"s_lshr_b64 s[76:77], s[76:77], s78\ns_and_b32 s{dst}, s76, 0xff")
        a(f"s_lshl_b32 s78, s{sKVH}, 3")
        table(cq, 40); table([cq[x] + c1[x] for x in range(8)], 41); table([cq[x] + c1[x] + c2[x] for x in range(8)], 42)
        table(pref(cq), 43)
        table([(pref(c1)[x] - cq[x]) & 0xff for x in range(8)], 44)
        table([(pref(c2)[x] - cq[x] - c1[x]) & 0xff for x in range(8)], 46)
        a("v_lshrrev_b32 v1, 3, v0\nv_and_b32 v2, 7, v0\nv_lshlrev_b32 v2, 4, v2")
        if 'helpers' in o.skip:
            self.after_karg()
            srd(a, 48, sWS, WS_SIZE)
            a("s_barrier\ns_branch L_h_tail")
        a(f"s_cmp_lt_u32 s{sJ}, s40\ns_cbranch_scc1 L_h_q")
        a(f"s_cmp_lt_u32 s{sJ}, s41\ns_cbranch_scc1 L_h_m1")
        a(f"s_cmp_lt_u32 s{sJ}, s42\ns_cbranch_scc1 L_h_m2")
        a("s_mov_b32 s45, 3")
        self.after_karg()
        srd(a, 48, sWS, WS_SIZE)
        a("s_barrier")
        self.tag_setup()
        a("s_branch L_h_qgather")
        a("L_h_q:")
        a(f"s_add_u32 s47, s43, s{sJ}\ns_and_b32 s47, s47, 0xff")
        a(f"s_lshl_b32 s40, s47, 7")
        a("s_mov_b32 s41, 8192")
        a(f"s_mov_b32 s42, {L_X}")
        a(f"s_lshr_b32 s43, s47, 3\ns_lshl_b32 s43, s43, 14\ns_and_b32 s76, s47, 7\ns_lshl_b32 s76, s76, 8\ns_add_u32 s43, s43, s76\ns_add_u32 s43, s43, {WS_QP}")
        a("s_mov_b32 s44, 2048\ns_mov_b32 s45, 0\ns_mov_b32 s46, 64")
        self.after_karg()
        srd(a, 52, sWQ, 448 * 8192)
        a("s_branch L_h_tile")
        a("L_h_m1:")
        a(f"s_add_u32 s47, s44, s{sJ}\ns_and_b32 s47, s47, 0xff")
        a(f"s_lshl_b32 s40, s47, 7")
        a("s_mov_b32 s41, 3584")
        a(f"s_mov_b32 s42, {L_Y}")
        a(f"s_lshl_b32 s43, s47, 8\ns_add_u32 s43, s43, {WS_HP}")
        a("s_mov_b32 s44, 7168\ns_mov_b32 s45, 1\ns_mov_b32 s46, 64")
        self.after_karg()
        srd(a, 52, sW1, 448 * 3584)
        a("s_branch L_h_tile")
        a("L_h_m2:")
        a(f"s_add_u32 s47, s46, s{sJ}\ns_and_b32 s47, s47, 0xff")
        a(f"s_and_b32 s76, s47, 7\ns_lshr_b32 s77, s47, 3")
        a(f"s_mul_i32 s40, s76, {224*896}\ns_lshl_b32 s78, s77, 7\ns_add_u32 s40, s40, s78")
        a("s_mov_b32 s41, 896")
        a(f"s_mov_b32 s42, {L_Y}")
        a(f"s_lshl_b32 s43, s77, 12\ns_lshl_b32 s78, s76, 7\ns_add_u32 s43, s43, s78\ns_add_u32 s43, s43, {WS_MP}")
        a(f"s_mov_b32 s44, {28*1024}\ns_mov_b32 s45, 2\ns_mov_b32 s46, 1024")
        self.after_karg()
        srd(a, 52, sW2, 1792 * 896)
        a("L_h_tile:")
        a("v_mul_lo_u32 v1, v1, s41\nv_add_u32 v1, v1, v2")
        a("s_cmp_eq_u32 s45, 2\ns_cselect_b32 s75, 56, 112")
        a(f"s_mul_i32 s75, s75, s{sW}")
        a("s_lshl_b32 s76, s75, 7")
        a("s_mul_i32 s75, s75, s41\ns_add_u32 s75, s75, s40")
        a("s_lshl_b32 s77, s41, 3")
        a("s_cmp_eq_u32 s45, 2\ns_cbranch_scc1 L_h_nox")
        srd(a, 56, sX, 7168)
        a("v_lshlrev_b32 v2, 4, v0")
        a(f"s_lshl_b32 s78, s{sW}, 10\ns_add_u32 m0, s78, {L_X}")
        a("buffer_load_dwordx4 v2, s[56:59], s78 offen lds")
        a(f"s_cmp_eq_u32 s{sW}, 3\ns_cbranch_scc1 L_h_nox")
        a(f"s_add_u32 s78, s78, 4096\ns_add_u32 m0, s78, {L_X}")
        a("buffer_load_dwordx4 v2, s[56:59], s78 offen lds")
        a("L_h_nox:")
        def tl(i):
            a(f"s_add_u32 m0, s76, {L_TILE + 1024*i}")
            a("buffer_load_dwordx4 v1, s[52:55], s75 offen nt lds")
            a("s_add_u32 s75, s75, s77")
        for i in range(o.hpre):
            tl(i)
        srd(a, 48, sWS, WS_SIZE)
        a("s_barrier")
        for i in range(o.hpre, 7):
            tl(i)
        a("s_cmp_eq_u32 s45, 2\ns_cbranch_scc1 L_h_m2q")
        for i in range(7, 14):
            tl(i)
        self.stamp(1)
        self.tag_setup()
        a("s_cmp_eq_u32 s45, 1\ns_cbranch_scc0 L_h_nob1")
        srd(a, 56, sB1, 3584)
        a(f"v_and_b32 v3, 15, v0\nv_lshlrev_b32 v3, 1, v3\ns_lshl_b32 s78, s47, 7\ns_lshl_b32 s79, s{sW}, 5\ns_add_u32 s78, s78, s79")
        a("buffer_load_ushort v98, v3, s[56:59], s78 offen")
        a("L_h_nob1:")
        a("s_waitcnt vmcnt(0)")
        self.lds_signal(C_A0, 3, 4)
        self.lds_wait(C_A0, 4, 3, 4)
        a("s_cmp_eq_u32 s45, 0\ns_cbranch_scc1 L_h_mm")
        self.layernorm()
        a("s_waitcnt lgkmcnt(0)")
        self.lds_signal(C_A1, 3, 4)
        self.lds_wait(C_A1, 4, 3, 4)
        a("s_branch L_h_mm")
        a("L_h_m2q:")
        self.stamp(1)
        self.tag_setup()
        self.qgather()
        self.hgather()
        a("s_waitcnt lgkmcnt(0)")
        self.lds_signal(C_A1, 3, 4)
        self.lds_wait(C_A1, 4, 3, 4)
        a("L_h_mm:")
        self.stamp(2)
        BF, AF = 8, 40
        a("v_lshrrev_b32 v1, 4, v0\nv_lshlrev_b32 v1, 3, v1\nv_bfe_u32 v2, v0, 2, 2\nv_add_u32 v1, v1, v2\nv_lshlrev_b32 v1, 7, v1")
        a(f"v_and_b32 v2, 3, v0\nv_lshl_add_u32 v1, v2, 3, v1\ns_lshl_b32 s75, s{sW}, 5\ns_add_u32 s75, s75, {L_TILE}\nv_add_u32 v1, s75, v1")
        a("v_and_b32 v2, 7, v0\nv_mul_u32_u24 v2, 896, v2\nv_lshrrev_b32 v3, 4, v0\nv_lshl_add_u32 v2, v3, 4, v2\nv_add_u32 v2, s42, v2")
        def rd(m):
            b = BF + 4 * (m % 7); af = AF + 4 * (m % 7)
            a(f"ds_read_b64_tr_b16 v[{b}:{b+1}], v1 offset:{4096*m}")
            a(f"ds_read_b64_tr_b16 v[{b+2}:{b+3}], v1 offset:{4096*m+512}")
            a(f"ds_read_b128 v[{af}:{af+3}], v2 offset:{64*m}")
        def mm(m):
            b = BF + 4 * (m % 7); af = AF + 4 * (m % 7)
            a(f"v_mfma_f32_16x16x32_bf16 v[4:7], v[{af}:{af+3}], v[{b}:{b+3}], {'0' if m == 0 else 'v[4:7]'}")
        for m in range(4):
            rd(m)
        for m in range(7):
            if m + 4 < 7:
                a("s_waitcnt lgkmcnt(9)"); mm(m); rd(m + 4)
            else:
                a(f"s_waitcnt lgkmcnt({3*(6-m)})"); mm(m)
        a("s_cmp_eq_u32 s45, 2\ns_cbranch_scc1 L_h_pub2")
        for m in range(7, 11):
            rd(m)
        for m in range(7, 14):
            if m + 4 < 14:
                a("s_waitcnt lgkmcnt(9)"); mm(m); rd(m + 4)
            else:
                a(f"s_waitcnt lgkmcnt({3*(13-m)})"); mm(m)
        a(f"s_mul_i32 s75, s{sW}, s46\ns_add_u32 s43, s43, s75")
        a("s_cmp_eq_u32 s45, 0\ns_cbranch_scc1 L_h_pubq")
        a("s_nop 7")
        a("v_lshlrev_b32 v98, 16, v98")
        for r in range(4):
            self.bf16_round(4 + r, 4 + r)
            a(f"v_add_f32 v{4+r}, v{4+r}, v98")
            self.bf16_round(4 + r, 4 + r)
        for r in range(4):
            self.gelu(4 + r, 8 + 2 * r, 9 + 2 * r)
        a("L_h_pubq:")
        a("s_nop 7")
        self.publish_bf16(4, 43, 44, 70)
        self.stamp(3)
        a("s_branch L_h_qgather")
        a("L_h_pub2:")
        a(f"s_mul_i32 s75, s{sW}, s46\ns_add_u32 s43, s43, s75")
        a("s_nop 7")
        self.publish_f32(4, 43, 44, 70)
        self.stamp(3)
        a("s_branch L_h_wo")
        a("L_h_qgather:")
        self.qgather()
        a("L_h_wo:")
        self.stamp(4)
        WB = 100
        a(f"s_cmp_eq_u32 s{sJJ}, 255\ns_cbranch_scc1 L_h_tail")
        a(f"s_cmp_lg_u32 s{sW}, 3\ns_cbranch_scc1 L_h_noprep")
        self.finalprep()
        a("L_h_noprep:")
        a(f"s_setprio {o.woprio}")
        srd(a, 60, sWO, 4096 * 896)
        a(f"s_and_b32 s75, s{sJJ}, 3\ns_lshl_b32 s75, s75, 7\ns_lshl_b32 s76, s{sKVH}, 9\ns_add_u32 s75, s75, s76")
        a(f"s_lshl_b32 s76, s{sW}, 5\ns_add_u32 s75, s75, s76\ns_mul_i32 s75, s75, 896")
        a(f"s_lshr_b32 s76, s{sJJ}, 2\ns_lshl_b32 s76, s76, 7\ns_add_u32 s75, s75, s76")
        a("v_lshrrev_b32 v1, 3, v0\nv_mul_u32_u24 v1, 896, v1\nv_and_b32 v2, 7, v0\nv_lshl_add_u32 v1, v2, 4, v1")
        a(f"s_lshl_b32 s76, s{sW}, 12")
        for i in range(4):
            if 'nowo' in o.skip: break
            a(f"s_add_u32 m0, s76, {L_WO + 1024*i}")
            a("buffer_load_dwordx4 v1, s[60:63], s75 offen nt lds")
            if i < 3:
                a(f"s_add_u32 s75, s75, {8*896}")
        a("s_setprio 3")
        a("v_lshrrev_b32 v1, 4, v0\nv_lshlrev_b32 v1, 3, v1\nv_bfe_u32 v2, v0, 2, 2\nv_add_u32 v1, v1, v2\nv_lshlrev_b32 v1, 7, v1")
        a(f"v_and_b32 v2, 3, v0\nv_lshl_add_u32 v1, v2, 3, v1\ns_lshl_b32 s75, s{sW}, 5\ns_add_u32 s75, s75, {L_WO}\nv_add_u32 v1, s75, v1")
        a(f"s_lshr_b32 s75, s{sJJ}, 2\ns_lshl_b32 s75, s75, 2\ns_add_u32 s75, s75, s{sW}\ns_lshl_b32 s43, s75, 12")
        a(f"s_lshl_b32 s75, s{sKVH}, 2\ns_and_b32 s76, s{sJJ}, 3\ns_add_u32 s75, s75, s76\ns_lshl_b32 s75, s75, 7")
        a(f"s_add_u32 s43, s43, s75\ns_add_u32 s43, s43, {WS_BP}\ns_mov_b32 s44, {28*4096}")
        a(f"v_and_b32 v2, 7, v0\nv_mul_u32_u24 v2, 272, v2\nv_lshrrev_b32 v3, 4, v0\nv_lshl_add_u32 v2, v3, 4, v2\nv_add_u32 v2, {L_A}, v2")
        self.stamp(5)
        a("s_barrier")
        if 'tail' in o.skip:
            a("s_barrier\ns_branch L_fin")
        a("s_waitcnt vmcnt(0)")
        self.lds_signal(C_WO, 3, 4)
        self.lds_wait(C_WO, 4, 3, 4)
        for m in range(4):
            a(f"ds_read_b64_tr_b16 v[{WB+4*m}:{WB+4*m+1}], v1 offset:{4096*m}")
            a(f"ds_read_b64_tr_b16 v[{WB+4*m+2}:{WB+4*m+3}], v1 offset:{4096*m+512}")
        a("v_lshrrev_b32 v70, 4, v0\nv_lshlrev_b32 v70, 2, v70\nv_mul_lo_u32 v70, v70, s44\nv_and_b32 v71, 15, v0\nv_lshl_add_u32 v70, v71, 3, v70")
        a(f"v_mov_b32 v71, s{sT8}")
        for r in range(4):
            a(f"v_mov_b32 v{73+2*r}, s{sT}\ns_mul_i32 s{76+r}, s44, {r}\ns_add_u32 s{76+r}, s{76+r}, s43")
        a("s_waitcnt lgkmcnt(0)")
        self.stamp(6)
        a("s_barrier")
        for m in range(4):
            a(f"ds_read_b128 v[{40+4*m}:{40+4*m+3}], v2 offset:{64*m}")
        for m in range(4):
            a(f"s_waitcnt lgkmcnt({3-m})")
            a(f"v_mfma_f32_16x16x32_bf16 v[4:7], v[{40+4*m}:{40+4*m+3}], v[{WB+4*m}:{WB+4*m+3}], {'0' if m == 0 else 'v[4:7]'}")
        self.setexec(0xffffffff, 0)
        for r in range(4):
            a(f"v_and_or_b32 v{72+2*r}, v{4+r}, s{sFF00}, v71")
            a(f"buffer_store_dwordx2 v[{72+2*r}:{73+2*r}], v70, {SRD_WS}, s{76+r} offen @POL@")
        self.stamp(7)
        a("s_branch L_fin")
        a("L_h_tail:")
        self.stamp(5)
        a("s_barrier\ns_barrier")
        a("s_branch L_fin")

    def qgather(self):
        a = self.a
        a(f"s_lshl_b32 s75, s{sKVH}, 3\ns_add_u32 s75, s75, s{sB}\ns_lshl_b32 s75, s75, 11\ns_lshl_b32 s76, s{sW}, 9\ns_add_u32 s75, s75, s76")
        a(f"s_add_u32 s75, s75, {WS_QP}")
        a("v_lshlrev_b32 v1, 3, v0")
        def lq():
            a(f"buffer_load_dwordx2 v[8:9], v1, {SRD_WS}, s75 offen @POL@")
        self.poll(lq, [8], 5, 6, 7, sleep=self.o.qsleep, name='q', width=2, t8=False)
        a(f"s_lshl_b32 s75, s{sW}, 8\ns_add_u32 s75, s75, {L_Q}\nv_lshlrev_b32 v1, 2, v0\nv_add_u32 v1, s75, v1")
        a("ds_write_b32 v1, v8")
        a("s_waitcnt lgkmcnt(0)")
        self.lds_signal(C_Q, 3, 4)

    def layernorm(self):
        a = self.a
        X = 8; F = 16
        a(f"s_lshl_b32 s75, s{sW}, 1\ns_mul_i32 s75, s75, 896")
        a("v_lshrrev_b32 v1, 5, v0\nv_mul_u32_u24 v1, 896, v1\nv_and_b32 v2, 31, v0\nv_mul_u32_u24 v2, 28, v2\nv_add_u32 v1, v1, v2\nv_add_u32 v1, s75, v1")
        a(f"v_add_u32 v2, {L_X}, v1")
        for i in range(3):
            a(f"ds_read2_b32 v[{X+2*i}:{X+2*i+1}], v2 offset0:{2*i} offset1:{2*i+1}")
        a(f"ds_read_b32 v{X+6}, v2 offset:24")
        a("s_waitcnt lgkmcnt(0)")
        for i in range(7):
            a(f"v_lshlrev_b32 v{F+2*i}, 16, v{X+i}\nv_and_b32 v{F+2*i+1}, 0xffff0000, v{X+i}")
        a(f"v_add_f32 v3, v{F}, v{F+1}")
        for i in range(2, 14):
            a(f"v_add_f32 v3, v3, v{F+i}")
        self.row16_reduce("v_add_f32", 3)
        self.swap_reduce("v_add_f32", 3, 4, 16)
        a("v_mul_f32 v3, 0x3b124925, v3")
        a(f"v_sub_f32 v5, v{F}, v3\nv_mul_f32 v4, v5, v5")
        for i in range(1, 14):
            a(f"v_sub_f32 v5, v{F+i}, v3\nv_fmac_f32 v4, v5, v5")
        self.row16_reduce("v_add_f32", 4)
        self.swap_reduce("v_add_f32", 4, 5, 16)
        a("v_mul_f32 v4, 0x3b124925, v4")
        self.bf16_round(3, 3)
        self.bf16_round(4, 4)
        a("v_add_f32 v4, 0x3727c5ac, v4")
        self.bf16_round(4, 4)
        a("v_sqrt_f32 v4, v4")
        self.bf16_round(4, 4)
        a("v_rcp_f32 v4, v4")
        a(f"v_add_u32 v2, {L_Y}, v1")
        for i in range(7):
            a(f"v_sub_f32 v{F+2*i}, v{F+2*i}, v3\nv_sub_f32 v{F+2*i+1}, v{F+2*i+1}, v3")
            a(f"v_cvt_pk_bf16_f32 v5, v{F+2*i}, v{F+2*i+1}")
            a(f"v_lshlrev_b32 v6, 16, v5\nv_and_b32 v5, 0xffff0000, v5")
            a(f"v_mul_f32 v6, v6, v4\nv_mul_f32 v5, v5, v4")
            a(f"v_cvt_pk_bf16_f32 v{X+i}, v6, v5")
            a(f"ds_write_b32 v2, v{X+i} offset:{4*i}")

    def gelu(self, x, t0, t1):
        a = self.a
        a(f"v_mul_f32 v{t0}, v{x}, v{x}")
        a(f"v_mov_b32 v{t1}, 0xc0135761")
        a(f"v_fmac_f32 v{t1}, 0xbdd2d3e2, v{t0}")
        a(f"v_mul_f32 v{t1}, v{t1}, v{x}")
        a(f"v_exp_f32 v{t1}, v{t1}")
        a(f"v_add_f32 v{t1}, 1.0, v{t1}")
        a(f"v_rcp_f32 v{t1}, v{t1}")
        a(f"v_mul_f32 v{x}, v{x}, v{t1}")

    def hgather(self):
        a = self.a
        a(f"s_lshl_b32 s75, s{sW}, 1\ns_mul_i32 s76, s75, 7168\ns_mul_i32 s77, s75, 896")
        a(f"s_and_b32 s78, s47, 7\ns_mul_i32 s78, s78, 896\ns_add_u32 s76, s76, s78\ns_add_u32 s76, s76, {WS_HP}")
        a(f"s_add_u32 s77, s77, {L_Y}")
        a("v_cmp_le_u32 vcc, 56, v0\nv_subrev_u32 v56, 56, v0\nv_cndmask_b32 v56, v0, v56, vcc\nv_cndmask_b32 v57, 0, 1, vcc")
        a("v_min_u32 v58, 47, v0\nv_add_u32 v58, 8, v58")
        a("v_lshlrev_b32 v60, 4, v56\nv_mul_u32_u24 v59, 7168, v57\nv_add_u32 v60, v60, v59")
        a("v_lshlrev_b32 v61, 4, v58\nv_add_u32 v61, 7168, v61")
        a("v_lshlrev_b32 v62, 3, v56\nv_mul_u32_u24 v59, 896, v57\nv_add_u32 v62, v62, v59\nv_add_u32 v62, s77, v62")
        a("v_lshlrev_b32 v63, 3, v58\nv_add_u32 v63, 896, v63\nv_add_u32 v63, s77, v63")
        def lh():
            a(f"buffer_load_dwordx4 v[8:11], v60, {SRD_WS}, s76 offen @POL@")
            a(f"buffer_load_dwordx4 v[12:15], v61, {SRD_WS}, s76 offen @POL@")
        def pre_h():
            a(f"buffer_load_dwordx4 v[12:15], v61, {SRD_WS}, s76 offen @POL@")
        self.poll(lh, [8, 12], 5, 6, 7, sleep=8, pre=(pre_h, [12], (0x1, 0), 16), name='h', width=4, t8=False)
        a("v_mov_b32 v9, v10\nv_mov_b32 v13, v14")
        a("ds_write_b64 v62, v[8:9]\nds_write_b64 v63, v[12:13]")

    def finalprep(self):
        a = self.a
        srd(a, 56, sX, 7168)
        a(f"s_mul_i32 s75, s{sKVH}, 896")
        a("v_lshlrev_b32 v3, 4, v0")
        a("v_mov_b32 v8, 0\nv_mov_b32 v9, 0\nv_mov_b32 v10, 0\nv_mov_b32 v11, 0")
        self.setexec(0xffffffff, 0x00ffffff)
        a("buffer_load_dwordx4 v[8:11], v3, s[56:59], s75 offen")
        a("s_mov_b64 exec, -1")
        srd(a, 56, sGW, 896)
        a("buffer_load_dwordx4 v[12:15], v3, s[56:59], 0 offen")
        srd(a, 56, sB2, 896)
        a(f"s_lshl_b32 s75, s{sJJ}, 5")
        a("v_and_b32 v4, 7, v0\nv_lshlrev_b32 v4, 2, v4")
        a("buffer_load_dword v16, v4, s[56:59], s75 offen")
        a("s_waitcnt vmcnt(0)")
        a("v_mov_b32 v24, 0")
        for i in range(4):
            a(f"v_lshlrev_b32 v25, 16, v{8+i}\nv_lshlrev_b32 v26, 16, v{12+i}\nv_mul_f32 v25, v25, v26")
            a(f"v_and_b32 v26, 0xffff0000, v{8+i}\nv_and_b32 v27, 0xffff0000, v{12+i}\nv_mul_f32 v26, v26, v27")
            a("v_cvt_pk_bf16_f32 v25, v25, v26")
            a("v_lshlrev_b32 v26, 16, v25\nv_and_b32 v25, 0xffff0000, v25\nv_add_f32 v24, v24, v26\nv_add_f32 v24, v24, v25")
        self.row16_reduce("v_add_f32", 24)
        self.swap_reduce("v_add_f32", 24, 25, 16)
        self.swap_reduce("v_add_f32", 24, 25, 32)
        self.bf16_round(24, 24)
        a("v_mul_f32 v24, 0xbfb8aa3b, v24\nv_exp_f32 v24, v24\nv_add_f32 v24, 1.0, v24\nv_rcp_f32 v24, v24")
        self.bf16_round(24, 24)
        a("v_sub_f32 v25, 1.0, v24")
        self.bf16_round(25, 25)
        a("v_lshlrev_b32 v28, 16, v16\nv_and_b32 v29, 0xffff0000, v16")
        a(f"v_lshlrev_b32 v4, 1, v4\nv_add_u32 v4, {L_FIN}, v4\nv_mov_b32 v5, {L_FIN+64}")
        self.setexec(0xff, 0)
        a("ds_write_b64 v4, v[28:29]")
        self.setexec(1, 0)
        a("ds_write_b64 v5, v[24:25]")
        a("s_mov_b64 exec, -1")
        a("s_waitcnt lgkmcnt(0)")

    def build(self):
        a = self.a
        self.prologue()
        self.streaming()
        self.helper()
        a("L_fin:")
        self.dump_stamps()
        a("L_end:")
        a("s_endpgm")
        body = a.text()
        body = "\n".join((l.replace("@POL@", self.o.stpol) if "buffer_store" in l else l.replace("@POL@", self.o.ldpol)) for l in body.split("\n"))
        hdr = open("cdna_kernels/" + NAME + ".s.ref").read().split("; Override launch geometry")[0]
        out = hdr
        out += "; Override launch geometry by editing the next line (default: block=256,\n"
        out += f"; @launch grid=(256,1,1) block=(768,1,1) lds={LDS_BYTES}\n"
        out += '.amdgcn_target "amdgcn-amd-amdhsa--gfx950"\n.text\n'
        out += f".globl {KNAME}\n.p2align 8\n.type {KNAME},@function\n{KNAME}:\n"
        out += body
        out += f""".section .rodata,"a"
.p2align 6
.amdhsa_kernel {KNAME}
  .amdhsa_next_free_vgpr 168
  .amdhsa_next_free_sgpr 102
  .amdhsa_accum_offset 168
  .amdhsa_group_segment_fixed_size 0
  .amdhsa_kernarg_size 112
  .amdhsa_user_sgpr_count 2
  .amdhsa_user_sgpr_kernarg_segment_ptr 1
  .amdhsa_system_sgpr_workgroup_id_x 1
.end_amdhsa_kernel
"""
        return out

def parse(argv):
    p = argparse.ArgumentParser()
    p.add_argument("-o", default="cdna_kernels/" + NAME + ".s")
    p.add_argument("--stamps", action="store_true")
    p.add_argument("--rot", default="1,1,1,0")
    p.add_argument("--skip", default="")
    p.add_argument("--ldpol", default="sc1")
    p.add_argument("--stpol", default="sc1")
    p.add_argument("--npre", type=int, default=2)
    p.add_argument("--hpre", type=int, default=4)
    p.add_argument("--woprio", type=int, default=0)
    p.add_argument("--qsleep", type=int, default=8)
    p.add_argument("--cntq", default="16,0,16,0,16,0,16,0")
    p.add_argument("--cnt1", default="4,3,4,3,4,3,4,3")
    p.add_argument("--cnt2", default="2,12,2,12,2,12,2,12")
    o = p.parse_args(argv)
    o.rot = tuple(int(x) for x in o.rot.split(","))
    o.skip = set(x for x in o.skip.split(",") if x)
    for k in ("cntq", "cnt1", "cnt2"):
        setattr(o, k, [int(x) for x in getattr(o, k).split(",")])
    return o

if __name__ == "__main__":
    o = parse(sys.argv[1:])
    open(o.o, "w").write(Gen(o).build())
    print("wrote", o.o)
```

```python
import sys, argparse
from emit import Asm

NAME = "gated_mix__sliding_block_cached__mixer_channel_mlp__decode"
KNAME = NAME + "_kernel"

WS_QP = 0x010000
WS_HP = 0x050000
WS_OP = 0x070000
WS_ST = 0x0f0000
WS_BP = 0x100000
WS_MP = 0x180000
WS_DBG = 0x600000
WS_SIZE = 0x800000

L_TILE = 0
XP = 928
L_X = 57344
L_Y = 64768
L_WO = 72192
L_Q = 88576
L_P = 89600
L_OP = 90624
L_ST = 107008
L_A = 107136
L_FIN = 109312
L_CNT = 109440
L_SH = 109568
LDS_BYTES = 111616
C_A0, C_A1, C_WO, C_Q, C_S, C_I, C_O, C_B = 0, 4, 8, 12, 16, 20, 24, 28
C_F = 32

SPIN_LIMIT = 100000

sX, sK, sV, sWQ, sWO, sW1, sB1, sW2, sB2, sGW, sOUT, sDBG, sWS = 4, 6, 8, 10, 12, 16, 18, 20, 22, 24, 26, 28, 30
sT, sT8, sT88 = 32, 33, 34
sKVH, sJ, sB, sS, sJJ = 35, 36, 37, 38, 39
SRD_WS = "s[48:51]"
sFF00 = 72
sPSEL = 73
sPSEL2 = 14
sW = 74
STAMP0 = 84
DPP = "row_mask:0xf bank_mask:0xf"

def srd(a, base, ptr, nbytes):
    a(f"s_mov_b32 s{base}, s{ptr}")
    a(f"s_and_b32 s{base+1}, s{ptr+1}, 0xffff")
    a(f"s_mov_b32 s{base+2}, {nbytes}")
    a(f"s_mov_b32 s{base+3}, 0x20000")

def pack8(vals):
    v = 0
    for i, x in enumerate(vals):
        assert 0 <= x < 256
        v |= x << (8 * i)
    return v & 0xffffffff, v >> 32

class Gen:
    def __init__(self, opt):
        self.o = opt
        self.a = Asm()

    def stamp(self, idx):
        if self.o.stamps:
            self.a("s_memrealtime s[100:101]")
            self.a("s_waitcnt lgkmcnt(0)")
            self.a(f"s_mov_b32 s{STAMP0+idx}, s100")

    def dump_stamps(self):
        if not self.o.stamps:
            return
        a = self.a
        if self.o.dbgtime:
            a("s_mov_b64 exec, -1")
            srd(a, 60, sDBG, 256)
            a(f"s_not_b32 s{STAMP0}, s{STAMP0}")
            a("v_mov_b32 v1, 0")
            for i in range(16):
                a(f"v_writelane_b32 v1, s{STAMP0+i}, {i}")
            a("s_memrealtime s[100:101]\ns_waitcnt lgkmcnt(0)")
            a("v_writelane_b32 v1, s100, 15")
            a("v_mbcnt_lo_u32_b32 v2, -1, 0\nv_mbcnt_hi_u32_b32 v2, -1, v2\nv_lshlrev_b32 v2, 2, v2")
            a("s_cmp_ge_u32 s3, 8\ns_cselect_b32 s80, 64, 0")
            a("s_mov_b32 exec_lo, 0xffff\ns_mov_b32 exec_hi, 0")
            a("buffer_atomic_umax v1, v2, s[60:63], s80 offen")
            a("s_waitcnt vmcnt(0)")
            return
        a("s_mov_b64 exec, -1")
        a("s_lshl_b32 s80, s2, 4\ns_add_u32 s80, s80, s3\ns_lshl_b32 s80, s80, 6")
        a(f"s_add_u32 s80, s80, {WS_DBG}")
        a("v_mov_b32 v1, 0")
        for i in range(16):
            a(f"v_writelane_b32 v1, s{STAMP0+i}, {i}")
        a("v_mbcnt_lo_u32_b32 v2, -1, 0\nv_mbcnt_hi_u32_b32 v2, -1, v2\nv_lshlrev_b32 v2, 2, v2")
        a("s_mov_b32 exec_lo, 0xffff\ns_mov_b32 exec_hi, 0")
        a(f"buffer_store_dword v1, v2, {SRD_WS}, s80 offen")
        a("s_waitcnt vmcnt(0)")

    def setexec(self, lo, hi):
        self.a(f"s_mov_b32 exec_lo, {hex(lo)}\ns_mov_b32 exec_hi, {hex(hi)}")

    def lds_signal(self, cnt_off, v0, v1):
        a = self.a
        a(f"v_mov_b32 v{v0}, {L_CNT + cnt_off}")
        a(f"v_mov_b32 v{v1}, 1")
        self.setexec(1, 0)
        a(f"ds_add_u32 v{v0}, v{v1}")
        a("s_mov_b64 exec, -1")

    def lds_wait(self, cnt_off, target, v0, v1, sleep=1):
        a = self.a
        L = a.label("lw"); Ld = a.label("lwd")
        a(f"v_mov_b32 v{v0}, {L_CNT + cnt_off}")
        a(f"s_mov_b32 s81, 0")
        a(f"{L}:")
        a(f"ds_read_b32 v{v1}, v{v0}")
        a("s_waitcnt lgkmcnt(0)")
        a(f"v_readfirstlane_b32 s80, v{v1}")
        a(f"s_cmp_ge_u32 s80, {target}")
        a(f"s_cbranch_scc1 {Ld}")
        a(f"s_add_u32 s81, s81, 1")
        a(f"s_cmp_ge_u32 s81, {SPIN_LIMIT*8}")
        a(f"s_cbranch_scc1 {Ld}")
        if sleep:
            a(f"s_sleep {sleep}")
        a(f"s_branch {L}")
        a(f"{Ld}:")

    def check4w(self, r, vbad, vt, vu, first):
        a = self.a
        a(f"v_perm_b32 v{vt}, v{r}, v{r+1}, s{sPSEL}")
        a(f"v_perm_b32 v{vu}, v{r+2}, v{r+3}, s{sPSEL2}")
        a(f"v_or_b32 v{vt}, v{vt}, v{vu}")
        if first:
            a(f"v_xor_b32 v{vbad}, s{sT88}, v{vt}")
        else:
            a(f"v_xor_b32 v{vt}, s{sT88}, v{vt}\nv_or_b32 v{vbad}, v{vbad}, v{vt}")

    def unmask(self, r, n=4, dst=None):
        for i in range(n):
            self.a(f"v_and_b32 v{(dst if dst is not None else r)+i}, s{sFF00}, v{r+i}")

    def vpoll(self, loads, regs, vbad, vt, vu, sleep, name="", issued=False, wait="vmcnt(0)"):
        a = self.a
        if name and ('no_' + name) in self.o.skip:
            return
        L = a.label("vp"); Ld = a.label("vpd")
        a("s_mov_b32 s81, 0")
        if issued:
            a(f"s_waitcnt {wait}")
            for i, r in enumerate(regs):
                self.check4w(r, vbad, vt, vu, i == 0)
            a(f"v_cmp_ne_u32 vcc, 0, v{vbad}\ns_cbranch_vccz {Ld}")
        a(f"{L}:")
        loads()
        a("s_waitcnt vmcnt(0)")
        for i, r in enumerate(regs):
            self.check4w(r, vbad, vt, vu, i == 0)
        a(f"v_cmp_ne_u32 vcc, 0, v{vbad}\ns_cbranch_vccz {Ld}")
        a(f"s_add_u32 s81, s81, 1\ns_cmp_ge_u32 s81, {SPIN_LIMIT}\ns_cbranch_scc1 {Ld}")
        a(f"s_sleep {sleep}\ns_branch {L}")
        a(f"{Ld}:")

    def spoll(self, off_expr, loads, words, sleep, name=""):
        a = self.a
        if name and ('no_' + name) in self.o.skip:
            return
        P = a.label("sp"); Pd = a.label("spd")
        a(f"s_add_u32 s78, s{sWS}, s{off_expr}\ns_addc_u32 s79, s{sWS+1}, 0")
        a("s_mov_b32 s81, 0")
        a(f"{P}:")
        for ndw, dst, imm in loads:
            rng = f"s[{dst}:{dst+ndw-1}]" if ndw > 1 else f"s{dst}"
            a(f"s_load_dword{'x'+str(ndw) if ndw > 1 else ''} {rng}, s[78:79], {imm} glc")
        a("s_waitcnt lgkmcnt(0)")
        a(f"s_xor_b32 s80, s{words[0]}, s{sT8}")
        for t in words[1:]:
            a(f"s_xor_b32 s82, s{t}, s{sT8}\ns_or_b32 s80, s80, s82")
        a(f"s_and_b32 s80, s80, 0xff\ns_cbranch_scc0 {Pd}")
        a(f"s_add_u32 s81, s81, 1\ns_cmp_ge_u32 s81, {SPIN_LIMIT}\ns_cbranch_scc1 {Pd}")
        a(f"s_sleep {sleep}\ns_branch {P}")
        a(f"{Pd}:")

    def bf16_round(self, dst, src):
        a = self.a
        a(f"v_cvt_pk_bf16_f32 v{dst}, v{src}, v{src}")
        a(f"v_and_b32 v{dst}, 0xffff0000, v{dst}")

    def row16_reduce(self, op, v):
        for r in (8, 4, 2, 1):
            self.a(f"{op}_dpp v{v}, v{v}, v{v} row_ror:{r} {DPP}")

    def swap_reduce(self, op, v, t, which):
        a = self.a
        a(f"v_mov_b32 v{t}, v{v}")
        a(f"v_permlane{which}_swap_b32 v{v}, v{t}")
        a(f"{op} v{v}, v{v}, v{t}")

    def prologue(self):
        a = self.a
        a("s_cmp_ge_u32 s2, 256")
        a("s_cbranch_scc1 L_end")
        if self.o.earlybar:
            a("v_lshrrev_b32 v1, 6, v0")
            a("v_and_b32 v0, 63, v0")
            a("v_readfirstlane_b32 s3, v1")
            a(f"v_mov_b32 v1, {L_CNT}\nv_mov_b32 v2, 0\nv_mov_b32 v3, 0\nv_mov_b32 v4, 0\nv_mov_b32 v5, 0")
            a("s_cmp_lg_u32 s3, 8\ns_cbranch_scc1 L_noinit")
            self.setexec(1, 0)
            a("ds_write_b128 v1, v[2:5]\nds_write_b128 v1, v[2:5] offset:16\nds_write_b128 v1, v[2:5] offset:32")
            a("s_mov_b64 exec, -1")
            a("s_waitcnt lgkmcnt(0)")
            a("L_noinit:")
        a("s_load_dwordx16 s[4:19], s[0:1], 0")
        a("s_load_dwordx8 s[20:27], s[0:1], 64")
        a("s_load_dwordx4 s[28:31], s[0:1], 96")
        if self.o.stamps:
            for i in range(16):
                a(f"s_mov_b32 s{STAMP0+i}, 0")
            a("s_memrealtime s[100:101]")
        if self.o.earlybar:
            a("s_barrier")
        else:
            a("v_lshrrev_b32 v1, 6, v0")
            a("v_and_b32 v0, 63, v0")
            a("v_readfirstlane_b32 s3, v1")
        a(f"s_and_b32 s{sKVH}, s2, 7")
        a(f"s_lshr_b32 s{sJ}, s2, 3")
        a(f"s_and_b32 s{sB}, s{sJ}, 7")
        a(f"s_lshr_b32 s{sS}, s{sJ}, 3")
        a(f"s_sub_u32 s40, s{sJ}, 4")
        a(f"s_cmp_lt_u32 s{sJ}, 4")
        a(f"s_cselect_b32 s{sJJ}, 255, s40")
        a(f"s_mov_b32 s{sFF00}, 0xffffff00")
        a(f"s_mov_b32 s{sPSEL}, 0x0c0c0400")
        a("s_cmp_ge_u32 s3, 8")
        a("s_cbranch_scc1 L_helper")

    def after_karg(self):
        a = self.a
        a("s_waitcnt lgkmcnt(0)")
        if self.o.stamps:
            a(f"s_mov_b32 s{STAMP0}, s100")
        a(f"s_load_dword s{sT}, s[{sWS}:{sWS+1}], 0")
        a(f"s_mov_b32 s{sPSEL2}, 0x04000c0c")

    def tag_setup(self):
        a = self.a
        a("s_waitcnt lgkmcnt(0)")
        a(f"s_add_u32 s{sT}, s{sT}, 1")
        a(f"s_and_b32 s{sT8}, s{sT}, 0xff")
        a(f"s_mul_i32 s{sT88}, s{sT8}, 0x01010101")

    def streaming(self):
        a = self.a; o = self.o
        KD, VD = 8, 72
        QA = 136
        D0 = 144
        XS = 148
        SEL = 156
        vKo, vVo = 1, 2
        a.c("================= streaming wave =================")
        a(f"s_mov_b32 s{sW}, s3")
        a(f"s_lshl_b32 s75, s{sB}, 3\ns_add_u32 s75, s75, s{sKVH}\ns_lshl_b32 s75, s75, 21")
        a(f"s_lshl_b32 s76, s{sS}, 17\ns_add_u32 s75, s75, s76")
        a(f"s_add_u32 s75, s75, 0x180000")
        mb, mk, mw, ms = o.rot
        terms = [(sB, mb), (sKVH, mk), (sW, mw), (sS, ms)]
        a("s_mov_b32 s76, 0")
        for reg, m in terms:
            if m == 1:
                a(f"s_add_u32 s76, s76, s{reg}")
            elif m:
                a(f"s_mul_i32 s77, s{reg}, {m}\ns_add_u32 s76, s76, s77")
        if o.kmap == 'contig':
            a(f"s_lshl_b32 s77, s{sW}, 14\ns_add_u32 s75, s75, s77")
            a("s_and_b32 s76, s76, 7\ns_lshl_b32 s76, s76, 11")
            for t in range(8):
                if t:
                    a(f"s_add_u32 s76, s76, 0x800\ns_and_b32 s76, s76, 0x3fff")
                a(f"s_add_u32 s{40+t}, s76, s75")
        elif o.kmap == 'inter':
            a(f"s_lshl_b32 s77, s{sW}, 11\ns_add_u32 s75, s75, s77")
            a("s_and_b32 s76, s76, 7\ns_lshl_b32 s76, s76, 14")
            for t in range(8):
                if t:
                    a(f"s_add_u32 s76, s76, 0x4000\ns_and_b32 s76, s76, 0x1ffff")
                a(f"s_add_u32 s{40+t}, s76, s75")
        elif o.kmap == 'rot64':
            a(f"s_lshl_b32 s77, s{sW}, 3\ns_add_u32 s76, s76, s77\ns_and_b32 s76, s76, 63\ns_lshl_b32 s76, s76, 11")
            for t in range(8):
                if t:
                    a(f"s_add_u32 s76, s76, 0x800\ns_and_b32 s76, s76, 0x1ffff")
                a(f"s_add_u32 s{40+t}, s76, s75")
        a(f"v_lshrrev_b32 v3, 4, v0\nv_lshlrev_b32 v{vKo}, 6, v3")
        a(f"v_bfe_u32 v4, v0, 2, 2\nv_lshl_add_u32 v{vKo}, v4, 9, v{vKo}")
        a(f"v_and_b32 v4, 3, v0\nv_lshl_add_u32 v{vKo}, v4, 4, v{vKo}")
        a(f"v_and_b32 v4, 15, v0\nv_lshlrev_b32 v4, 4, v4\nv_lshl_add_u32 v{vVo}, v3, 9, v4")
        self.after_karg()
        self.stamp(10)
        srd(a, 52, sK, 0x8000000)
        def ld(m, isv):
            t, c = m // 2, m % 2
            r = (VD if isv else KD) + 4 * m
            a(f"buffer_load_dwordx4 v[{r}:{r+3}], v{vVo if isv else vKo}, {'s[56:59]' if isv else 's[52:55]'}, s{40+t} offen offset:{c*256} {o.kvpol}")
        npre = o.npre
        if o.sprio == 'kfirst':
            a("s_setprio 1")
        if o.vfirst:
            srd(a, 56, sV, 0x8000000)
            ld(0, True)
        for m in range(npre):
            ld(m, False)
        self.stamp(11)
        if not o.earlybar:
            a("s_barrier")
        self.stamp(12)
        srd(a, 56, sV, 0x8000000)
        srd(a, 48, sWS, WS_SIZE)
        if o.sprio == 'young':
            a(f"s_cmp_ge_u32 s{sW}, 4\ns_cbranch_scc0 L_noprio\ns_setprio 1\nL_noprio:")
        for m in range(npre, 16):
            if o.kwin and m >= o.kwin:
                a(f"s_waitcnt vmcnt({o.kwin - 1})")
            ld(m, False)
        if o.sprio == 'kfirst':
            a("s_setprio 0")
        for m in range(16):
            if o.vfirst and m == 0:
                continue
            if o.kwin and m < o.vwin_n:
                a(f"s_waitcnt vmcnt({o.kwin - 1})")
            ld(m, True)
        if o.sprio2:
            a(f"s_setprio {o.sprio2}")
        if o.defer:
            self.lds_signal(C_I, 164, 165)
        self.stamp(1)
        self.tag_setup()
        for base, val in ((64, 0x22222222), (66, 0x44444444), (68, 0x88888888)):
            a(f"s_mov_b32 s{base}, {hex(val)}\ns_mov_b32 s{base+1}, {hex(val)}")
        a("s_mov_b32 s70, 0\ns_mov_b32 s71, -1")
        vQ, vPw, vPr, vOw = 3, 4, 5, 6
        a(f"v_lshrrev_b32 v7, 4, v0\nv_lshlrev_b32 v{vQ}, 6, v7")
        a(f"v_bfe_u32 v164, v0, 2, 1\nv_lshl_add_u32 v{vQ}, v164, 9, v{vQ}")
        a(f"v_and_b32 v164, 3, v0\nv_lshl_add_u32 v{vQ}, v164, 4, v{vQ}")
        a(f"v_add_u32 v{vQ}, {L_Q}, v{vQ}")
        a(f"s_lshl_b32 s77, s{sW}, 7\ns_add_u32 s77, s77, {L_P}")
        a(f"v_bfe_u32 v164, v0, 2, 3\nv_lshlrev_b32 v{vPw}, 4, v164")
        a(f"v_lshrrev_b32 v164, 5, v0\nv_lshl_add_u32 v{vPw}, v164, 3, v{vPw}")
        a(f"v_and_b32 v164, 3, v0\nv_lshl_add_u32 v{vPw}, v164, 1, v{vPw}")
        a(f"v_add_u32 v{vPw}, s77, v{vPw}")
        a(f"v_bfe_u32 v164, v0, 3, 1\nv_lshlrev_b32 v{vPr}, 6, v164")
        a(f"v_lshl_add_u32 v{vPr}, v7, 4, v{vPr}\nv_add_u32 v{vPr}, s77, v{vPr}")
        a(f"s_lshl_b32 s77, s{sW}, 11\ns_add_u32 s77, s77, {L_OP}")
        a(f"v_lshrrev_b32 v164, 5, v0\nv_lshlrev_b32 v{vOw}, 10, v164")
        a(f"v_and_b32 v164, 15, v0\nv_lshl_add_u32 v{vOw}, v164, 5, v{vOw}")
        a(f"v_bfe_u32 v164, v0, 4, 1\nv_lshl_add_u32 v{vOw}, v164, 4, v{vOw}")
        a(f"v_add_u32 v{vOw}, s77, v{vOw}")
        a("v_and_b32 v164, 1, v0\nv_cmp_eq_u32 vcc, 1, v164")
        a("v_mov_b32 v165, 0x0c0c0100\nv_mov_b32 v166, 0x01000c0c\nv_cndmask_b32 v165, v165, v166, vcc")
        a("v_mov_b32 v166, 0x0c0c0302\nv_mov_b32 v167, 0x03020c0c\nv_cndmask_b32 v166, v166, v167, vcc")
        a("v_bfe_u32 v164, v0, 1, 2\nv_mov_b32 v167, 0x0c0c0c0c")
        for j in range(4):
            a(f"v_cmp_eq_u32 vcc, {j}, v164")
            a(f"v_cndmask_b32 v{SEL+j}, v167, v165, vcc")
            a(f"v_cndmask_b32 v{SEL+4+j}, v167, v166, vcc")
        if 'qwait' not in o.skip:
            self.lds_wait(C_Q, 4, 164, 165, sleep=2)
        self.stamp(2)
        a(f"ds_read_b128 v[{QA}:{QA+3}], v{vQ}")
        a(f"ds_read_b128 v[{QA+4}:{QA+7}], v{vQ} offset:256")
        a("s_waitcnt lgkmcnt(0)")
        Dreg = [D0] + [KD + 8 * (t - 1) for t in range(1, 8)]
        for t in range(8):
            a(f"s_waitcnt vmcnt({30 - 2*t - (1 if o.vfirst else 0)})")
            k0, k1 = KD + 8 * t, KD + 8 * t + 4
            d = Dreg[t]
            a(f"v_mfma_f32_16x16x32_bf16 v[{d}:{d+3}], v[{QA}:{QA+3}], v[{k0}:{k0+3}], 0")
            a(f"v_mfma_f32_16x16x32_bf16 v[{d}:{d+3}], v[{QA+4}:{QA+7}], v[{k1}:{k1+3}], v[{d}:{d+3}]")
        self.stamp(3)
        for t in range(8):
            d = Dreg[t]; x = XS + t
            a(f"v_cndmask_b32 v{x}, v{d}, v{d+1}, s[64:65]")
            a(f"v_cndmask_b32 v{x}, v{x}, v{d+2}, s[66:67]")
            a(f"v_cndmask_b32 v{x}, v{x}, v{d+3}, s[68:69]")
        for i in range(4):
            a(f"v_cndmask_b32 v{XS+i}, v{XS+i}, v{XS+4+i}, s[70:71]")
        for i in range(4):
            a(f"v_add_f32_dpp v{XS+i}, v{XS+i}, v{XS+i} quad_perm:[1,0,3,2] {DPP}")
        for i in range(4):
            a(f"v_add_f32_dpp v{XS+i}, v{XS+i}, v{XS+i} quad_perm:[2,3,0,1] {DPP}")
        Z, M_, P_, T_ = XS + 4, XS + 6, XS + 7, XS + 5
        a(f"v_cndmask_b32 v{Z}, v{XS}, v{XS+1}, s[64:65]")
        a(f"v_cndmask_b32 v{Z}, v{Z}, v{XS+2}, s[66:67]")
        a(f"v_cndmask_b32 v{Z}, v{Z}, v{XS+3}, s[68:69]")
        self.bf16_round(Z, Z)
        a(f"v_mul_f32 v{Z}, 0x3db8aa3b, v{Z}")
        a(f"v_mov_b32 v{M_}, v{Z}")
        self.row16_reduce("v_max_f32", M_)
        self.swap_reduce("v_max_f32", M_, T_, 32)
        a(f"v_sub_f32 v{P_}, v{Z}, v{M_}")
        a(f"v_exp_f32 v{P_}, v{P_}")
        a(f"v_cvt_pk_bf16_f32 v{T_}, v{P_}, v{P_}")
        a(f"ds_write_b16 v{vPw}, v{T_}")
        P8 = KD
        a(f"ds_read_b128 v[{P8}:{P8+3}], v{vPr}")
        self.row16_reduce("v_add_f32", P_)
        self.swap_reduce("v_add_f32", P_, XS, 32)
        a(f"s_lshl_b32 s77, s{sW}, 3\ns_add_u32 s77, s77, {L_ST}")
        a(f"v_bfe_u32 v164, v0, 4, 1\nv_lshlrev_b32 v164, 6, v164\nv_add_u32 v164, s77, v164")
        self.setexec(0x10001, 0)
        a(f"ds_write_b64 v164, v[{M_}:{M_+1}]")
        a(f"v_mov_b32 v164, {L_CNT + C_S}\nv_mov_b32 v165, 1")
        self.setexec(1, 0)
        a("ds_add_u32 v164, v165")
        a("s_mov_b64 exec, -1")
        a("s_waitcnt lgkmcnt(2)")
        ACC = QA
        AR = [KD + 8, KD + 12]
        def factors():
            a(f"s_lshl_b32 s77, s{sW}, 8\ns_add_u32 s77, s77, {L_OP}")
            a(f"v_lshlrev_b32 v32, 2, v0\nv_add_u32 v3, s77, v32")
            a(f"s_lshr_b32 s77, s{sW}, 2\ns_lshl_b32 s77, s77, 6\ns_add_u32 s77, s77, {L_ST}")
            a(f"v_mov_b32 v4, s77")
            a(f"v_mov_b32 v33, s{sT8}")
            a(f"s_lshl_b32 s76, s{sKVH}, 3\ns_add_u32 s76, s76, s{sB}")
            a(f"s_lshl_b32 s78, s76, 2\ns_add_u32 s78, s78, s{sS}\ns_lshl_b32 s78, s78, 11")
            a(f"s_lshl_b32 s79, s{sW}, 8\ns_add_u32 s78, s78, s79\ns_add_u32 s46, s78, {WS_OP}")
            a(f"s_lshl_b32 s77, s76, 1\ns_lshr_b32 s78, s{sW}, 2\ns_add_u32 s77, s77, s78\ns_lshl_b32 s77, s77, 2")
            a(f"s_add_u32 s77, s77, s{sS}\ns_lshl_b32 s77, s77, 4\ns_add_u32 s45, s77, {WS_ST}")
            self.lds_wait(C_S, 8, 164, 165, sleep=2)
            SW, OW = 40, 8
            for i in range(4):
                a(f"ds_read_b128 v[{SW+4*i}:{SW+4*i+3}], v4 offset:{16*i}")
            a(f"s_lshl_b32 s76, s{sKVH}, 3\ns_add_u32 s76, s76, s{sW}")
            a(f"s_and_b32 s78, s{sJJ}, 3")
            a(f"s_lshl_b32 s77, s76, 13\ns_lshl_b32 s79, s78, 9\ns_add_u32 s77, s77, s79\ns_add_u32 s40, s77, {WS_OP}\ns_add_u32 s41, s40, 4096")
            a(f"s_lshl_b32 s77, s76, 1\ns_lshr_b32 s79, s78, 1\ns_add_u32 s77, s77, s79\ns_lshl_b32 s77, s77, 6\ns_add_u32 s44, s77, {WS_ST}")
            a("v_lshrrev_b32 v34, 5, v0\nv_lshlrev_b32 v34, 11, v34\nv_and_b32 v35, 31, v0\nv_lshl_add_u32 v34, v35, 4, v34")
            a(f"s_mul_i32 s77, s{sW}, 272\ns_add_u32 s77, s77, {L_A}\nv_lshlrev_b32 v35, 3, v35\nv_add_u32 v35, s77, v35")
            a("s_waitcnt lgkmcnt(0)")
            ms_ = [SW + 2 * w for w in range(8)]
            a(f"v_max3_f32 v5, v{ms_[0]}, v{ms_[1]}, v{ms_[2]}")
            a(f"v_max3_f32 v30, v{ms_[3]}, v{ms_[4]}, v{ms_[5]}")
            a(f"v_max3_f32 v5, v5, v{ms_[6]}, v{ms_[7]}")
            a(f"v_max_f32 v5, v5, v30")
            a(f"v_and_b32 v5, s{sFF00}, v5")
            for w in range(8):
                a(f"v_sub_f32 v{ms_[w]}, v{ms_[w]}, v5")
            for w in range(8):
                a(f"v_exp_f32 v{ms_[w]}, v{ms_[w]}")
            Ls = a.label("nost")
            a(f"s_and_b32 s78, s{sW}, 3\ns_cmp_lg_u32 s78, 0\ns_cbranch_scc1 {Ls}")
            a(f"v_mul_f32 v7, v{ms_[0]}, v{ms_[0]+1}")
            for w in range(1, 8):
                a(f"v_fmac_f32 v7, v{ms_[w]}, v{ms_[w]+1}")
            a(f"v_or_b32 v36, v5, v33\nv_and_or_b32 v37, v7, s{sFF00}, v33\nv_mov_b32 v38, v33\nv_mov_b32 v39, v33\nv_mov_b32 v31, 0")
            a(f"{Ls}:")
        SW, OW = 40, 8
        ms_ = [SW + 2 * w for w in range(8)]
        for u in range(8):
            if u == o.fpos:
                factors()
            ar = AR[u & 1]
            for j in range(4):
                a(f"v_perm_b32 v{ar+j}, v{P8 + u//2}, v{P8 + u//2}, v{SEL + 4*(u&1) + j}")
            a(f"s_waitcnt vmcnt({14 - 2*u})")
            for c in range(2):
                vb = VD + 8 * u + 4 * c
                acc = ACC + 4 * c
                cin = "0" if u == 0 else f"v[{acc}:{acc+3}]"
                a(f"v_mfma_f32_16x16x32_bf16 v[{acc}:{acc+3}], v[{ar}:{ar+3}], v[{vb}:{vb+3}], {cin}")
        self.stamp(4)
        a(f"ds_write_b128 v{vOw}, v[{ACC}:{ACC+3}]")
        a(f"ds_write_b128 v{vOw}, v[{ACC+4}:{ACC+7}] offset:512")
        a("s_waitcnt lgkmcnt(0)")
        if o.nobar:
            self.lds_signal(C_O, 164, 165)
            self.lds_wait(C_O, 8, 164, 165, sleep=0)
        else:
            a("s_barrier")
        self.stamp(5)
        if 'tail' in o.skip:
            a("s_barrier\ns_branch L_fin" if not o.nobar else "s_branch L_fin")
        for i in range(4):
            a(f"ds_read2st64_b32 v[{OW+2*i}:{OW+2*i+1}], v3 offset0:{16*i} offset1:{16*i+8}")
        a("s_waitcnt lgkmcnt(2)")
        a(f"v_mul_f32 v6, v{ms_[0]}, v{OW}\nv_mul_f32 v7, v{ms_[1]}, v{OW+1}")
        a(f"v_fmac_f32 v6, v{ms_[2]}, v{OW+2}\nv_fmac_f32 v7, v{ms_[3]}, v{OW+3}")
        a("s_waitcnt lgkmcnt(0)")
        a(f"v_fmac_f32 v6, v{ms_[4]}, v{OW+4}\nv_fmac_f32 v7, v{ms_[5]}, v{OW+5}")
        a(f"v_fmac_f32 v6, v{ms_[6]}, v{OW+6}\nv_fmac_f32 v7, v{ms_[7]}, v{OW+7}")
        a("v_add_f32 v6, v6, v7")
        a(f"v_and_or_b32 v6, v6, s{sFF00}, v33")
        a(f"buffer_store_dword v6, v32, {SRD_WS}, s46 offen sc1")
        Ls2 = a.label("nost2")
        a(f"s_and_b32 s78, s{sW}, 3\ns_cmp_lg_u32 s78, 0\ns_cbranch_scc1 {Ls2}")
        self.setexec(1, 0)
        a(f"buffer_store_dwordx4 v[36:39], v31, {SRD_WS}, s45 offen sc1")
        a("s_mov_b64 exec, -1")
        a(f"{Ls2}:")
        self.stamp(6)
        Lng = a.label("nogather")
        a(f"s_cmp_eq_u32 s{sJJ}, 255\ns_cbranch_scc1 {Lng}")
        G = G3 = 56
        def loads():
            a(f"buffer_load_dwordx4 v[{G}:{G+3}], v34, {SRD_WS}, s40 offen sc1")
            a(f"buffer_load_dwordx4 v[{G+4}:{G+7}], v34, {SRD_WS}, s41 offen sc1")
        self.spoll(44, [(16, 52, 0)], [52 + i for i in range(16)], o.asleep, name='a')
        loads()
        for i in range(4):
            a(f"s_and_b32 s{52+4*i}, s{52+4*i}, s{sFF00}\ns_and_b32 s{53+4*i}, s{53+4*i}, s{sFF00}")
        a("v_mov_b32 v8, s52\nv_mov_b32 v9, s56\nv_mov_b32 v10, s60\nv_mov_b32 v11, s64")
        a("v_max3_f32 v5, v8, v9, v10\nv_max_f32 v5, v5, v11")
        for i in range(4):
            a(f"v_sub_f32 v{8+i}, v{8+i}, v5")
        for i in range(4):
            a(f"v_exp_f32 v{8+i}, v{8+i}")
        a("v_mul_f32 v6, s53, v8\nv_fmac_f32 v6, s57, v9\nv_fmac_f32 v6, s61, v10\nv_fmac_f32 v6, s65, v11")
        a("v_rcp_f32 v6, v6")
        a("v_cndmask_b32 v8, v8, v9, s[70:71]\nv_cndmask_b32 v9, v10, v11, s[70:71]")
        a("v_mul_f32 v8, v8, v6\nv_mul_f32 v9, v9, v6")
        self.vpoll(loads, [G, G + 4], 5, 6, 7, 1, name='a', issued=True)
        self.unmask(G, 8)
        self.stamp(7)
        for k in range(4):
            a(f"v_mul_f32 v{12+k}, v8, v{G3+k}")
        for k in range(4):
            a(f"v_fmac_f32 v{12+k}, v9, v{G3+4+k}")
        for k in range(4):
            a(f"v_mov_b32 v{16+k}, v{12+k}")
        for k in range(4):
            a(f"v_permlane32_swap_b32 v{12+k}, v{16+k}")
        for k in range(4):
            a(f"v_add_f32 v{12+k}, v{12+k}, v{16+k}")
        a("v_cvt_pk_bf16_f32 v12, v12, v13\nv_cvt_pk_bf16_f32 v13, v14, v15")
        self.setexec(0xffffffff, 0)
        a("ds_write_b64 v35, v[12:13]")
        a("s_mov_b64 exec, -1")
        a("s_waitcnt lgkmcnt(0)")
        if o.nobar:
            self.lds_signal(C_B, 164, 165)
        a(f"{Lng}:")
        if not o.nobar:
            a("s_barrier")
        self.stamp(8)
        a(f"s_cmp_lg_u32 s{sW}, 0\ns_cbranch_scc1 L_fin")
        a(f"s_cmp_eq_u32 s{sJJ}, 255\ns_cbranch_scc1 L_fin")
        a(f"s_mul_i32 s76, s{sKVH}, 28\ns_add_u32 s76, s76, s{sJJ}")
        a(f"s_lshl_b32 s77, s76, 11\ns_add_u32 s40, s77, {WS_BP}\ns_add_u32 s41, s40, 1024")
        a(f"s_lshl_b32 s77, s76, 9\ns_add_u32 s44, s77, {WS_MP}")
        a("v_lshlrev_b32 v3, 4, v0")
        a("v_and_b32 v2, 31, v0\nv_lshlrev_b32 v2, 4, v2")
        a(f"v_and_b32 v4, 3, v0\nv_lshlrev_b32 v4, 4, v4\nv_add_u32 v4, {L_FIN}, v4")
        a(f"v_mov_b32 v9, {L_FIN+64}")
        if o.nobar:
            self.lds_wait(C_F, 1, 164, 165, sleep=1)
        a("ds_read_b128 v[24:27], v4")
        a("ds_read_b64 v[14:15], v9")
        srd(a, 60, sOUT, 8 * 448 * 2)
        a(f"s_mul_i32 s46, s{sKVH}, 896\ns_lshl_b32 s78, s{sJJ}, 5\ns_add_u32 s46, s46, s78")
        def reduce_q(vals, tmp):
            for ror in (8, 4):
                for e in vals:
                    a(f"v_add_f32_dpp v{e}, v{e}, v{e} row_ror:{ror} {DPP}")
            for which in (16, 32):
                for e, t in zip(vals, tmp):
                    a(f"v_mov_b32 v{t}, v{e}")
                for e, t in zip(vals, tmp):
                    a(f"v_permlane{which}_swap_b32 v{e}, v{t}")
                for e, t in zip(vals, tmp):
                    a(f"v_add_f32 v{e}, v{e}, v{t}")
        G, G2, G3 = 40, 64, 96
        MV = 28
        def lm():
            a(f"buffer_load_dwordx4 v[{MV}:{MV+3}], v2, {SRD_WS}, s44 offen sc1")
        def loads2(g):
            a(f"buffer_load_dwordx4 v[{g}:{g+3}], v3, {SRD_WS}, s40 offen sc1")
            a(f"buffer_load_dwordx4 v[{g+4}:{g+7}], v3, {SRD_WS}, s41 offen sc1")
        self.vpoll(lm, [MV], 5, 6, 7, 1, name='m')
        loads2(G)
        self.unmask(MV, 4)
        for k in range(4):
            a(f"v_cndmask_b32 v{MV+k}, v{MV+k}, 0, s[70:71]")
        reduce_q([MV + k for k in range(4)], [112 + k for k in range(4)])
        a("s_waitcnt lgkmcnt(0)")
        for h2 in range(2):
            M0, M1 = MV + 2 * h2, MV + 2 * h2 + 1
            a(f"v_cvt_pk_bf16_f32 v16, v{M0}, v{M1}")
            a(f"v_lshlrev_b32 v{M0}, 16, v16\nv_and_b32 v{M1}, 0xffff0000, v16")
            a(f"v_add_f32 v{M0}, v{M0}, v{24+2*h2}\nv_add_f32 v{M1}, v{M1}, v{25+2*h2}")
            a(f"v_cvt_pk_bf16_f32 v16, v{M0}, v{M1}")
            a(f"v_lshlrev_b32 v{M0}, 16, v16\nv_and_b32 v{M1}, 0xffff0000, v16")
            a(f"v_mul_f32 v{M0}, v{M0}, v15\nv_mul_f32 v{M1}, v{M1}, v15")
            a(f"v_cvt_pk_bf16_f32 v16, v{M0}, v{M1}")
            a(f"v_lshlrev_b32 v{M0}, 16, v16\nv_and_b32 v{M1}, 0xffff0000, v16")
        Lp = a.label("fp"); La = a.label("fpa"); Lb = a.label("fpb"); Lo = a.label("fpo")
        a("s_mov_b32 s81, 0")
        a(f"{Lp}:")
        loads2(G2)
        a("s_waitcnt vmcnt(2)")
        self.check4w(G, 5, 6, 7, True); self.check4w(G + 4, 5, 6, 7, False)
        a(f"v_cmp_ne_u32 vcc, 0, v5\ns_cbranch_vccz {La}")
        loads2(G)
        a("s_waitcnt vmcnt(2)")
        self.check4w(G2, 5, 6, 7, True); self.check4w(G2 + 4, 5, 6, 7, False)
        a(f"v_cmp_ne_u32 vcc, 0, v5\ns_cbranch_vccz {Lb}")
        a(f"s_add_u32 s81, s81, 1\ns_cmp_lt_u32 s81, {SPIN_LIMIT}\ns_cbranch_scc1 {Lp}")
        a(f"{Lb}:")
        self.unmask(G2, 8, G3)
        a(f"s_branch {Lo}")
        a(f"{La}:")
        self.unmask(G, 8, G3)
        a(f"{Lo}:")
        self.stamp(9)
        G = G3
        for k in range(4):
            a(f"v_add_f32 v{G+k}, v{G+k}, v{G+4+k}")
        reduce_q([G + k for k in range(4)], [112 + k for k in range(4)])
        for h2 in range(2):
            A0, A1 = G + 2 * h2, G + 2 * h2 + 1
            a(f"v_cvt_pk_bf16_f32 v16, v{A0}, v{A1}")
            a(f"v_lshlrev_b32 v{A0}, 16, v16\nv_and_b32 v{A1}, 0xffff0000, v16")
            a(f"v_mul_f32 v{A0}, v{A0}, v14\nv_mul_f32 v{A1}, v{A1}, v14")
            a(f"v_cvt_pk_bf16_f32 v16, v{A0}, v{A1}")
            a(f"v_lshlrev_b32 v{A0}, 16, v16\nv_and_b32 v{A1}, 0xffff0000, v16")
            a(f"v_add_f32 v{A0}, v{A0}, v{MV+2*h2}\nv_add_f32 v{A1}, v{A1}, v{MV+2*h2+1}")
            a(f"v_cvt_pk_bf16_f32 v{8+h2}, v{A0}, v{A1}")
        a("v_lshlrev_b32 v3, 3, v0")
        self.setexec(0xf, 0)
        a("buffer_store_dwordx2 v[8:9], v3, s[60:63], s46 offen")
        a("s_cmp_lg_u32 s2, 32\ns_cbranch_scc1 L_fin")
        a(f"v_mov_b32 v8, s{sT}\nv_mov_b32 v3, 0")
        self.setexec(1, 0)
        a(f"buffer_store_dword v8, v3, {SRD_WS}, 0 offen sc1")
        a("s_branch L_fin")

    def publish_f32(self, d, s_base, s_stride, tmp, pol="sc1"):
        a = self.a
        va, vb, quad = tmp, tmp + 1, tmp + 2
        assert quad % 2 == 0
        a(f"s_lshl_b32 s80, s{sW}, 9\ns_add_u32 s80, s80, {L_SH}")
        a(f"v_lshrrev_b32 v{va}, 4, v0\nv_lshlrev_b32 v{va}, 8, v{va}\nv_and_b32 v{vb}, 15, v0\nv_lshl_add_u32 v{va}, v{vb}, 2, v{va}\nv_add_u32 v{va}, s80, v{va}")
        self.setexec(0xffffffff, 0)
        for r in range(4):
            a(f"ds_write_b32 v{va}, v{d+r} offset:{64*r}")
        if self.o.pubmode == 'atomic':
            a("s_mov_b64 exec, -1")
            a(f"v_lshlrev_b32 v{vb}, 3, v0\nv_add_u32 v{vb}, s80, v{vb}")
            a(f"ds_read_b64 v[{quad}:{quad+1}], v{vb}")
            a(f"v_lshrrev_b32 v{va}, 3, v0\nv_mul_lo_u32 v{va}, v{va}, s{s_stride}\nv_and_b32 v{vb}, 7, v0\nv_lshl_add_u32 v{va}, v{vb}, 3, v{va}")
            a(f"v_mov_b32 v{vb}, s{sT8}")
            a("s_waitcnt lgkmcnt(0)")
            for k in range(2):
                a(f"v_and_or_b32 v{quad+k}, v{quad+k}, s{sFF00}, v{vb}")
            if 'nopub' not in self.o.skip:
                a(f"buffer_atomic_swap_x2 v[{quad}:{quad+1}], v{va}, {SRD_WS}, s{s_base} offen {self.o.apol}")
            return
        a(f"v_lshlrev_b32 v{vb}, 4, v0\nv_add_u32 v{vb}, s80, v{vb}")
        a(f"ds_read_b128 v[{quad}:{quad+3}], v{vb}")
        a(f"v_lshrrev_b32 v{va}, 2, v0\nv_mul_lo_u32 v{va}, v{va}, s{s_stride}\nv_and_b32 v{vb}, 3, v0\nv_lshl_add_u32 v{va}, v{vb}, 4, v{va}")
        a(f"v_mov_b32 v{vb}, s{sT8}")
        a("s_waitcnt lgkmcnt(0)")
        for k in range(4):
            a(f"v_and_or_b32 v{quad+k}, v{quad+k}, s{sFF00}, v{vb}")
        if 'nopub' not in self.o.skip:
            a(f"buffer_store_dwordx4 v[{quad}:{quad+3}], v{va}, {SRD_WS}, s{s_base} offen {self.o.ppol}")
        a("s_mov_b64 exec, -1")

    def tile_params_lane(self):
        a = self.a
        a("v_lshrrev_b32 v1, 3, v0\nv_bfe_u32 v3, v0, 4, 1\nv_lshlrev_b32 v3, 1, v3\nv_and_b32 v2, 7, v0\nv_xor_b32 v2, v2, v3\nv_lshlrev_b32 v2, 4, v2")
        a("v_mul_lo_u32 v1, v1, s41")
        a("v_xor_b32 v2, s75, v2\nv_xor_b32 v6, 64, v2\nv_add_u32 v6, v1, v6\nv_add_u32 v1, v1, v2")

    def tile_mfma(self, nchunk):
        a = self.a
        BF, AF = 8, 40
        self.tr_addr(L_TILE)
        a(f"v_and_b32 v2, 7, v0\nv_mul_u32_u24 v2, {XP}, v2\nv_lshrrev_b32 v3, 4, v0\nv_lshl_add_u32 v2, v3, 4, v2\nv_add_u32 v2, s42, v2")
        def rd(m):
            b = BF + 4 * (m % 7); af = AF + 4 * (m % 7)
            a(f"ds_read_b64_tr_b16 v[{b}:{b+1}], v1 offset:{4096*m}")
            a(f"ds_read_b64_tr_b16 v[{b+2}:{b+3}], v1 offset:{4096*m+512}")
            a(f"ds_read_b128 v[{af}:{af+3}], v2 offset:{64*m}")
        def mm(m):
            b = BF + 4 * (m % 7); af = AF + 4 * (m % 7)
            a(f"v_mfma_f32_16x16x32_bf16 v[4:7], v[{af}:{af+3}], v[{b}:{b+3}], {'0' if m == 0 else 'v[4:7]'}")
        for m in range(4):
            rd(m)
        for m in range(nchunk):
            if m + 4 < nchunk:
                a("s_waitcnt lgkmcnt(9)"); mm(m); rd(m + 4)
            else:
                a(f"s_waitcnt lgkmcnt({3*(nchunk-1-m)})"); mm(m)

    def helper(self):
        a = self.a; o = self.o
        a("L_helper:")
        a.c("================= helper wave =================")
        a("s_setprio 3")
        a(f"s_sub_u32 s{sW}, s3, 8")
        if not o.earlybar:
            a(f"v_mov_b32 v1, {L_CNT}\nv_mov_b32 v2, 0\nv_mov_b32 v3, 0\nv_mov_b32 v4, 0\nv_mov_b32 v5, 0")
            a(f"s_cmp_lg_u32 s{sW}, 0\ns_cbranch_scc1 L_h_noinit")
            self.setexec(1, 0)
            a("ds_write_b128 v1, v[2:5]\nds_write_b128 v1, v[2:5] offset:16\nds_write_b128 v1, v[2:5] offset:32")
            a("s_mov_b64 exec, -1")
            a("L_h_noinit:")
        cq, c1, c2 = o.cntq, o.cnt1, o.cnt2
        assert sum(cq) == 128 and sum(c1) == 56 and sum(c2) == 56
        for x in range(8):
            assert cq[x] + c1[x] + c2[x] <= 32
        pref = lambda c: [sum(c[:i]) for i in range(8)]
        def table(vals, dst):
            lo, hi = pack8(vals)
            a(f"s_mov_b32 s76, {hex(lo)}\ns_mov_b32 s77, {hex(hi)}")
            a(f"s_lshr_b64 s[76:77], s[76:77], s78\ns_and_b32 s{dst}, s76, 0xff")
        a(f"s_lshl_b32 s78, s{sKVH}, 3")
        table(cq, 40); table([cq[x] + c1[x] for x in range(8)], 41); table([cq[x] + c1[x] + c2[x] for x in range(8)], 42)
        table(pref(cq), 43)
        table([(pref(c1)[x] - cq[x]) & 0xff for x in range(8)], 44)
        table([(pref(c2)[x] - cq[x] - c1[x]) & 0xff for x in range(8)], 46)
        if 'helpers' in o.skip:
            self.after_karg()
            srd(a, 48, sWS, WS_SIZE)
            a("s_branch L_h_tail" if o.earlybar else "s_barrier\ns_branch L_h_tail")
        a(f"s_cmp_lt_u32 s{sJ}, s40\ns_cbranch_scc1 L_h_q")
        a(f"s_cmp_lt_u32 s{sJ}, s41\ns_cbranch_scc1 L_h_m1")
        a(f"s_cmp_lt_u32 s{sJ}, s42\ns_cselect_b32 s45, 2, 3")
        a(f"s_add_u32 s47, s46, s{sJ}\ns_and_b32 s47, s47, 0xff")
        self.after_karg()
        srd(a, 48, sWS, WS_SIZE)
        if o.touch: self.touch_pages()
        if not o.earlybar:
            a("s_barrier")
        self.tag_setup()
        if o.earlyfin:
            a(f"s_cmp_eq_u32 s{sJJ}, 255\ns_cbranch_scc1 L_h_qgather")
            a(f"s_cmp_lg_u32 s{sW}, 3\ns_cbranch_scc1 L_h_qgather")
            self.finalprep()
            if o.nobar:
                self.lds_signal(C_F, 3, 4)
        a("s_branch L_h_qgather")
        a("L_h_q:")
        a(f"s_add_u32 s47, s43, s{sJ}\ns_and_b32 s47, s47, 0xff")
        a("s_and_b32 s79, s47, 1\ns_lshr_b32 s76, s47, 1")
        a(f"s_mul_i32 s40, s79, {224*8192}\ns_lshl_b32 s77, s76, 7\ns_add_u32 s40, s40, s77")
        a("s_mov_b32 s41, 8192")
        a(f"s_mov_b32 s42, {L_X}")
        a(f"s_lshr_b32 s43, s76, 3\ns_lshl_b32 s43, s43, 15\ns_and_b32 s77, s76, 7\ns_lshl_b32 s77, s77, 8\ns_add_u32 s43, s43, s77\ns_lshl_b32 s77, s79, 11\ns_add_u32 s43, s43, s77\ns_add_u32 s43, s43, {WS_QP}")
        a("s_mov_b32 s44, 4096\ns_mov_b32 s45, 0")
        self.after_karg()
        srd(a, 52, sWQ, 448 * 8192)
        a("s_branch L_h_tile")
        a("L_h_m1:")
        a(f"s_add_u32 s47, s44, s{sJ}\ns_and_b32 s47, s47, 0xff")
        a("s_and_b32 s79, s47, 1\ns_lshr_b32 s76, s47, 1")
        a(f"s_mul_i32 s40, s79, {224*3584}\ns_lshl_b32 s77, s76, 7\ns_add_u32 s40, s40, s77")
        a("s_mov_b32 s41, 3584")
        a(f"s_mul_i32 s42, s79, 448\ns_add_u32 s42, s42, {L_Y}")
        a(f"s_mul_i32 s43, s79, {8*7168}\ns_lshl_b32 s77, s76, 8\ns_add_u32 s43, s43, s77\ns_add_u32 s43, s43, {WS_HP}")
        a("s_mov_b32 s44, 7168\ns_mov_b32 s45, 1")
        self.after_karg()
        srd(a, 52, sW1, 448 * 3584)
        a("L_h_tile:")
        if 'faketile' in o.skip:
            a("s_mov_b32 s41, 128\ns_mul_i32 s40, s47, 28672")
        a(f"s_and_b32 s75, s{sW}, 1\ns_lshl_b32 s75, s75, 6")
        self.tile_params_lane()
        a(f"s_mul_i32 s75, s{sW}, 56")
        a("s_lshl_b32 s76, s75, 7")
        a("s_mul_i32 s75, s75, s41\ns_add_u32 s75, s75, s40")
        a("s_lshl_b32 s77, s41, 3")
        def tl(i):
            if 'nodma' in o.skip: return
            a(f"s_add_u32 m0, s76, {L_TILE + 1024*i}")
            a(f"buffer_load_dwordx4 v{1 if i % 2 == 0 else 6}, s[52:55], s75 offen {o.tpol} lds")
            a("s_add_u32 s75, s75, s77")
        srd(a, 56, sX, 7168)
        a("v_lshlrev_b32 v3, 4, v0")
        a(f"s_lshl_b32 s78, s{sW}, 1\ns_mul_i32 s80, s78, {XP}\ns_mul_i32 s78, s78, 896")
        a("s_cmp_eq_u32 s45, 0\ns_cbranch_scc0 L_h_xfull")
        a("s_mul_i32 s79, s79, 448\ns_add_u32 s78, s78, s79")
        self.setexec(0x0fffffff, 0)
        a("s_branch L_h_xgo")
        a("L_h_xfull:")
        self.setexec(0xffffffff, 0x00ffffff)
        a("L_h_xgo:")
        if 'nox' not in o.skip:
            a(f"s_add_u32 m0, s80, {L_X}")
            a("buffer_load_dwordx4 v3, s[56:59], s78 offen lds")
            a(f"s_add_u32 s78, s78, 896\ns_add_u32 m0, s80, {L_X + XP}")
            a("buffer_load_dwordx4 v3, s[56:59], s78 offen lds")
        a("s_mov_b64 exec, -1")
        for i in range(min(o.hpre, 7)):
            tl(i)
        srd(a, 48, sWS, WS_SIZE)
        if not o.earlybar:
            a("s_barrier")
        for i in range(min(o.hpre, 7), 7):
            tl(i)
        self.stamp(1)
        self.tag_setup()
        a("s_waitcnt vmcnt(0)")
        self.lds_signal(C_A0, 3, 4)
        if o.touch: self.touch_pages()
        self.lds_wait(C_A0, 4, 3, 4)
        a("s_cmp_eq_u32 s45, 0\ns_cbranch_scc1 L_h_mm")
        self.layernorm()
        a("s_waitcnt lgkmcnt(0)")
        self.lds_signal(C_A1, 3, 4)
        self.lds_wait(C_A1, 4, 3, 4)
        a("L_h_mm:")
        self.stamp(2)
        self.tile_mfma(7)
        a(f"s_lshl_b32 s75, s{sW}, 6\ns_add_u32 s43, s43, s75")
        a("s_nop 7")
        self.stamp(10)
        self.publish_f32(4, 43, 44, 70)
        self.stamp(3)
        a("L_h_qgather:")
        self.q_issue()
        a("s_cmp_eq_u32 s45, 2\ns_cbranch_scc1 L_h_qh")
        self.q_finish("vmcnt(0)")
        self.stamp(4)
        a("s_branch L_h_noh")
        a("L_h_qh:")
        self.h_issue()
        self.q_finish("vmcnt(5)")
        self.stamp(4)
        self.h_finish()
        a("s_waitcnt lgkmcnt(0)")
        a("L_h_noh:")
        self.stamp(8)
        WB = 100
        a(f"s_cmp_eq_u32 s{sJJ}, 255\ns_cbranch_scc1 L_h_noprep")
        a(f"s_cmp_lg_u32 s{sW}, 3\ns_cbranch_scc1 L_h_noprep")
        if o.earlyfin:
            a("s_cmp_ge_u32 s45, 2\ns_cbranch_scc1 L_h_noprep")
        if 'nofin' not in o.skip:
            self.finalprep()
        if o.nobar:
            self.lds_signal(C_F, 3, 4)
        a("L_h_noprep:")
        if o.defer:
            self.lds_wait(C_I, o.defer, 3, 4, sleep=4)
        a(f"s_setprio {o.woprio}")
        a("s_cmp_eq_u32 s45, 2\ns_cbranch_scc0 L_h_now2")
        if 'now2' in o.skip:
            a("s_branch L_h_now2")
        srd(a, 52, sW2, 1792 * 896)
        a("s_and_b32 s76, s47, 7\ns_lshr_b32 s77, s47, 3")
        a(f"s_mul_i32 s40, s76, {224*896}\ns_lshl_b32 s78, s77, 7\ns_add_u32 s40, s40, s78")
        a(f"s_mov_b32 s41, 896\ns_mov_b32 s42, {L_Y}")
        a(f"s_lshl_b32 s43, s77, 11\ns_lshl_b32 s78, s76, 6\ns_add_u32 s43, s43, s78\ns_lshl_b32 s78, s{sW}, 9\ns_add_u32 s43, s43, s78\ns_add_u32 s46, s43, {WS_MP}")
        a(f"s_and_b32 s75, s{sW}, 1\ns_lshl_b32 s75, s75, 6")
        self.tile_params_lane()
        a(f"s_mul_i32 s75, s{sW}, 56\ns_lshl_b32 s76, s75, 7\ns_mul_i32 s75, s75, 896\ns_add_u32 s75, s75, s40")
        for i in range(7):
            a(f"s_add_u32 m0, s76, {L_TILE + 1024*i}")
            a(f"buffer_load_dwordx4 v{1 if i % 2 == 0 else 6}, s[52:55], s75 offen {o.tpol} lds")
            if i < 6:
                a(f"s_add_u32 s75, s75, {8*896}")
        a("L_h_now2:")
        a(f"s_cmp_eq_u32 s{sJJ}, 255\ns_cbranch_scc1 L_h_nowo")
        srd(a, 60, sWO, 4096 * 896)
        a("s_mov_b32 s41, 896\ns_mov_b32 s75, 0")
        self.tile_params_lane()
        a(f"s_and_b32 s75, s{sJJ}, 3\ns_lshl_b32 s75, s75, 7\ns_lshl_b32 s76, s{sKVH}, 9\ns_add_u32 s75, s75, s76")
        a(f"s_lshl_b32 s76, s{sW}, 5\ns_add_u32 s75, s75, s76\ns_mul_i32 s75, s75, 896")
        a(f"s_lshr_b32 s76, s{sJJ}, 2\ns_lshl_b32 s76, s76, 7\ns_add_u32 s75, s75, s76")
        a(f"s_lshl_b32 s76, s{sW}, 12")
        for i in range(4):
            if 'nowo' in o.skip: break
            a(f"s_add_u32 m0, s76, {L_WO + 1024*i}")
            a(f"buffer_load_dwordx4 v{1 if i % 2 == 0 else 6}, s[60:63], s75 offen {o.tpol} lds")
            if i < 3:
                a(f"s_add_u32 s75, s75, {8*896}")
        a("L_h_nowo:")
        a(f"s_setprio {o.hprio2}")
        self.stamp(5)
        if not o.nobar:
            a("s_barrier")
        if 'tail' in o.skip:
            a("s_barrier\ns_branch L_fin" if not o.nobar else "s_branch L_fin")
        a("s_waitcnt vmcnt(0)")
        self.lds_signal(C_WO, 3, 4)
        self.lds_wait(C_WO, 4, 3, 4)
        self.stamp(9)
        a("s_cmp_eq_u32 s45, 2\ns_cbranch_scc0 L_h_nom2")
        self.tile_mfma(7)
        a(f"s_mov_b32 s44, {28*512}")
        a("s_nop 7")
        self.publish_f32(4, 46, 44, 70)
        a("L_h_nom2:")
        a(f"s_cmp_eq_u32 s{sJJ}, 255\ns_cbranch_scc1 L_h_tail1")
        self.tr_addr(L_WO)
        for m in range(4):
            a(f"ds_read_b64_tr_b16 v[{WB+4*m}:{WB+4*m+1}], v1 offset:{4096*m}")
            a(f"ds_read_b64_tr_b16 v[{WB+4*m+2}:{WB+4*m+3}], v1 offset:{4096*m+512}")
        a(f"s_lshr_b32 s75, s{sJJ}, 2\ns_lshl_b32 s75, s75, 2\ns_add_u32 s75, s75, s{sW}\ns_lshl_b32 s43, s75, 11")
        a(f"s_lshl_b32 s75, s{sKVH}, 2\ns_and_b32 s76, s{sJJ}, 3\ns_add_u32 s75, s75, s76\ns_lshl_b32 s75, s75, 6")
        a(f"s_add_u32 s43, s43, s75\ns_add_u32 s43, s43, {WS_BP}\ns_mov_b32 s44, {28*2048}")
        a(f"v_and_b32 v2, 7, v0\nv_mul_u32_u24 v2, 272, v2\nv_lshrrev_b32 v3, 4, v0\nv_lshl_add_u32 v2, v3, 4, v2\nv_add_u32 v2, {L_A}, v2")
        a("v_lshrrev_b32 v70, 4, v0\nv_lshlrev_b32 v70, 2, v70\nv_mul_lo_u32 v70, v70, s44\nv_and_b32 v71, 15, v0\nv_lshl_add_u32 v70, v71, 2, v70")
        a(f"v_mov_b32 v71, s{sT8}")
        for r in range(4):
            a(f"s_mul_i32 s{76+r}, s44, {r}\ns_add_u32 s{76+r}, s{76+r}, s43")
        a("s_waitcnt lgkmcnt(0)")
        self.stamp(6)
        if o.nobar:
            self.lds_wait(C_B, 8, 66, 67, sleep=0)
        else:
            a("s_barrier")
        for m in range(4):
            a(f"ds_read_b128 v[{40+4*m}:{40+4*m+3}], v2 offset:{64*m}")
        for m in range(4):
            a(f"s_waitcnt lgkmcnt({3-m})")
            a(f"v_mfma_f32_16x16x32_bf16 v[4:7], v[{40+4*m}:{40+4*m+3}], v[{WB+4*m}:{WB+4*m+3}], {'0' if m == 0 else 'v[4:7]'}")
        self.setexec(0xffffffff, 0)
        for r in range(4):
            a(f"v_and_or_b32 v{72+r}, v{4+r}, s{sFF00}, v71")
        for r in range(4):
            a(f"buffer_store_dword v{72+r}, v70, {SRD_WS}, s{76+r} offen sc1")
        self.stamp(7)
        a("s_branch L_fin")
        a("L_h_tail:")
        self.stamp(5)
        if not o.nobar:
            a("s_barrier")
        a("L_h_tail1:")
        if not o.nobar:
            a("s_barrier")
        a("s_branch L_fin")

    def touch_pages(self):
        a = self.a
        L = a.label("notouch")
        a(f"s_cmp_lg_u32 s{sW}, 3\ns_cbranch_scc1 {L}")
        a("v_mov_b32 v3, 0")
        self.setexec(1, 0)
        if not self.o.vfirst:
            srd(a, 56, sV, 0x8000000)
            a(f"s_lshl_b32 s75, s{sB}, 3\ns_add_u32 s75, s75, s{sKVH}\ns_lshl_b32 s75, s75, 21\ns_lshl_b32 s76, s{sS}, 17\ns_add_u32 s75, s75, s76\ns_add_u32 s75, s75, 0x180000")
            a("buffer_load_dword v40, v3, s[56:59], s75 offen nt")
        srd(a, 56, sWO, 4096 * 896)
        a(f"s_mul_i32 s75, s{sKVH}, {512*896}")
        a("buffer_load_dword v41, v3, s[56:59], s75 offen nt")
        a(f"s_add_u32 s75, s75, {511*896}")
        a("buffer_load_dword v42, v3, s[56:59], s75 offen nt")
        srd(a, 56, sW2, 1792 * 896)
        a("buffer_load_dword v43, v3, s[56:59], 0 offen nt")
        srd(a, 56, sOUT, 8 * 448 * 2)
        a("buffer_load_dword v44, v3, s[56:59], 0 offen")
        a("s_mov_b64 exec, -1")
        a(f"{L}:")

    def xid_publish(self):
        a = self.a
        if 'noxid' in self.o.skip:
            return
        L = a.label("noxid")
        a(f"s_cmp_lg_u32 s{sW}, 0\ns_cbranch_scc1 {L}")
        a("s_getreg_b32 s75, hwreg(HW_REG_XCC_ID, 0, 4)")
        a("s_and_b32 s75, s75, 7\ns_mul_i32 s75, s75, 6\ns_mov_b32 s76, 1\ns_mov_b32 s77, 0\ns_lshl_b64 s[76:77], s[76:77], s75")
        srd(a, 60, sDBG, 256)
        a(f"v_mov_b32 v8, s76\nv_mov_b32 v9, s77\ns_lshl_b32 s75, s{sKVH}, 5\nv_mov_b32 v3, s75")
        self.setexec(1, 0)
        a("buffer_atomic_add_x2 v[8:9], v3, s[60:63], 0 offen")
        a("s_mov_b64 exec, -1")
        a(f"{L}:")

    def xid_check(self):
        a = self.a
        L = a.label("noxc")
        a(f"s_cmp_lg_u32 s{sW}, 1\ns_cbranch_scc1 {L}")
        a(f"s_lshl_b32 s75, s{sKVH}, 5\ns_add_u32 s78, s{sDBG}, s75\ns_addc_u32 s79, s{sDBG+1}, 0")
        if 'noxid' in self.o.skip:
            a("s_mov_b32 s76, 0\ns_mov_b32 s77, 0")
        else:
            a("s_load_dwordx2 s[76:77], s[78:79], 0 glc")
        a("s_getreg_b32 s75, hwreg(HW_REG_XCC_ID, 0, 4)")
        a("s_and_b32 s75, s75, 7\ns_mul_i32 s75, s75, 6\ns_waitcnt lgkmcnt(0)\ns_lshr_b64 s[76:77], s[76:77], s75\ns_and_b32 s76, s76, 63")
        a("s_cmp_eq_u32 s76, 32\ns_cselect_b32 s75, 1, 0")
        if 'nofast' in self.o.skip:
            a("s_mov_b32 s75, 0")
        a(f"v_mov_b32 v2, {L_FIN+72}\nv_mov_b32 v3, s75")
        self.setexec(1, 0)
        a("ds_write_b32 v2, v3")
        a("s_mov_b64 exec, -1")
        a(f"{L}:")

    def tr_addr(self, lbase):
        a = self.a
        a("v_lshrrev_b32 v1, 4, v0\nv_lshlrev_b32 v1, 3, v1\nv_bfe_u32 v2, v0, 2, 2\nv_add_u32 v1, v1, v2\nv_lshlrev_b32 v1, 7, v1")
        a("v_bfe_u32 v2, v0, 3, 2")
        a(f"v_xor_b32 v2, s{sW}, v2\nv_lshl_add_u32 v1, v2, 5, v1")
        a(f"v_and_b32 v2, 3, v0\nv_lshl_add_u32 v1, v2, 3, v1\nv_add_u32 v1, {lbase}, v1")

    def q_issue(self):
        a = self.a
        a(f"s_lshl_b32 s75, s{sKVH}, 3\ns_add_u32 s75, s75, s{sB}\ns_lshl_b32 s75, s75, 12\ns_lshl_b32 s76, s{sW}, 9\ns_add_u32 s75, s75, s76")
        a(f"s_add_u32 s43, s75, {WS_QP}")
        a("v_lshrrev_b32 v1, 5, v0\nv_lshlrev_b32 v1, 11, v1\nv_and_b32 v2, 31, v0\nv_lshl_add_u32 v1, v2, 4, v1")
        a("s_add_u32 s76, s43, 60")
        self.spoll(76, [(1, 52, 2048 + 7 * 64)], [52], self.o.ssleep1, name='q')
        self.spoll(76, [(1, 52 + i, (i & 7) * 64 + (i >> 3) * 2048) for i in range(16)], [52 + i for i in range(16)], self.o.ssleep, name='q')
        self.stamp(11)
        self.q_load()

    def q_load(self):
        if 'no_q' not in self.o.skip:
            self.a(f"buffer_load_dwordx4 v[8:11], v1, {SRD_WS}, s43 offen sc1")

    def q_finish(self, wait):
        a = self.a
        self.vpoll(self.q_load, [8], 5, 6, 7, self.o.qsleep, name='q', issued=True, wait=wait)
        self.unmask(8, 4)
        for k in range(4):
            a(f"v_mov_b32 v{12+k}, v{8+k}")
        for k in range(4):
            a(f"v_permlane32_swap_b32 v{8+k}, v{12+k}")
        for k in range(4):
            a(f"v_add_f32 v{8+k}, v{8+k}, v{12+k}")
        a("v_cvt_pk_bf16_f32 v8, v8, v9\nv_cvt_pk_bf16_f32 v9, v10, v11")
        a(f"s_lshl_b32 s75, s{sW}, 8\ns_add_u32 s75, s75, {L_Q}\nv_and_b32 v2, 31, v0\nv_lshlrev_b32 v2, 3, v2\nv_add_u32 v2, s75, v2")
        self.setexec(0xffffffff, 0)
        a("ds_write_b64 v2, v[8:9]")
        a("s_mov_b64 exec, -1")
        a("s_waitcnt lgkmcnt(0)")
        self.lds_signal(C_Q, 3, 4)

    def layernorm(self):
        a = self.a
        X = 8; F = 16
        a(f"s_lshl_b32 s75, s{sW}, 1\ns_mul_i32 s75, s75, {XP}")
        a(f"v_lshrrev_b32 v1, 5, v0\nv_mul_u32_u24 v1, {XP}, v1\nv_and_b32 v2, 31, v0\nv_mul_u32_u24 v2, 28, v2\nv_add_u32 v1, v1, v2\nv_add_u32 v1, s75, v1")
        a(f"v_add_u32 v2, {L_X}, v1")
        for i in range(3):
            a(f"ds_read2_b32 v[{X+2*i}:{X+2*i+1}], v2 offset0:{2*i} offset1:{2*i+1}")
        a(f"ds_read_b32 v{X+6}, v2 offset:24")
        a("s_waitcnt lgkmcnt(0)")
        for i in range(7):
            a(f"v_lshlrev_b32 v{F+2*i}, 16, v{X+i}\nv_and_b32 v{F+2*i+1}, 0xffff0000, v{X+i}")
        a(f"v_add_f32 v3, v{F}, v{F+1}")
        for i in range(2, 14):
            a(f"v_add_f32 v3, v3, v{F+i}")
        self.row16_reduce("v_add_f32", 3)
        self.swap_reduce("v_add_f32", 3, 4, 16)
        a("v_mul_f32 v3, 0x3b124925, v3")
        a(f"v_sub_f32 v5, v{F}, v3\nv_mul_f32 v4, v5, v5")
        for i in range(1, 14):
            a(f"v_sub_f32 v5, v{F+i}, v3\nv_fmac_f32 v4, v5, v5")
        self.row16_reduce("v_add_f32", 4)
        self.swap_reduce("v_add_f32", 4, 5, 16)
        a("v_mul_f32 v4, 0x3b124925, v4")
        self.bf16_round(3, 3)
        self.bf16_round(4, 4)
        a("v_add_f32 v4, 0x3727c5ac, v4")
        self.bf16_round(4, 4)
        a("v_sqrt_f32 v4, v4")
        self.bf16_round(4, 4)
        a("v_rcp_f32 v4, v4")
        a(f"v_add_u32 v2, {L_Y}, v1")
        for i in range(7):
            a(f"v_sub_f32 v{F+2*i}, v{F+2*i}, v3\nv_sub_f32 v{F+2*i+1}, v{F+2*i+1}, v3")
            a(f"v_cvt_pk_bf16_f32 v5, v{F+2*i}, v{F+2*i+1}")
            a(f"v_lshlrev_b32 v6, 16, v5\nv_and_b32 v5, 0xffff0000, v5")
            a(f"v_mul_f32 v6, v6, v4\nv_mul_f32 v5, v5, v4")
            a(f"v_cvt_pk_bf16_f32 v{X+i}, v6, v5")
            a(f"ds_write_b32 v2, v{X+i} offset:{4*i}")

    def gelu(self, x, t0, t1):
        a = self.a
        a(f"v_mul_f32 v{t0}, v{x}, v{x}")
        a(f"v_mov_b32 v{t1}, 0xc0135761")
        a(f"v_fmac_f32 v{t1}, 0xbdd2d3e2, v{t0}")
        a(f"v_mul_f32 v{t1}, v{t1}, v{x}")
        a(f"v_exp_f32 v{t1}, v{t1}")
        a(f"v_add_f32 v{t1}, 1.0, v{t1}")
        a(f"v_rcp_f32 v{t1}, v{t1}")
        a(f"v_mul_f32 v{x}, v{x}, v{t1}")

    def h_loads(self):
        a = self.a
        for i in range(4):
            a(f"buffer_load_dwordx4 v[{16+4*i}:{16+4*i+3}], v60, {SRD_WS}, s{64+i} offen sc1")

    def h_issue(self):
        a = self.a
        a(f"s_lshl_b32 s75, s{sW}, 1\ns_mul_i32 s76, s75, 7168\ns_mul_i32 s77, s75, {XP}")
        a(f"s_and_b32 s78, s47, 7\ns_mul_i32 s79, s78, 896\ns_add_u32 s76, s76, s79\ns_add_u32 s40, s76, {WS_HP}")
        a(f"s_add_u32 s46, s77, {L_Y}\ns_mul_i32 s44, s78, 448")
        a("v_min_u32 v61, 55, v0\nv_lshlrev_b32 v60, 4, v61\nv_lshlrev_b32 v61, 3, v61\nv_add_u32 v62, s46, v61")
        a(f"s_add_u32 s75, s40, {7168 + 60}")
        self.spoll(75, [(1, 52, 8 * 7168 + 13 * 64)], [52], self.o.ssleep1, name='h')
        for kh in range(2):
            self.spoll(75, [(1, 52 + i, kh * 8 * 7168 + i * 64) for i in range(14)], [52 + i for i in range(14)], self.o.ssleep, name='h')
        a(f"s_mov_b32 s64, s40\ns_add_u32 s65, s40, {8*7168}\ns_add_u32 s66, s40, 7168\ns_add_u32 s67, s65, 7168")
        srd(a, 56, sB1, 3584)
        a("buffer_load_dwordx2 v[48:49], v61, s[56:59], s44 offen")
        if 'no_h' not in self.o.skip:
            self.h_loads()

    def h_finish(self):
        a = self.a
        self.vpoll(self.h_loads, [16, 20, 24, 28], 5, 6, 7, 8, name='h', issued=True)
        self.unmask(16, 16)
        a("v_lshlrev_b32 v50, 16, v48\nv_and_b32 v51, 0xffff0000, v48\nv_lshlrev_b32 v52, 16, v49\nv_and_b32 v53, 0xffff0000, v49")
        for bl in range(2):
            r = 16 + 8 * bl
            for k in range(4):
                a(f"v_add_f32 v{r+k}, v{r+k}, v{r+4+k}")
            for k2 in range(2):
                x0, x1 = r + 2 * k2, r + 2 * k2 + 1
                a(f"v_cvt_pk_bf16_f32 v{r+4}, v{x0}, v{x1}")
                a(f"v_lshlrev_b32 v{x0}, 16, v{r+4}\nv_and_b32 v{x1}, 0xffff0000, v{r+4}")
                a(f"v_add_f32 v{x0}, v{x0}, v{50+2*k2}\nv_add_f32 v{x1}, v{x1}, v{51+2*k2}")
                a(f"v_cvt_pk_bf16_f32 v{r+4}, v{x0}, v{x1}")
                a(f"v_lshlrev_b32 v{x0}, 16, v{r+4}\nv_and_b32 v{x1}, 0xffff0000, v{r+4}")
            for k in range(4):
                self.gelu(r + k, 36 + 2 * k, 37 + 2 * k)
            a(f"v_cvt_pk_bf16_f32 v{r}, v{r}, v{r+1}\nv_cvt_pk_bf16_f32 v{r+1}, v{r+2}, v{r+3}")
            a(f"ds_write_b64 v62, v[{r}:{r+1}] offset:{XP*bl}")

    def finalprep(self):
        a = self.a
        if 'notouch' not in self.o.skip:
            srd(a, 56, sOUT, 8 * 448 * 2)
            a("v_mov_b32 v3, 0")
            self.setexec(1, 0)
            a("buffer_load_dword v40, v3, s[56:59], 0 offen")
            a("s_mov_b64 exec, -1")
        srd(a, 56, sX, 7168)
        a(f"s_mul_i32 s75, s{sKVH}, 896")
        a("v_lshlrev_b32 v3, 4, v0")
        a("v_mov_b32 v8, 0\nv_mov_b32 v9, 0\nv_mov_b32 v10, 0\nv_mov_b32 v11, 0")
        self.setexec(0xffffffff, 0x00ffffff)
        a("buffer_load_dwordx4 v[8:11], v3, s[56:59], s75 offen")
        a("s_mov_b64 exec, -1")
        srd(a, 56, sGW, 896)
        a("buffer_load_dwordx4 v[12:15], v3, s[56:59], 0 offen")
        srd(a, 56, sB2, 896)
        a(f"s_lshl_b32 s75, s{sJJ}, 5")
        a("v_and_b32 v4, 3, v0\nv_lshlrev_b32 v4, 3, v4")
        a("buffer_load_dwordx2 v[16:17], v4, s[56:59], s75 offen")
        a("s_waitcnt vmcnt(0)")
        a("v_mov_b32 v24, 0")
        for i in range(4):
            a(f"v_lshlrev_b32 v25, 16, v{8+i}\nv_lshlrev_b32 v26, 16, v{12+i}\nv_mul_f32 v25, v25, v26")
            a(f"v_and_b32 v26, 0xffff0000, v{8+i}\nv_and_b32 v27, 0xffff0000, v{12+i}\nv_mul_f32 v26, v26, v27")
            a("v_cvt_pk_bf16_f32 v25, v25, v26")
            a("v_lshlrev_b32 v26, 16, v25\nv_and_b32 v25, 0xffff0000, v25\nv_add_f32 v24, v24, v26\nv_add_f32 v24, v24, v25")
        self.row16_reduce("v_add_f32", 24)
        self.swap_reduce("v_add_f32", 24, 25, 16)
        self.swap_reduce("v_add_f32", 24, 25, 32)
        self.bf16_round(24, 24)
        a("v_mul_f32 v24, 0xbfb8aa3b, v24\nv_exp_f32 v24, v24\nv_add_f32 v24, 1.0, v24\nv_rcp_f32 v24, v24")
        self.bf16_round(24, 24)
        a("v_sub_f32 v25, 1.0, v24")
        self.bf16_round(25, 25)
        a("v_lshlrev_b32 v28, 16, v16\nv_and_b32 v29, 0xffff0000, v16\nv_lshlrev_b32 v30, 16, v17\nv_and_b32 v31, 0xffff0000, v17")
        a(f"v_lshlrev_b32 v4, 1, v4\nv_add_u32 v4, {L_FIN}, v4\nv_mov_b32 v5, {L_FIN+64}")
        self.setexec(0xf, 0)
        a("ds_write_b128 v4, v[28:31]")
        self.setexec(1, 0)
        a("ds_write_b64 v5, v[24:25]")
        a("s_mov_b64 exec, -1")
        a("s_waitcnt lgkmcnt(0)")

    def build(self):
        a = self.a
        self.prologue()
        self.streaming()
        self.helper()
        a("L_fin:")
        self.dump_stamps()
        a("L_end:")
        a("s_endpgm")
        body = a.text()
        body = "\n".join((l.replace("@POL@", self.o.stpol) if "buffer_store" in l else l.replace("@POL@", self.o.ldpol)) for l in body.split("\n"))
        hdr = open("cdna_kernels/" + NAME + ".s.ref").read().split("; Override launch geometry")[0]
        out = hdr
        out += "; Override launch geometry by editing the next line (default: block=256,\n"
        out += f"; @launch grid=(256,1,1) block=(768,1,1) lds={LDS_BYTES}\n"
        out += '.amdgcn_target "amdgcn-amd-amdhsa--gfx950"\n.text\n'
        out += f".globl {KNAME}\n.p2align 8\n.type {KNAME},@function\n{KNAME}:\n"
        out += body
        out += f""".section .rodata,"a"
.p2align 6
.amdhsa_kernel {KNAME}
  .amdhsa_next_free_vgpr 168
  .amdhsa_next_free_sgpr 102
  .amdhsa_accum_offset 168
  .amdhsa_group_segment_fixed_size 0
  .amdhsa_kernarg_size 112
  .amdhsa_user_sgpr_count 2
  .amdhsa_user_sgpr_kernarg_segment_ptr 1
  .amdhsa_system_sgpr_workgroup_id_x 1
.end_amdhsa_kernel
"""
        return out

def parse(argv):
    p = argparse.ArgumentParser()
    p.add_argument("-o", default="cdna_kernels/" + NAME + ".s")
    p.add_argument("--stamps", action="store_true")
    p.add_argument("--dbgtime", action="store_true")
    p.add_argument("--rot", default="1,1,1,0")
    p.add_argument("--skip", default="")
    p.add_argument("--ldpol", default="sc1")
    p.add_argument("--stpol", default="sc1")
    p.add_argument("--npre", type=int, default=1)
    p.add_argument("--kmap", default="contig")
    p.add_argument("--kwin", type=int, default=5)
    p.add_argument("--vwin_n", type=int, default=6)
    p.add_argument("--order", default="kv")
    p.add_argument("--sprio", default="")
    p.add_argument("--hpre", type=int, default=7)
    p.add_argument("--woprio", type=int, default=0)
    p.add_argument("--qsleep", type=int, default=8)
    p.add_argument("--ssleep", type=int, default=2)
    p.add_argument("--fstag", type=int, default=4)
    p.add_argument("--ssleep1", type=int, default=8)
    p.add_argument("--tpol", default="nt")
    p.add_argument("--fast", action="store_true")
    p.add_argument("--earlybar", action="store_true")
    p.add_argument("--asleep", type=int, default=1)
    p.add_argument("--touch", action="store_true")
    p.add_argument("--vfirst", action="store_true")
    p.add_argument("--outtouch", action="store_true")
    p.add_argument("--fpos", type=int, default=6)
    p.add_argument("--defer", type=int, default=8)
    p.add_argument("--nobar", action="store_true")
    p.add_argument("--earlyfin", type=int, default=1)
    p.add_argument("--sprio2", type=int, default=0)
    p.add_argument("--hprio2", type=int, default=3)
    p.add_argument("--pubmode", default="store")
    p.add_argument("--apol", default="")
    p.add_argument("--ppol", default="sc1")
    p.add_argument("--kvpol", default="nt")
    p.add_argument("--cntq", default="16,16,16,16,16,16,16,16")
    p.add_argument("--cnt1", default="7,7,7,7,7,7,7,7")
    p.add_argument("--cnt2", default="7,7,7,7,7,7,7,7")
    o = p.parse_args(argv)
    o.rot = tuple(int(x) for x in o.rot.split(","))
    o.skip = set(x for x in o.skip.split(",") if x)
    if not o.fast:
        o.skip.add('noxid')
    if not o.outtouch:
        o.skip.add('notouch')
    for k in ("cntq", "cnt1", "cnt2"):
        setattr(o, k, [int(x) for x in getattr(o, k).split(",")])
    return o

if __name__ == "__main__":
    o = parse(sys.argv[1:])
    open(o.o, "w").write(Gen(o).build())
    print("wrote", o.o)
```
